```python
import torch

def _softmax(x, axis=-1):
    return torch.softmax(x, dim=axis)
def _gelu(x):
    return torch.nn.functional.gelu(x, approximate="tanh")
def _silu(x):
    return torch.nn.functional.silu(x)
def _sigmoid(x):
    return torch.sigmoid(x)
def _layernorm(x, axis=-1, eps=1e-5):
    m = x.mean(dim=axis, keepdim=True)
    v = x.var(dim=axis, keepdim=True, unbiased=False)
    return (x - m) / torch.sqrt(v + eps)
def _scatter_add(tgt, idx, src, axis=0):
    return tgt.clone().index_add_(axis, idx, src)
def _segment_sum(src, seg, n):
    out = torch.zeros((n,) + src.shape[1:], dtype=src.dtype)
    return out.index_add_(0, seg, src)
def _pad(x, pw):
    flat = tuple(v for pair in reversed(pw) for v in pair)
    return torch.nn.functional.pad(x, flat)

kernel_name = 'concat_heads__mha_block_cached__sliding_block_cached__decode'

def setup_inputs():

    _w = (lambda a: (lambda t: t.to(torch.bfloat16) if t.is_floating_point() else t)(torch.as_tensor(a)))
    def _A_setup():
        B, Sq, D = 4, 1, 1024
        H, Sk, Dh = 32, 8192, 128
        return {
            "x": _w((lambda *s: torch.randn(*s, dtype=torch.bfloat16) * 0.8)(B, Sq, D)),
            "k_cache": _w((lambda *s: torch.randn(*s, dtype=torch.bfloat16) * 1.6)(B, H, Sk, Dh)),
            "v_cache": _w((lambda *s: torch.randn(*s, dtype=torch.bfloat16) * 0.2)(B, H, Sk, Dh)),
            "wq": _w((lambda *s: torch.randn(*s, dtype=torch.bfloat16) * 1.6)(D, H * Dh) * (D ** -0.5)),
            "wo": _w((lambda *s: torch.randn(*s, dtype=torch.bfloat16) * 0.2)(H * Dh, D) * ((H * Dh) ** -0.5)),
        }
    _A_in = _A_setup()

    def _B_setup():
        B, Sq, D = 4, 1, 1024
        Hq, Hkv, Sk, Dh = 32, 4, 8192, 128
        assert Hq % Hkv == 0, (Hq, Hkv)
        return {
            "x": _w((lambda *s: torch.randn(*s, dtype=torch.bfloat16) * 0.8)(B, Sq, D)),
            "k_cache": _w((lambda *s: torch.randn(*s, dtype=torch.bfloat16) * 1.6)(B, Hkv, Sk, Dh)),
            "v_cache": _w((lambda *s: torch.randn(*s, dtype=torch.bfloat16) * 0.2)(B, Hkv, Sk, Dh)),
            "wq": _w((lambda *s: torch.randn(*s, dtype=torch.bfloat16) * 1.6)(D, Hq * Dh) * (D ** -0.5)),
            "wo": _w((lambda *s: torch.randn(*s, dtype=torch.bfloat16) * 0.2)(Hq * Dh, D) * ((Hq * Dh) ** -0.5)),
        }
    _B_in = _B_setup()

    return {
        "A_x": _A_in["x"],
        "A_k_cache": _A_in["k_cache"],
        "A_v_cache": _A_in["v_cache"],
        "A_wq": _A_in["wq"],
        "A_wo": _A_in["wo"],
        "B_x": _B_in["x"],
        "B_k_cache": _B_in["k_cache"],
        "B_v_cache": _B_in["v_cache"],
        "B_wq": _B_in["wq"],
        "B_wo": _B_in["wo"],
    }

def reference(A_x, A_k_cache, A_v_cache, A_wq, A_wo, B_x, B_k_cache, B_v_cache, B_wq, B_wo):
    def _A_ref(x, k_cache, v_cache, wq, wo):
        B, Sq, D = x.shape
        H, Dh = 32, 128
        q = (lambda x, *d: x.permute(*d))((x @ wq).reshape(B, Sq, H, Dh), 0, 2, 1, 3)
        scores = torch.einsum("bhqd,bhkd->bhqk", q, k_cache) * (Dh ** -0.5)
        p = _softmax(scores, axis=-1)
        o = torch.einsum("bhqk,bhkd->bhqd", p, v_cache)
        return (lambda x, *d: x.permute(*d))(o, 0, 2, 1, 3).reshape(B, Sq, H * Dh) @ wo

    def _B_ref(x, k_cache, v_cache, wq, wo):
        B, Sq, D = x.shape
        Hq, Dh = 32, 128
        Hkv, Sk = k_cache.shape[1], k_cache.shape[2]
        W = min(4096, max(256, Sk // 4))
        rep = Hq // Hkv
        q = (lambda x, *d: x.permute(*d))((x @ wq).reshape(B, Sq, Hq, Dh), 0, 2, 1, 3)
        k = (lambda x, n, axis: torch.repeat_interleave(x, n, dim=axis))(k_cache[:, :, Sk - W:, :], rep, axis=1)
        v = (lambda x, n, axis: torch.repeat_interleave(x, n, dim=axis))(v_cache[:, :, Sk - W:, :], rep, axis=1)
        scores = torch.einsum("bhqd,bhkd->bhqk", q, k) * (Dh ** -0.5)
        p = _softmax(scores, axis=-1)
        o = torch.einsum("bhqk,bhkd->bhqd", p, v)
        return (lambda x, *d: x.permute(*d))(o, 0, 2, 1, 3).reshape(B, Sq, Hq * Dh) @ wo

    a = _A_ref(A_x, A_k_cache, A_v_cache, A_wq, A_wo)
    b = _B_ref(B_x, B_k_cache, B_v_cache, B_wq, B_wo)
    return torch.concatenate([a, b], axis=-1)
```

```python
import re

TRANS = ("v_exp_f32", "v_log_f32", "v_rcp_f32", "v_rsq_f32", "v_sqrt_f32", "v_sin_f32", "v_cos_f32")

def _regs(tok, kind):
    tok = tok.strip()
    tok = re.sub(r"^-|^abs\(|\)$|^\|", "", tok).strip("|")
    m = re.fullmatch(kind + r"(\d+)", tok)
    if m: return {int(m.group(1))}
    m = re.fullmatch(kind + r"\[(\d+):(\d+)\]", tok)
    if m: return set(range(int(m.group(1)), int(m.group(2)) + 1))
    return set()

class Ins:
    __slots__ = ("text", "op", "vw", "vr", "sw", "sr", "cls", "dpp", "mfma_c", "mfma_ab", "passes", "store_data", "lds_dma", "nops")
    def __init__(self, text):
        self.text = text
        t = text.split(";")[0].strip()
        self.op = t.split()[0] if t else ""
        rest = t[len(self.op):].strip()
        ops = [o.strip() for o in re.split(r",(?![^\[]*\])", rest)] if rest else []
        if ops:
            last = ops[-1].split()
            ops[-1] = last[0] if last else ""
            mods = " ".join(last[1:])
        else:
            mods = ""
        op = self.op
        self.vw = set(); self.vr = set(); self.sw = set(); self.sr = set()
        self.dpp = "_dpp" in op or "row_" in mods
        self.mfma_c = set(); self.mfma_ab = set(); self.passes = 0
        self.store_data = set(); self.lds_dma = False; self.nops = 1
        def V(tok): return {("v", i) for i in _regs(tok, "v")} | {("a", i) for i in _regs(tok, "a")}
        def S(tok):
            r = {i for i in _regs(tok, "s")}
            if tok in ("vcc",): r |= {"vcc"}
            if tok == "m0": r |= {"m0"}
            if tok == "exec": r |= {"exec"}
            return r
        if op == "s_nop":
            self.cls = "nop"; self.nops = int(ops[0], 0) + 1
        elif op.startswith("v_mfma"):
            self.cls = "mfma"
            self.vw = V(ops[0]); self.mfma_ab = V(ops[1]) | V(ops[2]); self.mfma_c = V(ops[3])
            self.vr = self.mfma_ab | self.mfma_c
            self.passes = 8 if "32x32" in op else 4
        elif op.startswith("v_cmp"):
            self.cls = "valu"; self.sw = S(ops[0])
            for o in ops[1:]: self.vr |= V(o); self.sr |= S(o)
        elif op in ("v_readfirstlane_b32", "v_readlane_b32"):
            self.cls = "rdlane"; self.sw = S(ops[0]); self.vr = V(ops[1])
        elif op.startswith("v_permlane"):
            self.cls = "perm"; self.vw = V(ops[0]) | V(ops[1]); self.vr = set(self.vw)
        elif op.startswith("v_"):
            self.cls = "trans" if op.replace("_e32", "").replace("_e64", "") in TRANS else ("dot" if op.startswith("v_dot") else "valu")
            self.vw = V(ops[0])
            srcs = ops[1:]
            if op.startswith(("v_add_co", "v_addc_co", "v_sub_co")):
                self.sw = S(ops[1]); srcs = ops[2:]
            for o in srcs: self.vr |= V(o); self.sr |= S(o)
            if op.startswith(("v_fmac", "v_dot2c")) or self.dpp: self.vr |= self.vw
            if op.startswith("v_cndmask") and len(ops) == 3: self.sr |= {"vcc"}
            if self.cls == "dot":
                self.mfma_ab = V(ops[1]) | V(ops[2])
        elif op.startswith(("buffer_", "global_")):
            self.cls = "vmem"
            if op in ("buffer_inv", "buffer_wbl2"):
                pass
            elif " lds" in (" " + mods) or "_lds_" in op:
                self.lds_dma = True
                for o in ops: self.vr |= V(o); self.sr |= S(o)
            elif "store" in op or "atomic" in op:
                if op.startswith("buffer_"):
                    data = V(ops[0])
                else:
                    data = V(ops[1])
                for o in ops: self.vr |= V(o); self.sr |= S(o)
                if "x3" in op or "x4" in op: self.store_data = data
                if "atomic" in op and "sc0" in mods: self.vw = data
            else:
                self.vw = V(ops[0])
                for o in ops[1:]: self.vr |= V(o); self.sr |= S(o)
        elif op.startswith("ds_"):
            self.cls = "ds"
            if "read" in op or "bpermute" in op or "swizzle" in op or "rtn" in op:
                self.vw = V(ops[0])
                for o in ops[1:]: self.vr |= V(o)
            else:
                for o in ops: self.vr |= V(o)
        elif op.startswith("s_"):
            self.cls = "salu"
            if ops and not op.startswith(("s_cmp", "s_cbranch", "s_branch", "s_waitcnt", "s_barrier", "s_sleep", "s_endpgm", "s_setprio")):
                self.sw = S(ops[0])
                for o in ops[1:]: self.sr |= S(o)
            else:
                for o in ops: self.sr |= S(o)
        else:
            self.cls = "other"

VALU = ("valu", "trans", "dot", "perm", "rdlane")

def need(p, c):
    n = 0
    pv = p.cls in VALU
    raw = p.vw & c.vr
    if pv and raw:
        if c.dpp: n = max(n, 2)
        if c.cls == "perm": n = max(n, 2)
        if c.cls == "mfma": n = max(n, 2)
        if c.cls == "rdlane": n = max(n, 1)
        if p.cls == "trans" and c.cls in VALU + ("mfma",) and c.cls != "trans": n = max(n, 1)
        if p.cls == "trans" and c.cls in ("vmem", "ds"): n = max(n, 1)
    if p.cls == "dot" and (p.vw & (c.vr | c.vw)):
        if c.op == p.op and not (p.vw & c.mfma_ab):
            pass
        else:
            n = max(n, 3)
    if p.cls == "mfma":
        big = {4: 8, 8: 12}[p.passes]
        if c.cls == "mfma":
            if p.vw & c.mfma_ab: n = max(n, big)
            if p.vw & c.mfma_c:
                if not (p.vw == c.mfma_c and p.passes == c.passes): n = max(n, big - 2)
            elif p.vw & c.vw: n = max(n, big)
        elif p.vw & (c.vr | c.vw): n = max(n, big)
        if c.cls in VALU and (p.mfma_c & c.vw): n = max(n, {4: 3, 8: 7}[p.passes])
    if pv and p.sw:
        if c.cls == "vmem" and (p.sw & c.sr): n = max(n, 5)
        if c.cls in VALU and (p.sw & c.sr): n = max(n, 4 if c.cls == "rdlane" else 2)
    if p.cls == "salu" and "m0" in p.sw and c.lds_dma: n = max(n, 1)
    if p.store_data and (p.store_data & c.vw): n = max(n, 2)
    return n

class Asm:
    def __init__(self):
        self.lines = []
    def __call__(self, text):
        for ln in text.split("\n"):
            ln = ln.rstrip()
            if not ln.strip(): continue
            self.lines.append(ln)
    def label(self, name):
        self.lines.append(name + ":")
    def render(self, window=24):
        out = []
        hist = []
        for ln in self.lines:
            s = ln.strip()
            if s.endswith(":") or s.startswith((".", ";")):
                out.append(ln); continue
            ins = Ins(s)
            req = 0
            dist = 0
            for p in reversed(hist[-window:]):
                r = need(p, ins) - dist
                if r > req: req = r
                dist += p.nops
                if dist > 16: break
            while req > 0:
                k = min(req, 16)
                out.append(f"  s_nop {k-1}")
                hist.append(Ins(f"s_nop {k-1}"))
                req -= k
            out.append("  " + s)
            hist.append(ins)
            if ins.op in ("s_branch", "s_endpgm"):
                hist = []
        return "\n".join(out) + "\n"
```

```python
import sys, struct
sys.path.insert(0, "dev")
from asmlib import Asm
NAME = "concat_heads__mha_block_cached__sliding_block_cached__decode_kernel"

HEADER = """; Kernarg layout for this problem (104 bytes, ptrs only, base s[0:1]):
"""

L_W = 0
L_KV = 65536
L_QA = 131072
L_QB = L_QA + 1024
L_OA = L_QB + 2048
L_OB = L_OA + 1024
L_TOT = L_OB + 1024
W_CNT = 0x1000
W_QP = 0x10000
W_PA = 0x100000
W_PB = 0x200000
W_Y = 0x400000
W_STAMP = 0x20000000

CEXP = struct.unpack("<I", struct.pack("<f", 1.4426950408889634 / (128 ** 0.5)))[0]

def gen(tl=4, ring=2, ns=24, stamps=0, spin=200000, hsleep=8):
    A = Asm()
    tile_keys = tl * 4
    chunk_keys = tile_keys * ring
    chunk_bytes = chunk_keys * 256
    NCH = 8192 // chunk_keys
    NWP = 8
    assert ns >= 2 and ns * NWP <= NCH
    uid = [0]
    def lab(p):
        uid[0] += 1
        return f"L_{p}_{uid[0]}"

    P = dict(A_x=64, A_k=66, A_v=68, A_wq=70, A_wo=72, B_x=74, B_k=76, B_v=78, B_wq=80, B_wo=82, out=84, dbg=86, ws=88)
    def srd(d, lo, hi, n):
        A(f"s_mov_b32 s{d}, s{lo}")
        A(f"s_and_b32 s{d+1}, s{hi}, 0xffff")
        A(f"s_mov_b32 s{d+2}, {hex(n)}")
        A(f"s_mov_b32 s{d+3}, 0x20000")
    def srdp(d, name, n): srd(d, P[name], P[name] + 1, n)

    def stamp(i):
        if stamps:
            A(f"s_memrealtime s[{90+2*i}:{91+2*i}]")

    def stamp_store(n, vt):
        if not stamps: return
        A("s_waitcnt lgkmcnt(0)")
        A("s_lshl_b32 s32, s2, 3")
        A("s_add_u32 s32, s32, s3")
        A(f"s_mul_i32 s32, s32, {stamps*8}")
        A(f"s_add_u32 s32, s32, {hex(W_STAMP)}")
        for i in range(stamps):
            k = min(i, n - 1)
            A(f"v_mov_b32 v{vt+2*i}, s{90+2*k}")
            A(f"v_mov_b32 v{vt+2*i+1}, s{91+2*k}")
        A(f"v_mov_b32 v{vt+2*stamps}, 0")
        A("s_mov_b64 exec, 1")
        for i in range(stamps):
            A(f"buffer_store_dwordx2 v[{vt+2*i}:{vt+2*i+1}], v{vt+2*stamps}, s[24:27], s32 offen offset:{8*i}")
        A("s_mov_b64 exec, -1")

    def scores(K, Q, S, n):
        for r in range(4):
            for j in range(n):
                c = "0" if r == 0 else f"v{S+j}"
                A(f"v_dot2_f32_bf16 v{S+j}, v{K+4*j+r}, v{Q+r}, {c}")
        for st in (8, 4, 2, 1):
            for j in range(n):
                A(f"v_add_f32_dpp v{S+j}, v{S+j}, v{S+j} row_ror:{st} row_mask:0xf bank_mask:0xf")
    def softmax(S, n, M, LS, ACC, AL, NM, PL, PH):
        regs = [f"v{S+j}" for j in range(n)] + [f"v{M}"]
        A(f"v_max3_f32 v{AL}, {regs[0]}, {regs[1]}, {regs[2]}")
        i = 3
        while i < len(regs):
            if i + 1 < len(regs):
                A(f"v_max3_f32 v{AL}, v{AL}, {regs[i]}, {regs[i+1]}"); i += 2
            else:
                A(f"v_max_f32 v{AL}, v{AL}, {regs[i]}"); i += 1
        A(f"v_sub_f32 v{NM}, v{M}, v{AL}")
        A(f"v_mov_b32 v{M}, v{AL}")
        A(f"v_mul_f32 v{AL}, s7, v{NM}")
        A(f"v_mul_f32 v{NM}, s7, v{M}")
        A(f"v_exp_f32 v{AL}, v{AL}")
        for j in range(n):
            A(f"v_fma_f32 v{S+j}, v{S+j}, s7, -v{NM}")
        for j in range(n):
            A(f"v_exp_f32 v{S+j}, v{S+j}")
        for e in range(8):
            A(f"v_mul_f32 v{ACC+e}, v{ACC+e}, v{AL}")
        A(f"v_fma_f32 v{LS}, v{LS}, v{AL}, v{S}")
        for j in range(1, n):
            A(f"v_add_f32 v{LS}, v{LS}, v{S+j}")
        for j in range(n):
            A(f"v_cvt_pk_bf16_f32 v{PL+j}, v{S+j}, 0")
            A(f"v_cvt_pk_bf16_f32 v{PH+j}, 0, v{S+j}")
    def pv(V, n, ACC, PL, PH):
        for j in range(n):
            for r in range(4):
                A(f"v_dot2_f32_bf16 v{ACC+2*r}, v{V+4*j+r}, v{PL+j}, v{ACC+2*r}")
                A(f"v_dot2_f32_bf16 v{ACC+2*r+1}, v{V+4*j+r}, v{PH+j}, v{ACC+2*r+1}")
    def init_state(M, LS, ACC):
        for e in range(8): A(f"v_mov_b32 v{ACC+e}, 0")
        A(f"v_mov_b32 v{M}, 0xf149f2ca")
        A(f"v_mov_b32 v{LS}, 0")
    def allred(op, dst, src, t1, t2):
        A(f"v_mov_b32 v{t1}, v{src}")
        A(f"v_mov_b32 v{t2}, v{src}")
        A(f"v_permlane32_swap_b32 v{t1}, v{t2}")
        A(f"{op} v{t1}, v{t1}, v{t2}")
        A(f"v_mov_b32 v{t2}, v{t1}")
        A(f"v_permlane16_swap_b32 v{t1}, v{t2}")
        A(f"{op} v{dst}, v{t1}, v{t2}")
    def finalize(M, LS, ACC, T, O):
        allred("v_max_f32", T, M, T + 1, T + 2)
        A(f"v_sub_f32 v{T+1}, v{M}, v{T}")
        A(f"v_mul_f32 v{T+1}, s7, v{T+1}")
        A(f"v_exp_f32 v{T+1}, v{T+1}")
        for e in range(8): A(f"v_mul_f32 v{ACC+e}, v{ACC+e}, v{T+1}")
        A(f"v_mul_f32 v{LS}, v{LS}, v{T+1}")
        for e in range(4): A(f"v_permlane32_swap_b32 v{ACC+e}, v{ACC+e+4}")
        for e in range(4): A(f"v_add_f32 v{ACC+e}, v{ACC+e}, v{ACC+e+4}")
        allred("v_add_f32", T + 3, LS, T + 1, T + 2)
        for e in range(2): A(f"v_permlane16_swap_b32 v{ACC+e}, v{ACC+e+2}")
        for e in range(2): A(f"v_add_f32 v{ACC+e}, v{ACC+e}, v{ACC+e+2}")
        A(f"v_rcp_f32 v{T+1}, v{T+3}")
        A(f"v_log_f32 v{T+2}, v{T+3}")
        A(f"v_mov_b32 v{O+1}, s6")
        A(f"v_mov_b32 v{O+3}, s6")
        A(f"v_mul_f32 v{ACC}, v{ACC}, v{T+1}")
        A(f"v_mul_f32 v{ACC+1}, v{ACC+1}, v{T+1}")
        A(f"v_fma_f32 v{O+2}, v{T}, s7, v{T+2}")
        A(f"v_cvt_pk_bf16_f32 v{O}, v{ACC}, v{ACC+1}")
    def tagcheck(regs, t1, t2, retry_label):
        def red(op3, op2, t):
            if len(regs) == 2:
                A(f"{op2} v{t}, v{regs[0]}, v{regs[1]}")
                return
            A(f"{op3} v{t}, v{regs[0]}, v{regs[1]}, v{regs[2]}")
            i = 3
            while i < len(regs):
                if i + 1 < len(regs):
                    A(f"{op3} v{t}, v{t}, v{regs[i]}, v{regs[i+1]}"); i += 2
                else:
                    A(f"{op2} v{t}, v{t}, v{regs[i]}"); i += 1
        red("v_min3_u32", "v_min_u32", t1)
        red("v_max3_u32", "v_max_u32", t2)
        A(f"v_cmp_ne_u32 vcc, s6, v{t1}")
        A(f"v_cmp_ne_u32 s[40:41], s6, v{t2}")
        A("s_or_b64 vcc, vcc, s[40:41]")
        A("s_cmp_lg_u64 vcc, 0")
        A(f"s_cbranch_scc1 {retry_label}")
    def poll(issue, regs, t1, t2, sleep, pre=None):
        top, retry, done = lab("poll"), lab("retry"), lab("done")
        A(f"s_mov_b32 s42, {spin}")
        A.label(top)
        issue()
        if pre is not None:
            pass
        A("s_waitcnt vmcnt(0)")
        tagcheck(regs, t1, t2, retry)
        A(f"s_branch {done}")
        A.label(retry)
        if sleep: A(f"s_sleep {sleep}")
        A("s_sub_u32 s42, s42, 1")
        A("s_cmp_lg_u32 s42, 0")
        A(f"s_cbranch_scc1 {top}")
        A.label(done)

    A.label(NAME)
    A("s_cmp_ge_u32 s2, 256")
    A("s_cbranch_scc1 L_end")
    stamp(0)
    A("s_load_dwordx16 s[64:79], s[0:1], 0")
    A("s_load_dwordx8 s[80:87], s[0:1], 64")
    A("s_load_dwordx2 s[88:89], s[0:1], 96")
    A("v_lshrrev_b32 v1, 6, v0")
    A("v_readfirstlane_b32 s3, v1")
    A("v_and_b32 v1, 63, v0")
    A("s_lshr_b32 s4, s2, 3")
    A("s_and_b32 s5, s2, 7")
    A(f"s_mov_b32 s7, {hex(CEXP)}")
    A("v_lshlrev_b32 v2, 4, v1")
    A("s_waitcnt lgkmcnt(0)")
    A("s_load_dword s6, s[88:89], 0")
    srdp(24, "ws", 0x40000000)
    A("s_cmp_ge_u32 s3, 4")
    A("s_cbranch_scc1 L_stream")

    A("s_lshr_b32 s33, s5, 2")
    A("s_bfe_u32 s34, s5, 0x10001")
    A("s_and_b32 s35, s5, 1")
    A("s_cmp_eq_u32 s33, 0")
    A(f"s_cselect_b32 s36, s{P['A_wq']}, s{P['B_wq']}")
    A(f"s_cselect_b32 s37, s{P['A_wq']+1}, s{P['B_wq']+1}")
    A(f"s_cselect_b32 s38, s{P['A_x']}, s{P['B_x']}")
    A(f"s_cselect_b32 s39, s{P['A_x']+1}, s{P['B_x']+1}")
    srd(12, 36, 37, 0x800000)
    srd(8, 38, 39, 8192)
    A("v_lshrrev_b32 v3, 3, v1")
    A("v_lshlrev_b32 v3, 13, v3")
    A("v_and_b32 v4, 7, v1")
    A("v_lshl_add_u32 v3, v4, 4, v3")
    A("s_lshl_b32 s43, s35, 9")
    A("s_lshl_b32 s44, s3, 7")
    A("s_add_u32 s43, s43, s44")
    A("s_lshl_b32 s43, s43, 13")
    A("s_lshl_b32 s44, s4, 8")
    A("s_add_u32 s43, s43, s44")
    A("s_lshl_b32 s44, s34, 7")
    A("s_add_u32 s43, s43, s44")
    A("s_lshl_b32 s44, s3, 14")
    if L_W: A(f"s_add_u32 s44, s44, {L_W}")
    for u in range(16):
        A("s_mov_b32 m0, s44")
        A("buffer_load_dwordx4 v3, s[12:15], s43 offen nt lds")
        if u < 15:
            A("s_add_u32 s43, s43, 0x10000")
            A("s_add_u32 s44, s44, 1024")
    XF = 64
    A("v_and_b32 v4, 15, v1")
    A("v_lshlrev_b32 v4, 11, v4")
    A("v_lshrrev_b32 v5, 4, v1")
    A("v_lshl_add_u32 v4, v5, 4, v4")
    A("s_lshl_b32 s43, s35, 10")
    for ks in range(16):
        A(f"buffer_load_dwordx4 v[{XF+4*ks}:{XF+4*ks+3}], v4, s[8:11], s43 offen offset:{ks*64}")
    srdp(16, "A_wo", 0x800000)
    srdp(20, "B_wo", 0x800000)
    srdp(28, "out", 16384)
    A("s_or_b32 s43, s5, s3")
    A("s_cmp_lg_u32 s43, 0")
    A("s_cbranch_scc1 L_noinit")
    A("v_lshlrev_b32 v6, 13, v1")
    A("v_mov_b32 v7, 0")
    A("s_lshl_b32 s43, s4, 8")
    A(f"s_add_u32 s43, s43, {hex(W_CNT)}")
    A("s_mov_b64 exec, 15")
    A("buffer_store_dword v7, v6, s[24:27], s43 offen sc1")
    A("s_mov_b64 exec, -1")
    A.label("L_noinit")
    A("v_lshrrev_b32 v5, 4, v1")
    A("v_lshlrev_b32 v5, 3, v5")
    A("v_bfe_u32 v6, v1, 2, 2")
    A("v_add_u32 v5, v5, v6")
    A("v_and_b32 v6, 3, v1")
    A("v_lshlrev_b32 v6, 3, v6")
    A("v_lshl_add_u32 v8, v5, 7, v6")
    A("v_lshl_add_u32 v9, v5, 6, v6")
    A("s_lshl_b32 s43, s3, 5")
    if L_W: A(f"s_add_u32 s43, s43, {L_W}")
    A("v_add_u32 v8, s43, v8")
    A("s_lshl_b32 s43, s3, 14")
    if L_W: A(f"s_add_u32 s43, s43, {L_W}")
    A("v_add_u32 v9, s43, v9")
    A("s_waitcnt lgkmcnt(0)")
    A("s_mul_i32 s6, s6, 0x9e3779b1")
    A("s_add_u32 s6, s6, 0x7f4a7c15")
    A("s_waitcnt vmcnt(0)")
    A("s_barrier")
    stamp(1)
    WF = 128
    for ks in range(16):
        A(f"ds_read_b64_tr_b16 v[{WF+4*ks}:{WF+4*ks+1}], v8 offset:{ks*4096}")
        A(f"ds_read_b64_tr_b16 v[{WF+4*ks+2}:{WF+4*ks+3}], v8 offset:{ks*4096+512}")
    for ks in range(16):
        A(f"s_waitcnt lgkmcnt({min(15, 2*(15-ks))})")
        d = 12 + 4 * (ks & 1)
        c = "0" if ks < 2 else f"v[{d}:{d+3}]"
        A(f"v_mfma_f32_16x16x32_bf16 v[{d}:{d+3}], v[{WF+4*ks}:{WF+4*ks+3}], v[{XF+4*ks}:{XF+4*ks+3}], {c}")
    A("v_and_b32 v4, 15, v1")
    A("v_lshlrev_b32 v4, 10, v4")
    A("v_lshrrev_b32 v5, 4, v1")
    A("v_lshl_add_u32 v4, v5, 5, v4")
    A("s_lshl_b32 s43, s33, 5")
    A("s_add_u32 s43, s43, s4")
    A("s_lshl_b32 s43, s43, 1")
    A("s_add_u32 s43, s43, s35")
    A("s_lshl_b32 s43, s43, 12")
    A("s_lshl_b32 s44, s34, 9")
    A("s_add_u32 s43, s43, s44")
    A("s_lshl_b32 s44, s3, 7")
    A("s_add_u32 s43, s43, s44")
    A(f"s_add_u32 s43, s43, {hex(W_QP)}")
    for r in (21, 23, 25, 27): A(f"v_mov_b32 v{r}, s6")
    for r in range(4): A(f"v_add_f32 v{20+2*r}, v{12+r}, v{16+r}")
    A("s_mov_b32 s44, 0x000f000f")
    A("s_mov_b32 s45, 0x000f000f")
    A("s_mov_b64 exec, s[44:45]")
    A("buffer_store_dwordx4 v[20:23], v4, s[24:27], s43 offen sc1")
    A("buffer_store_dwordx4 v[24:27], v4, s[24:27], s43 offen offset:16 sc1")
    A("s_mov_b64 exec, -1")
    stamp(2)
    A("s_lshl_b32 s43, s4, 13")
    A("s_lshl_b32 s44, s3, 10")
    A("s_add_u32 s43, s43, s44")
    A(f"s_add_u32 s43, s43, {hex(W_QP)}")
    A("s_add_u32 s44, s43, 4096")
    def iss():
        A("buffer_load_dwordx4 v[28:31], v2, s[24:27], s43 offen sc1")
        A("buffer_load_dwordx4 v[32:35], v2, s[24:27], s44 offen sc1")
    poll(iss, [29, 31, 33, 35], 36, 37, 1)
    A("v_add_f32 v28, v28, v32")
    A("v_add_f32 v30, v30, v34")
    A("v_cvt_pk_bf16_f32 v28, v28, v30")
    A("s_lshl_b32 s43, s3, 8")
    A(f"s_add_u32 s43, s43, {L_QA}")
    A("v_lshl_add_u32 v10, v1, 2, s43")
    A("ds_write_b32 v10, v28")
    A("s_waitcnt lgkmcnt(0)")
    A("s_barrier")
    stamp(3)
    A("v_lshrrev_b32 v3, 2, v1")
    A("v_lshlrev_b32 v3, 11, v3")
    A("v_and_b32 v4, 3, v1")
    A("v_lshl_add_u32 v3, v4, 4, v3")
    A("s_lshl_b32 s43, s4, 18")
    A("s_lshl_b32 s44, s5, 8")
    A("s_add_u32 s43, s43, s44")
    A("s_lshl_b32 s44, s3, 6")
    A("s_add_u32 s43, s43, s44")
    A("s_lshl_b32 s44, s3, 14")
    if L_W: A(f"s_add_u32 s44, s44, {L_W}")
    A("s_lshr_b32 s46, s2, 6")
    A("s_bfe_u32 s47, s2, 0x20004")
    A("s_lshl_b32 s48, s47, 3")
    A("s_lshl_b32 s49, s3, 1")
    A("s_add_u32 s48, s48, s49")
    A("s_add_u32 s49, s48, 32")
    A("s_lshl_b32 s49, s49, 13")
    A("s_lshl_b32 s50, s46, 10")
    A("s_add_u32 s49, s49, s50")
    A(f"s_add_u32 s49, s49, {hex(W_QP)}")
    A("s_add_u32 s50, s49, 4096")
    A("s_add_u32 s51, s49, 8192")
    A("s_add_u32 s52, s49, 12288")
    def iss():
        A("buffer_load_dwordx4 v[28:31], v2, s[24:27], s49 offen sc1")
        A("buffer_load_dwordx4 v[32:35], v2, s[24:27], s50 offen sc1")
        A("buffer_load_dwordx4 v[36:39], v2, s[24:27], s51 offen sc1")
        A("buffer_load_dwordx4 v[40:43], v2, s[24:27], s52 offen sc1")
    poll(iss, [29, 31, 33, 35, 37, 39, 41, 43], 44, 45, 1)
    for T_ in range(2):
        for u in range(8):
            A("s_mov_b32 m0, s44")
            A(f"buffer_load_dwordx4 v3, s[{16+4*T_}:{19+4*T_}], s43 offen nt lds")
            A("s_add_u32 s44, s44, 1024")
            if u < 7: A("s_add_u32 s43, s43, 0x8000")
        if T_ == 0: A(f"s_sub_u32 s43, s43, {7*0x8000}")
    A("v_add_f32 v28, v28, v32")
    A("v_add_f32 v30, v30, v34")
    A("v_add_f32 v36, v36, v40")
    A("v_add_f32 v38, v38, v42")
    A("v_cvt_pk_bf16_f32 v28, v28, v30")
    A("v_cvt_pk_bf16_f32 v36, v36, v38")
    A("s_lshl_b32 s43, s3, 9")
    A(f"s_add_u32 s43, s43, {L_QB}")
    A("v_lshl_add_u32 v10, v1, 2, s43")
    A("ds_write_b32 v10, v28")
    A("ds_write_b32 v10, v36 offset:256")
    A("v_and_b32 v11, 0xf0, v2")
    A("v_add_u32 v11, s43, v11")
    A("s_waitcnt lgkmcnt(0)")
    QB0, QB1 = 12, 16
    A(f"ds_read_b128 v[{QB0}:{QB0+3}], v11")
    A(f"ds_read_b128 v[{QB1}:{QB1+3}], v11 offset:256")
    ST = [dict(M=20, LS=21, ACC=24), dict(M=22, LS=23, ACC=32)]
    for st in ST: init_state(st["M"], st["LS"], st["ACC"])
    S_, AL_, NM_, PL_, PH_ = 40, 44, 45, 48, 52
    KB, VB = 64, 96
    A(f"v_add_u32 v10, {L_KV}, v2")
    def bread(t):
        for u in range(4):
            A(f"ds_read_b128 v[{KB+16*(t&1)+4*u}:{KB+16*(t&1)+4*u+3}], v10 offset:{t*4096+u*1024}")
        for u in range(4):
            A(f"ds_read_b128 v[{VB+16*(t&1)+4*u}:{VB+16*(t&1)+4*u+3}], v10 offset:{32768+t*4096+u*1024}")
    bread(0)
    for t in range(8):
        if t < 7:
            bread(t + 1)
            A("s_waitcnt lgkmcnt(8)")
        else:
            A("s_waitcnt lgkmcnt(0)")
        for hh, st in enumerate(ST):
            scores(KB + 16 * (t & 1), (QB0, QB1)[hh], S_, 4)
            softmax(S_, 4, st["M"], st["LS"], st["ACC"], AL_, NM_, PL_, PH_)
            pv(VB + 16 * (t & 1), 4, st["ACC"], PL_, PH_)
    A("v_and_b32 v4, 15, v1")
    A("v_lshlrev_b32 v4, 6, v4")
    A("v_lshrrev_b32 v5, 4, v1")
    A("v_lshl_add_u32 v56, v5, 4, v4")
    A("s_lshl_b32 s43, s46, 5")
    A("s_add_u32 s43, s43, s48")
    A("s_lshl_b32 s43, s43, 4")
    A("s_and_b32 s44, s2, 15")
    A("s_add_u32 s43, s43, s44")
    A("s_lshl_b32 s43, s43, 10")
    A(f"s_add_u32 s43, s43, {hex(W_PB)}")
    A("s_add_u32 s44, s43, 0x4000")
    for hh, st in enumerate(ST):
        finalize(st["M"], st["LS"], st["ACC"], 40, 48 + 4 * hh)
        A(f"buffer_store_dwordx4 v[{48+4*hh}:{51+4*hh}], v56, s[24:27], s{43+hh} offen sc1")
    stamp(4)
    A("s_waitcnt vmcnt(0)")
    FR = [128, 160]
    for T_ in range(2):
        for ct in range(2):
            for ks in range(4):
                r = FR[T_] + (ct * 4 + ks) * 4
                off = T_ * 8192 + ks * 2048 + ct * 32
                A(f"ds_read_b64_tr_b16 v[{r}:{r+1}], v9 offset:{off}")
                A(f"ds_read_b64_tr_b16 v[{r+2}:{r+3}], v9 offset:{off+256}")
    def combine(G, n, lds_base):
        T1, T2, T3, T4, T5 = 56, 57, 58, 59, 60
        regs = [f"v{G+4*i+2}" for i in range(n)]
        A(f"v_max3_f32 v{T1}, {regs[0]}, {regs[1]}, {regs[2]}")
        i = 3
        while i < n:
            if i + 1 < n:
                A(f"v_max3_f32 v{T1}, v{T1}, {regs[i]}, {regs[i+1]}"); i += 2
            else:
                A(f"v_max_f32 v{T1}, v{T1}, {regs[i]}"); i += 1
        for i in range(n): A(f"v_sub_f32 v{G+4*i+2}, v{G+4*i+2}, v{T1}")
        for i in range(n): A(f"v_exp_f32 v{G+4*i+2}, v{G+4*i+2}")
        for i in range(n):
            A(f"v_lshlrev_b32 v{G+4*i+1}, 16, v{G+4*i}")
            A(f"v_and_b32 v{G+4*i+3}, 0xffff0000, v{G+4*i}")
        A(f"v_mul_f32 v{T2}, v{G+2}, v{G+1}")
        A(f"v_mul_f32 v{T3}, v{G+2}, v{G+3}")
        A(f"v_mov_b32 v{T4}, v{G+2}")
        for i in range(1, n):
            A(f"v_fmac_f32 v{T2}, v{G+4*i+2}, v{G+4*i+1}")
            A(f"v_fmac_f32 v{T3}, v{G+4*i+2}, v{G+4*i+3}")
            A(f"v_add_f32 v{T4}, v{T4}, v{G+4*i+2}")
        A(f"v_rcp_f32 v{T4}, v{T4}")
        A("s_lshl_b32 s43, s3, 8")
        A(f"s_add_u32 s43, s43, {lds_base}")
        A(f"v_lshl_add_u32 v{T5}, v1, 2, s43")
        A(f"v_mul_f32 v{T2}, v{T2}, v{T4}")
        A(f"v_mul_f32 v{T3}, v{T3}, v{T4}")
        A(f"v_cvt_pk_bf16_f32 v{T2}, v{T2}, v{T3}")
        A(f"ds_write_b32 v{T5}, v{T2}")
    G = 64
    A("s_lshl_b32 s45, s3, 5")
    A("s_add_u32 s45, s45, s4")
    A("s_lshl_b32 s45, s45, 14")
    A(f"s_add_u32 s45, s45, {hex(W_PB)}")
    A("v_add_u32 v3, 0x1000, v2")
    A("v_add_u32 v4, 0x2000, v2")
    A("v_add_u32 v5, 0x3000, v2")
    def iss():
        for i in range(16):
            A(f"buffer_load_dwordx4 v[{G+4*i}:{G+4*i+3}], v{2+i//4}, s[24:27], s45 offen offset:{(i%4)*1024} sc1")
    poll(iss, [G + 4 * i + k for i in range(16) for k in (1, 3)], 56, 57, hsleep)
    combine(G, 16, L_OB)
    stamp(5)
    A("v_and_b32 v6, 3, v1")
    A("v_lshlrev_b32 v6, 8, v6")
    A("v_lshrrev_b32 v7, 4, v1")
    A("v_lshl_add_u32 v6, v7, 4, v6")
    A(f"v_add_u32 v6, {L_OA}, v6")
    A("v_and_b32 v8, 15, v1")
    A("v_lshlrev_b32 v8, 15, v8")
    A("v_lshl_add_u32 v8, v7, 5, v8")
    A("s_lshl_b32 s52, s5, 5")
    A("s_lshl_b32 s53, s3, 1")
    A("s_add_u32 s52, s52, s53")
    A("s_lshl_b32 s52, s52, 12")
    A("s_lshl_b32 s53, s4, 7")
    A("s_add_u32 s52, s52, s53")
    A(f"s_add_u32 s52, s52, {hex(W_Y)}")
    A("s_add_u32 s53, s52, 4096")
    A("s_add_u32 s54, s52, 0x100000")
    A("s_add_u32 s55, s53, 0x100000")
    A("s_lshl_b32 s45, s4, 2")
    A("s_add_u32 s45, s45, s3")
    A("s_lshl_b32 s45, s45, 13")
    A(f"s_add_u32 s45, s45, {hex(W_PA)}")
    for r in (21, 23, 25, 27, 29, 31, 33, 35): A(f"v_mov_b32 v{r}, s6")
    A("s_mov_b32 s56, 0x000f000f")
    A("s_mov_b32 s57, 0x000f000f")
    A("s_waitcnt lgkmcnt(0)")
    A("s_barrier")
    def gemv(T_):
        OFR = 40
        for ks in range(4):
            A(f"ds_read_b128 v[{OFR+4*ks}:{OFR+4*ks+3}], v6 offset:{T_*1024+ks*64}")
        for ks in range(4):
            A(f"s_waitcnt lgkmcnt({3-ks})")
            for ct in range(2):
                d = 12 + 4 * ct
                r = FR[T_] + (ct * 4 + ks) * 4
                c = "0" if ks == 0 else f"v[{d}:{d+3}]"
                A(f"v_mfma_f32_16x16x32_bf16 v[{d}:{d+3}], v[{r}:{r+3}], v[{OFR+4*ks}:{OFR+4*ks+3}], {c}")
        for ct in range(2):
            for r in range(4): A(f"v_mov_b32 v{20+8*ct+2*r}, v{12+4*ct+r}")
        A("s_mov_b64 exec, s[56:57]")
        for ct in range(2):
            A(f"buffer_store_dwordx4 v[{20+8*ct}:{23+8*ct}], v8, s[24:27], s{52+2*T_+ct} offen sc1")
            A(f"buffer_store_dwordx4 v[{24+8*ct}:{27+8*ct}], v8, s[24:27], s{52+2*T_+ct} offen offset:16 sc1")
        A("s_mov_b64 exec, -1")
    gemv(1)
    def iss():
        for i in range(8):
            A(f"buffer_load_dwordx4 v[{G+4*i}:{G+4*i+3}], v{2+i//4}, s[24:27], s45 offen offset:{(i%4)*1024} sc1")
    poll(iss, [G + 4 * i + k for i in range(8) for k in (1, 3)], 56, 57, 0)
    combine(G, 8, L_OA)
    A("s_waitcnt lgkmcnt(0)")
    A("s_barrier")
    gemv(0)
    A("s_cmp_ge_u32 s3, 2")
    A("s_cbranch_scc1 L_hend")
    A("s_lshl_b32 s45, s3, 3")
    A("s_add_u32 s45, s45, s5")
    A("s_lshl_b32 s45, s45, 5")
    A("s_add_u32 s45, s45, s4")
    A("s_lshl_b32 s45, s45, 12")
    A(f"s_add_u32 s45, s45, {hex(W_Y)}")
    def iss():
        for i in range(4):
            A(f"buffer_load_dwordx4 v[{G+4*i}:{G+4*i+3}], v2, s[24:27], s45 offen offset:{i*1024} sc1")
    poll(iss, [G + 4 * i + k for i in range(4) for k in (1, 3)], 56, 57, 0)
    for k in (0, 2):
        A(f"v_add_f32 v{G+k}, v{G+k}, v{G+4+k}")
        A(f"v_add_f32 v{G+8+k}, v{G+8+k}, v{G+12+k}")
    for k in (0, 2):
        A(f"v_add_f32 v{G+k}, v{G+k}, v{G+8+k}")
    for k in (0, 2):
        A(f"v_add_f32_dpp v{G+k}, v{G+k}, v{G+k} row_ror:8 row_mask:0xf bank_mask:0xf")
    allred("v_add_f32", G + 4, G, G + 8, G + 9)
    allred("v_add_f32", G + 5, G + 2, G + 10, G + 11)
    A(f"v_cvt_pk_bf16_f32 v{G+4}, v{G+4}, v{G+5}")
    A("s_lshr_b32 s43, s4, 3")
    A("s_lshl_b32 s43, s43, 12")
    A("s_lshl_b32 s44, s3, 11")
    A("s_add_u32 s43, s43, s44")
    A("s_lshl_b32 s44, s5, 8")
    A("s_add_u32 s43, s43, s44")
    A("s_and_b32 s44, s4, 7")
    A("s_lshl_b32 s44, s44, 5")
    A("s_add_u32 s43, s43, s44")
    A("v_lshlrev_b32 v3, 2, v1")
    A("s_mov_b64 exec, 0xff")
    A(f"buffer_store_dword v{G+4}, v3, s[28:31], s43 offen")
    A("s_mov_b64 exec, -1")
    A("s_cmp_lg_u32 s2, 0")
    A("s_cbranch_scc1 L_hend")
    A("s_barrier")
    A("s_cmp_lg_u32 s3, 0")
    A("s_cbranch_scc1 L_hend")
    A("v_mov_b32 v3, 0")
    A("v_mov_b32 v4, s6")
    A("s_mov_b64 exec, 1")
    A("buffer_store_dword v4, v3, s[24:27], 0 offen")
    A("s_mov_b64 exec, -1")
    A.label("L_hend")
    if stamps:
        A(f"s_memrealtime s[{90+2*(stamps-1)}:{91+2*(stamps-1)}]")
        stamp_store(stamps, 200)
    A("s_endpgm")

    A.label("L_stream")
    srdp(8, "A_k", 0x10000000)
    srdp(12, "A_v", 0x10000000)
    srdp(16, "B_k", 0x2000000)
    srdp(20, "B_v", 0x2000000)
    A("s_sub_u32 s33, s3, 4")
    A("s_lshr_b32 s34, s2, 4")
    A("s_lshl_b32 s34, s34, 21")
    A("s_and_b32 s35, s2, 15")
    A("s_lshl_b32 s35, s35, 15")
    A("s_add_u32 s34, s34, s35")
    A("s_lshl_b32 s35, s33, 13")
    A("s_add_u32 s34, s34, s35")
    A(f"s_add_u32 s34, s34, {6144*256}")
    A(f"s_add_u32 s35, s35, {L_KV}")
    for which in range(2):
        for half in range(2):
            A(f"s_add_u32 s36, s35, {which*32768+half*4096}")
            A(f"s_add_u32 s37, s34, {half*4096}")
            A("s_mov_b32 m0, s36")
            for u in range(4):
                A(f"buffer_load_dwordx4 v2, s[{16+4*which}:{19+4*which}], s37 offen offset:{u*1024} nt lds")
    A("s_lshl_b32 s38, s33, 5")
    A("s_add_u32 s38, s38, s4")
    A("s_lshl_b32 s39, s38, 8")
    A(f"s_add_u32 s39, s39, {hex(W_CNT)}")
    A(f"s_add_u32 s52, s{P['ws']}, s39")
    A(f"s_addc_u32 s53, s{P['ws']+1}, 0")
    A("s_lshl_b32 s38, s38, 21")
    A("s_mov_b32 s37, s5")
    A(f"s_mul_i32 s31, s37, {chunk_bytes}")
    A("s_add_u32 s31, s31, s38")
    A("v_add_u32 v3, 0x1000, v2")
    Q, ACC, M, LS, AL, NM = 8, 12, 20, 21, 22, 23
    S = 24; PL = S + tl; PH = PL + tl
    R0 = (PH + tl + 3) // 4 * 4
    def kreg(slot): return R0 + slot * (2 * tl * 4)
    def vreg(slot): return R0 + slot * (2 * tl * 4) + tl * 4
    def loads(slot, which):
        sd = "s[8:11]" if which == "k" else "s[12:15]"
        for j in range(tl):
            r = (kreg(slot) if which == "k" else vreg(slot)) + 4 * j
            A(f"buffer_load_dwordx4 v[{r}:{r+3}], v{2 + j // 4}, {sd}, s31 offen offset:{(j % 4) * 1024} nt")
    for t in range(ring):
        loads(t, "k"); loads(t, "v")
        A(f"s_add_u32 s31, s31, {tile_keys*256}")
    init_state(M, LS, ACC)
    A("s_waitcnt lgkmcnt(0)")
    A("s_mul_i32 s6, s6, 0x9e3779b1")
    A("s_add_u32 s6, s6, 0x7f4a7c15")
    A("s_lshl_b32 s43, s33, 8")
    A(f"s_add_u32 s43, s43, {L_QA}")
    A("v_and_b32 v4, 0xf0, v2")
    A("v_add_u32 v4, s43, v4")
    A("s_barrier")
    A(f"s_waitcnt vmcnt({2*tl*ring})")
    stamp(1)
    A("s_barrier")
    stamp(2)
    A(f"ds_read_b128 v[{Q}:{Q+3}], v4")
    A("s_waitcnt lgkmcnt(0)")
    W = 2 * tl * ring - tl
    def rnd():
        for sl in range(ring):
            A(f"s_waitcnt vmcnt({W})")
            scores(kreg(sl), Q, S, tl)
            loads(sl, "k")
            softmax(S, tl, M, LS, ACC, AL, NM, PL, PH)
            A(f"s_waitcnt vmcnt({W})")
            pv(vreg(sl), tl, ACC, PL, PH)
            loads(sl, "v")
            A(f"s_add_u32 s31, s31, {tile_keys*256}")
    def claim():
        A("s_mov_b32 s50, 1")
        A("s_atomic_add s50, s[52:53], 0 glc")
    A(f"s_mov_b32 s51, {ns-1}")
    A.label("L_sloop")
    A(f"s_add_u32 s37, s37, {NWP}")
    A(f"s_mul_i32 s31, s37, {chunk_bytes}")
    A("s_add_u32 s31, s31, s38")
    A("s_cmp_lg_u32 s51, 1")
    A("s_cbranch_scc1 L_body")
    A.label("L_claim")
    claim()
    A.label("L_body")
    rnd()
    A("s_sub_u32 s51, s51, 1")
    A("s_cmp_gt_i32 s51, 0")
    A("s_cbranch_scc1 L_sloop")
    A("s_waitcnt lgkmcnt(0)")
    A(f"s_add_u32 s35, s50, {NWP*ns}")
    A(f"s_mul_i32 s31, s35, {chunk_bytes}")
    A("s_add_u32 s31, s31, s38")
    A(f"s_cmp_lt_u32 s35, {NCH}")
    A("s_cbranch_scc1 L_claim")
    stamp(3)
    for sl in range(ring):
        A(f"s_waitcnt vmcnt({2*tl*(ring-sl)-tl})")
        scores(kreg(sl), Q, S, tl)
        softmax(S, tl, M, LS, ACC, AL, NM, PL, PH)
        A(f"s_waitcnt vmcnt({2*tl*(ring-sl)-2*tl})")
        pv(vreg(sl), tl, ACC, PL, PH)
    A("v_and_b32 v4, 15, v1")
    A("v_lshlrev_b32 v4, 6, v4")
    A("v_lshrrev_b32 v5, 4, v1")
    A("v_lshl_add_u32 v4, v5, 4, v4")
    A("s_lshl_b32 s43, s4, 2")
    A("s_add_u32 s43, s43, s33")
    A("s_lshl_b32 s43, s43, 3")
    A("s_add_u32 s43, s43, s5")
    A("s_lshl_b32 s43, s43, 10")
    A(f"s_add_u32 s43, s43, {hex(W_PA)}")
    finalize(M, LS, ACC, 24, 28)
    A("buffer_store_dwordx4 v[28:31], v4, s[24:27], s43 offen sc1")
    if stamps:
        for i in range(4, stamps): A(f"s_memrealtime s[{90+2*i}:{91+2*i}]")
        stamp_store(stamps, 200)
    A.label("L_end")
    A("s_endpgm")

    body = A.render()
    nv = 224 if stamps else 192
    txt = HEADER + f"; @launch grid=(256,1,1) block=(512,1,1) lds={L_TOT}\n"
    txt += '.amdgcn_target "amdgcn-amd-amdhsa--gfx950"\n.text\n'
    txt += f".globl {NAME}\n.p2align 8\n.type {NAME},@function\n"
    txt += body
    txt += '.section .rodata,"a"\n.p2align 6\n'
    txt += f".amdhsa_kernel {NAME}\n"
    txt += f"  .amdhsa_next_free_vgpr {nv}\n  .amdhsa_next_free_sgpr 102\n  .amdhsa_accum_offset {nv}\n"
    txt += "  .amdhsa_group_segment_fixed_size 0\n  .amdhsa_kernarg_size 104\n  .amdhsa_user_sgpr_count 2\n"
    txt += "  .amdhsa_user_sgpr_kernarg_segment_ptr 1\n  .amdhsa_system_sgpr_workgroup_id_x 1\n.end_amdhsa_kernel\n"
    return txt

if __name__ == "__main__":
    import argparse
    ap = argparse.ArgumentParser()
    ap.add_argument("out")
    ap.add_argument("--kw", default="")
    a = ap.parse_args()
    kw = eval("dict(" + a.kw + ")")
    open(a.out, "w").write(gen(**kw))
```

```python
import sys, struct
sys.path.insert(0, "dev")
from asmlib import Asm
NAME = "concat_heads__mha_block_cached__sliding_block_cached__decode_kernel"

HEADER = """; Kernarg layout for this problem (104 bytes, ptrs only, base s[0:1]):
"""

L_W = 0
L_KV = 65536
L_QA = 131072
L_QB = L_QA + 1024
L_OA = L_QB + 2048
L_OB = L_OA + 1024
L_TOT = L_OB + 1024
W_CNT = 0x1000
W_QP = 0x10000
W_PA = 0x100000
W_PB = 0x200000
W_Y = 0x400000
W_STAMP = 0x20000000

CEXP = struct.unpack("<I", struct.pack("<f", 1.4426950408889634 / (128 ** 0.5)))[0]

def gen(tl=4, ring=2, ns=24, stamps=0, spin=200000, hsleep=8, hst=("h1","h2","h3","h4"), sst=("s1","s2","s3","s4"), bar0=1):
    A = Asm()
    tile_keys = tl * 4
    chunk_keys = tile_keys * ring
    chunk_bytes = chunk_keys * 256
    NCH = 8192 // chunk_keys
    NWP = 8
    assert ns >= 2 and ns * NWP <= NCH
    uid = [0]
    def lab(p):
        uid[0] += 1
        return f"L_{p}_{uid[0]}"

    P = dict(A_x=64, A_k=66, A_v=68, A_wq=70, A_wo=72, B_x=74, B_k=76, B_v=78, B_wq=80, B_wo=82, out=84, dbg=86, ws=88)
    def srd(d, lo, hi, n):
        A(f"s_mov_b32 s{d}, s{lo}")
        A(f"s_and_b32 s{d+1}, s{hi}, 0xffff")
        A(f"s_mov_b32 s{d+2}, {hex(n)}")
        A(f"s_mov_b32 s{d+3}, 0x20000")
    def srdp(d, name, n): srd(d, P[name], P[name] + 1, n)

    def stamp(i):
        if not stamps: return
        if isinstance(i, str):
            lst = hst if i[0] == "h" else sst
            if i not in lst: return
            i = 1 + list(lst).index(i)
        A(f"s_memrealtime s[{90+2*i}:{91+2*i}]")

    def stamp_store(n, vt):
        if not stamps: return
        A("s_waitcnt lgkmcnt(0)")
        A("s_lshl_b32 s32, s2, 3")
        A("s_add_u32 s32, s32, s3")
        A(f"s_mul_i32 s32, s32, {stamps*8}")
        A(f"s_add_u32 s32, s32, {hex(W_STAMP)}")
        for i in range(stamps):
            k = min(i, n - 1)
            A(f"v_mov_b32 v{vt+2*i}, s{90+2*k}")
            A(f"v_mov_b32 v{vt+2*i+1}, s{91+2*k}")
        A(f"v_mov_b32 v{vt+2*stamps}, 0")
        A("s_mov_b64 exec, 1")
        for i in range(stamps):
            A(f"buffer_store_dwordx2 v[{vt+2*i}:{vt+2*i+1}], v{vt+2*stamps}, s[24:27], s32 offen offset:{8*i}")
        A("s_mov_b64 exec, -1")

    def scores(K, Q, S, n):
        for r in range(4):
            for j in range(n):
                c = "0" if r == 0 else f"v{S+j}"
                A(f"v_dot2_f32_bf16 v{S+j}, v{K+4*j+r}, v{Q+r}, {c}")
        for st in (8, 4, 2, 1):
            for j in range(n):
                A(f"v_add_f32_dpp v{S+j}, v{S+j}, v{S+j} row_ror:{st} row_mask:0xf bank_mask:0xf")
    def softmax(S, n, M, LS, ACC, AL, NM, PL, PH):
        regs = [f"v{S+j}" for j in range(n)] + [f"v{M}"]
        A(f"v_max3_f32 v{AL}, {regs[0]}, {regs[1]}, {regs[2]}")
        i = 3
        while i < len(regs):
            if i + 1 < len(regs):
                A(f"v_max3_f32 v{AL}, v{AL}, {regs[i]}, {regs[i+1]}"); i += 2
            else:
                A(f"v_max_f32 v{AL}, v{AL}, {regs[i]}"); i += 1
        A(f"v_sub_f32 v{NM}, v{M}, v{AL}")
        A(f"v_mov_b32 v{M}, v{AL}")
        A(f"v_mul_f32 v{AL}, s7, v{NM}")
        A(f"v_mul_f32 v{NM}, s7, v{M}")
        A(f"v_exp_f32 v{AL}, v{AL}")
        for j in range(n):
            A(f"v_fma_f32 v{S+j}, v{S+j}, s7, -v{NM}")
        for j in range(n):
            A(f"v_exp_f32 v{S+j}, v{S+j}")
        for e in range(8):
            A(f"v_mul_f32 v{ACC+e}, v{ACC+e}, v{AL}")
        A(f"v_fma_f32 v{LS}, v{LS}, v{AL}, v{S}")
        for j in range(1, n):
            A(f"v_add_f32 v{LS}, v{LS}, v{S+j}")
        for j in range(n):
            A(f"v_cvt_pk_bf16_f32 v{PL+j}, v{S+j}, 0")
            A(f"v_cvt_pk_bf16_f32 v{PH+j}, 0, v{S+j}")
    def pv(V, n, ACC, PL, PH):
        for j in range(n):
            for r in range(4):
                A(f"v_dot2_f32_bf16 v{ACC+2*r}, v{V+4*j+r}, v{PL+j}, v{ACC+2*r}")
                A(f"v_dot2_f32_bf16 v{ACC+2*r+1}, v{V+4*j+r}, v{PH+j}, v{ACC+2*r+1}")
    def init_state(M, LS, ACC):
        for e in range(8): A(f"v_mov_b32 v{ACC+e}, 0")
        A(f"v_mov_b32 v{M}, 0xf149f2ca")
        A(f"v_mov_b32 v{LS}, 0")
    def allred(op, dst, src, t1, t2):
        A(f"v_mov_b32 v{t1}, v{src}")
        A(f"v_mov_b32 v{t2}, v{src}")
        A(f"v_permlane32_swap_b32 v{t1}, v{t2}")
        A(f"{op} v{t1}, v{t1}, v{t2}")
        A(f"v_mov_b32 v{t2}, v{t1}")
        A(f"v_permlane16_swap_b32 v{t1}, v{t2}")
        A(f"{op} v{dst}, v{t1}, v{t2}")
    def finalize(M, LS, ACC, T, O):
        allred("v_max_f32", T, M, T + 1, T + 2)
        A(f"v_sub_f32 v{T+1}, v{M}, v{T}")
        A(f"v_mul_f32 v{T+1}, s7, v{T+1}")
        A(f"v_exp_f32 v{T+1}, v{T+1}")
        for e in range(8): A(f"v_mul_f32 v{ACC+e}, v{ACC+e}, v{T+1}")
        A(f"v_mul_f32 v{LS}, v{LS}, v{T+1}")
        for e in range(4): A(f"v_permlane32_swap_b32 v{ACC+e}, v{ACC+e+4}")
        for e in range(4): A(f"v_add_f32 v{ACC+e}, v{ACC+e}, v{ACC+e+4}")
        allred("v_add_f32", T + 3, LS, T + 1, T + 2)
        for e in range(2): A(f"v_permlane16_swap_b32 v{ACC+e}, v{ACC+e+2}")
        for e in range(2): A(f"v_add_f32 v{ACC+e}, v{ACC+e}, v{ACC+e+2}")
        A(f"v_rcp_f32 v{T+1}, v{T+3}")
        A(f"v_log_f32 v{T+2}, v{T+3}")
        A(f"v_mov_b32 v{O+1}, s6")
        A(f"v_mov_b32 v{O+3}, s6")
        A(f"v_mul_f32 v{ACC}, v{ACC}, v{T+1}")
        A(f"v_mul_f32 v{ACC+1}, v{ACC+1}, v{T+1}")
        A(f"v_fma_f32 v{O+2}, v{T}, s7, v{T+2}")
        A(f"v_cvt_pk_bf16_f32 v{O}, v{ACC}, v{ACC+1}")
    def tagcheck(regs, t1, t2, retry_label):
        def red(op3, op2, t):
            if len(regs) == 2:
                A(f"{op2} v{t}, v{regs[0]}, v{regs[1]}")
                return
            A(f"{op3} v{t}, v{regs[0]}, v{regs[1]}, v{regs[2]}")
            i = 3
            while i < len(regs):
                if i + 1 < len(regs):
                    A(f"{op3} v{t}, v{t}, v{regs[i]}, v{regs[i+1]}"); i += 2
                else:
                    A(f"{op2} v{t}, v{t}, v{regs[i]}"); i += 1
        red("v_min3_u32", "v_min_u32", t1)
        red("v_max3_u32", "v_max_u32", t2)
        A(f"v_cmp_ne_u32 vcc, s6, v{t1}")
        A(f"v_cmp_ne_u32 s[40:41], s6, v{t2}")
        A("s_or_b64 vcc, vcc, s[40:41]")
        A("s_cmp_lg_u64 vcc, 0")
        A(f"s_cbranch_scc1 {retry_label}")
    def poll(issue, regs, t1, t2, sleep, pre=None):
        top, retry, done = lab("poll"), lab("retry"), lab("done")
        A(f"s_mov_b32 s42, {spin}")
        A.label(top)
        issue()
        if pre is not None:
            pass
        A("s_waitcnt vmcnt(0)")
        tagcheck(regs, t1, t2, retry)
        A(f"s_branch {done}")
        A.label(retry)
        if sleep: A(f"s_sleep {sleep}")
        A("s_sub_u32 s42, s42, 1")
        A("s_cmp_lg_u32 s42, 0")
        A(f"s_cbranch_scc1 {top}")
        A.label(done)

    A.label(NAME)
    A("s_cmp_ge_u32 s2, 256")
    A("s_cbranch_scc1 L_end")
    for i in range(stamps): stamp(i)
    A("s_load_dwordx16 s[64:79], s[0:1], 0")
    A("s_load_dwordx8 s[80:87], s[0:1], 64")
    A("s_load_dwordx2 s[88:89], s[0:1], 96")
    A("v_lshrrev_b32 v1, 6, v0")
    A("v_readfirstlane_b32 s3, v1")
    A("v_and_b32 v1, 63, v0")
    A("s_lshr_b32 s4, s2, 3")
    A("s_and_b32 s5, s2, 7")
    A(f"s_mov_b32 s7, {hex(CEXP)}")
    A("v_lshlrev_b32 v2, 4, v1")
    A("s_waitcnt lgkmcnt(0)")
    A("s_load_dword s6, s[88:89], 0")
    srdp(24, "ws", 0x40000000)
    A("s_cmp_ge_u32 s3, 4")
    A("s_cbranch_scc1 L_stream")

    A("s_lshr_b32 s33, s5, 2")
    A("s_bfe_u32 s34, s5, 0x10001")
    A("s_and_b32 s35, s5, 1")
    A("s_cmp_eq_u32 s33, 0")
    A(f"s_cselect_b32 s36, s{P['A_wq']}, s{P['B_wq']}")
    A(f"s_cselect_b32 s37, s{P['A_wq']+1}, s{P['B_wq']+1}")
    A(f"s_cselect_b32 s38, s{P['A_x']}, s{P['B_x']}")
    A(f"s_cselect_b32 s39, s{P['A_x']+1}, s{P['B_x']+1}")
    srd(12, 36, 37, 0x800000)
    srd(8, 38, 39, 8192)
    A("v_lshrrev_b32 v3, 3, v1")
    A("v_lshlrev_b32 v3, 13, v3")
    A("v_and_b32 v4, 7, v1")
    A("v_lshl_add_u32 v3, v4, 4, v3")
    A("s_lshl_b32 s43, s35, 9")
    A("s_lshl_b32 s44, s3, 7")
    A("s_add_u32 s43, s43, s44")
    A("s_lshl_b32 s43, s43, 13")
    A("s_lshl_b32 s44, s4, 8")
    A("s_add_u32 s43, s43, s44")
    A("s_lshl_b32 s44, s34, 7")
    A("s_add_u32 s43, s43, s44")
    A("s_lshl_b32 s44, s3, 14")
    if L_W: A(f"s_add_u32 s44, s44, {L_W}")
    for u in range(16):
        A("s_mov_b32 m0, s44")
        A("buffer_load_dwordx4 v3, s[12:15], s43 offen nt lds")
        if u < 15:
            A("s_add_u32 s43, s43, 0x10000")
            A("s_add_u32 s44, s44, 1024")
    XF = 64
    A("v_and_b32 v4, 15, v1")
    A("v_lshlrev_b32 v4, 11, v4")
    A("v_lshrrev_b32 v5, 4, v1")
    A("v_lshl_add_u32 v4, v5, 4, v4")
    A("s_lshl_b32 s43, s35, 10")
    for ks in range(16):
        A(f"buffer_load_dwordx4 v[{XF+4*ks}:{XF+4*ks+3}], v4, s[8:11], s43 offen offset:{ks*64}")
    if bar0: A("s_barrier")
    srdp(16, "A_wo", 0x800000)
    srdp(20, "B_wo", 0x800000)
    srdp(28, "out", 16384)
    A("s_or_b32 s43, s5, s3")
    A("s_cmp_lg_u32 s43, 0")
    A("s_cbranch_scc1 L_noinit")
    A("v_lshlrev_b32 v6, 13, v1")
    A("v_mov_b32 v7, 0")
    A("s_lshl_b32 s43, s4, 8")
    A(f"s_add_u32 s43, s43, {hex(W_CNT)}")
    A("s_mov_b64 exec, 15")
    A("buffer_store_dword v7, v6, s[24:27], s43 offen sc1")
    A("s_mov_b64 exec, -1")
    A.label("L_noinit")
    A("v_lshrrev_b32 v5, 4, v1")
    A("v_lshlrev_b32 v5, 3, v5")
    A("v_bfe_u32 v6, v1, 2, 2")
    A("v_add_u32 v5, v5, v6")
    A("v_and_b32 v6, 3, v1")
    A("v_lshlrev_b32 v6, 3, v6")
    A("v_lshl_add_u32 v8, v5, 7, v6")
    A("v_lshl_add_u32 v9, v5, 6, v6")
    A("s_lshl_b32 s43, s3, 5")
    if L_W: A(f"s_add_u32 s43, s43, {L_W}")
    A("v_add_u32 v8, s43, v8")
    A("s_lshl_b32 s43, s3, 14")
    if L_W: A(f"s_add_u32 s43, s43, {L_W}")
    A("v_add_u32 v9, s43, v9")
    A("s_waitcnt lgkmcnt(0)")
    A("s_mul_i32 s6, s6, 0x9e3779b1")
    A("s_add_u32 s6, s6, 0x7f4a7c15")
    A("s_waitcnt vmcnt(0)")
    A("s_barrier")
    stamp("h1")
    WF = 128
    for ks in range(16):
        A(f"ds_read_b64_tr_b16 v[{WF+4*ks}:{WF+4*ks+1}], v8 offset:{ks*4096}")
        A(f"ds_read_b64_tr_b16 v[{WF+4*ks+2}:{WF+4*ks+3}], v8 offset:{ks*4096+512}")
    for ks in range(16):
        A(f"s_waitcnt lgkmcnt({min(15, 2*(15-ks))})")
        d = 12 + 4 * (ks & 1)
        c = "0" if ks < 2 else f"v[{d}:{d+3}]"
        A(f"v_mfma_f32_16x16x32_bf16 v[{d}:{d+3}], v[{WF+4*ks}:{WF+4*ks+3}], v[{XF+4*ks}:{XF+4*ks+3}], {c}")
    A("v_and_b32 v4, 15, v1")
    A("v_lshlrev_b32 v4, 10, v4")
    A("v_lshrrev_b32 v5, 4, v1")
    A("v_lshl_add_u32 v4, v5, 5, v4")
    A("s_lshl_b32 s43, s33, 5")
    A("s_add_u32 s43, s43, s4")
    A("s_lshl_b32 s43, s43, 1")
    A("s_add_u32 s43, s43, s35")
    A("s_lshl_b32 s43, s43, 12")
    A("s_lshl_b32 s44, s34, 9")
    A("s_add_u32 s43, s43, s44")
    A("s_lshl_b32 s44, s3, 7")
    A("s_add_u32 s43, s43, s44")
    A(f"s_add_u32 s43, s43, {hex(W_QP)}")
    for r in (21, 23, 25, 27): A(f"v_mov_b32 v{r}, s6")
    for r in range(4): A(f"v_add_f32 v{20+2*r}, v{12+r}, v{16+r}")
    A("s_mov_b32 s44, 0x000f000f")
    A("s_mov_b32 s45, 0x000f000f")
    A("s_mov_b64 exec, s[44:45]")
    A("buffer_store_dwordx4 v[20:23], v4, s[24:27], s43 offen sc1")
    A("buffer_store_dwordx4 v[24:27], v4, s[24:27], s43 offen offset:16 sc1")
    A("s_mov_b64 exec, -1")
    stamp("h2")
    A("s_lshl_b32 s43, s4, 13")
    A("s_lshl_b32 s44, s3, 10")
    A("s_add_u32 s43, s43, s44")
    A(f"s_add_u32 s43, s43, {hex(W_QP)}")
    A("s_add_u32 s44, s43, 4096")
    def iss():
        A("buffer_load_dwordx4 v[28:31], v2, s[24:27], s43 offen sc1")
        A("buffer_load_dwordx4 v[32:35], v2, s[24:27], s44 offen sc1")
    poll(iss, [29, 31, 33, 35], 36, 37, 1)
    A("v_add_f32 v28, v28, v32")
    A("v_add_f32 v30, v30, v34")
    A("v_cvt_pk_bf16_f32 v28, v28, v30")
    A("s_lshl_b32 s43, s3, 8")
    A(f"s_add_u32 s43, s43, {L_QA}")
    A("v_lshl_add_u32 v10, v1, 2, s43")
    A("ds_write_b32 v10, v28")
    A("s_waitcnt lgkmcnt(0)")
    A("s_barrier")
    stamp("h3")
    A("v_lshrrev_b32 v3, 2, v1")
    A("v_lshlrev_b32 v3, 11, v3")
    A("v_and_b32 v4, 3, v1")
    A("v_lshl_add_u32 v3, v4, 4, v3")
    A("s_lshl_b32 s43, s4, 18")
    A("s_lshl_b32 s44, s5, 8")
    A("s_add_u32 s43, s43, s44")
    A("s_lshl_b32 s44, s3, 6")
    A("s_add_u32 s43, s43, s44")
    A("s_lshl_b32 s44, s3, 14")
    if L_W: A(f"s_add_u32 s44, s44, {L_W}")
    A("s_lshr_b32 s46, s2, 6")
    A("s_bfe_u32 s47, s2, 0x20004")
    A("s_lshl_b32 s48, s47, 3")
    A("s_lshl_b32 s49, s3, 1")
    A("s_add_u32 s48, s48, s49")
    A("s_add_u32 s49, s48, 32")
    A("s_lshl_b32 s49, s49, 13")
    A("s_lshl_b32 s50, s46, 10")
    A("s_add_u32 s49, s49, s50")
    A(f"s_add_u32 s49, s49, {hex(W_QP)}")
    A("s_add_u32 s50, s49, 4096")
    A("s_add_u32 s51, s49, 8192")
    A("s_add_u32 s52, s49, 12288")
    def iss():
        A("buffer_load_dwordx4 v[28:31], v2, s[24:27], s49 offen sc1")
        A("buffer_load_dwordx4 v[32:35], v2, s[24:27], s50 offen sc1")
        A("buffer_load_dwordx4 v[36:39], v2, s[24:27], s51 offen sc1")
        A("buffer_load_dwordx4 v[40:43], v2, s[24:27], s52 offen sc1")
    poll(iss, [29, 31, 33, 35, 37, 39, 41, 43], 44, 45, 1)
    for T_ in range(2):
        for u in range(8):
            A("s_mov_b32 m0, s44")
            A(f"buffer_load_dwordx4 v3, s[{16+4*T_}:{19+4*T_}], s43 offen nt lds")
            A("s_add_u32 s44, s44, 1024")
            if u < 7: A("s_add_u32 s43, s43, 0x8000")
        if T_ == 0: A(f"s_sub_u32 s43, s43, {7*0x8000}")
    A("v_add_f32 v28, v28, v32")
    A("v_add_f32 v30, v30, v34")
    A("v_add_f32 v36, v36, v40")
    A("v_add_f32 v38, v38, v42")
    A("v_cvt_pk_bf16_f32 v28, v28, v30")
    A("v_cvt_pk_bf16_f32 v36, v36, v38")
    A("s_lshl_b32 s43, s3, 9")
    A(f"s_add_u32 s43, s43, {L_QB}")
    A("v_lshl_add_u32 v10, v1, 2, s43")
    A("ds_write_b32 v10, v28")
    A("ds_write_b32 v10, v36 offset:256")
    A("v_and_b32 v11, 0xf0, v2")
    A("v_add_u32 v11, s43, v11")
    A("s_waitcnt lgkmcnt(0)")
    QB0, QB1 = 12, 16
    A(f"ds_read_b128 v[{QB0}:{QB0+3}], v11")
    A(f"ds_read_b128 v[{QB1}:{QB1+3}], v11 offset:256")
    ST = [dict(M=20, LS=21, ACC=24), dict(M=22, LS=23, ACC=32)]
    for st in ST: init_state(st["M"], st["LS"], st["ACC"])
    S_, AL_, NM_, PL_, PH_ = 40, 44, 45, 48, 52
    KB, VB = 64, 96
    A(f"v_add_u32 v10, {L_KV}, v2")
    def bread(t):
        for u in range(4):
            A(f"ds_read_b128 v[{KB+16*(t&1)+4*u}:{KB+16*(t&1)+4*u+3}], v10 offset:{t*4096+u*1024}")
        for u in range(4):
            A(f"ds_read_b128 v[{VB+16*(t&1)+4*u}:{VB+16*(t&1)+4*u+3}], v10 offset:{32768+t*4096+u*1024}")
    bread(0)
    for t in range(8):
        if t < 7:
            bread(t + 1)
            A("s_waitcnt lgkmcnt(8)")
        else:
            A("s_waitcnt lgkmcnt(0)")
        for hh, st in enumerate(ST):
            scores(KB + 16 * (t & 1), (QB0, QB1)[hh], S_, 4)
            softmax(S_, 4, st["M"], st["LS"], st["ACC"], AL_, NM_, PL_, PH_)
            pv(VB + 16 * (t & 1), 4, st["ACC"], PL_, PH_)
    A("v_and_b32 v4, 15, v1")
    A("v_lshlrev_b32 v4, 6, v4")
    A("v_lshrrev_b32 v5, 4, v1")
    A("v_lshl_add_u32 v56, v5, 4, v4")
    A("s_lshl_b32 s43, s46, 5")
    A("s_add_u32 s43, s43, s48")
    A("s_lshl_b32 s43, s43, 4")
    A("s_and_b32 s44, s2, 15")
    A("s_add_u32 s43, s43, s44")
    A("s_lshl_b32 s43, s43, 10")
    A(f"s_add_u32 s43, s43, {hex(W_PB)}")
    A("s_add_u32 s44, s43, 0x4000")
    for hh, st in enumerate(ST):
        finalize(st["M"], st["LS"], st["ACC"], 40, 48 + 4 * hh)
        A(f"buffer_store_dwordx4 v[{48+4*hh}:{51+4*hh}], v56, s[24:27], s{43+hh} offen sc1")
    stamp("h4")
    A("s_waitcnt vmcnt(0)")
    FR = [128, 160]
    for T_ in range(2):
        for ct in range(2):
            for ks in range(4):
                r = FR[T_] + (ct * 4 + ks) * 4
                off = T_ * 8192 + ks * 2048 + ct * 32
                A(f"ds_read_b64_tr_b16 v[{r}:{r+1}], v9 offset:{off}")
                A(f"ds_read_b64_tr_b16 v[{r+2}:{r+3}], v9 offset:{off+256}")
    def combine(G, n, lds_base):
        T1, T2, T3, T4, T5 = 56, 57, 58, 59, 60
        regs = [f"v{G+4*i+2}" for i in range(n)]
        A(f"v_max3_f32 v{T1}, {regs[0]}, {regs[1]}, {regs[2]}")
        i = 3
        while i < n:
            if i + 1 < n:
                A(f"v_max3_f32 v{T1}, v{T1}, {regs[i]}, {regs[i+1]}"); i += 2
            else:
                A(f"v_max_f32 v{T1}, v{T1}, {regs[i]}"); i += 1
        for i in range(n): A(f"v_sub_f32 v{G+4*i+2}, v{G+4*i+2}, v{T1}")
        for i in range(n): A(f"v_exp_f32 v{G+4*i+2}, v{G+4*i+2}")
        for i in range(n):
            A(f"v_lshlrev_b32 v{G+4*i+1}, 16, v{G+4*i}")
            A(f"v_and_b32 v{G+4*i+3}, 0xffff0000, v{G+4*i}")
        A(f"v_mul_f32 v{T2}, v{G+2}, v{G+1}")
        A(f"v_mul_f32 v{T3}, v{G+2}, v{G+3}")
        A(f"v_mov_b32 v{T4}, v{G+2}")
        for i in range(1, n):
            A(f"v_fmac_f32 v{T2}, v{G+4*i+2}, v{G+4*i+1}")
            A(f"v_fmac_f32 v{T3}, v{G+4*i+2}, v{G+4*i+3}")
            A(f"v_add_f32 v{T4}, v{T4}, v{G+4*i+2}")
        A(f"v_rcp_f32 v{T4}, v{T4}")
        A("s_lshl_b32 s43, s3, 8")
        A(f"s_add_u32 s43, s43, {lds_base}")
        A(f"v_lshl_add_u32 v{T5}, v1, 2, s43")
        A(f"v_mul_f32 v{T2}, v{T2}, v{T4}")
        A(f"v_mul_f32 v{T3}, v{T3}, v{T4}")
        A(f"v_cvt_pk_bf16_f32 v{T2}, v{T2}, v{T3}")
        A(f"ds_write_b32 v{T5}, v{T2}")
    G = 64
    A("s_lshl_b32 s45, s3, 5")
    A("s_add_u32 s45, s45, s4")
    A("s_lshl_b32 s45, s45, 14")
    A(f"s_add_u32 s45, s45, {hex(W_PB)}")
    A("v_add_u32 v3, 0x1000, v2")
    A("v_add_u32 v4, 0x2000, v2")
    A("v_add_u32 v5, 0x3000, v2")
    def iss():
        for i in range(16):
            A(f"buffer_load_dwordx4 v[{G+4*i}:{G+4*i+3}], v{2+i//4}, s[24:27], s45 offen offset:{(i%4)*1024} sc1")
    poll(iss, [G + 4 * i + k for i in range(16) for k in (1, 3)], 56, 57, hsleep)
    combine(G, 16, L_OB)
    stamp("h5")
    A("v_and_b32 v6, 3, v1")
    A("v_lshlrev_b32 v6, 8, v6")
    A("v_lshrrev_b32 v7, 4, v1")
    A("v_lshl_add_u32 v6, v7, 4, v6")
    A(f"v_add_u32 v6, {L_OA}, v6")
    A("v_and_b32 v8, 15, v1")
    A("v_lshlrev_b32 v8, 15, v8")
    A("v_lshl_add_u32 v8, v7, 5, v8")
    A("s_lshl_b32 s52, s5, 5")
    A("s_lshl_b32 s53, s3, 1")
    A("s_add_u32 s52, s52, s53")
    A("s_lshl_b32 s52, s52, 12")
    A("s_lshl_b32 s53, s4, 7")
    A("s_add_u32 s52, s52, s53")
    A(f"s_add_u32 s52, s52, {hex(W_Y)}")
    A("s_add_u32 s53, s52, 4096")
    A("s_add_u32 s54, s52, 0x100000")
    A("s_add_u32 s55, s53, 0x100000")
    A("s_lshl_b32 s45, s4, 2")
    A("s_add_u32 s45, s45, s3")
    A("s_lshl_b32 s45, s45, 13")
    A(f"s_add_u32 s45, s45, {hex(W_PA)}")
    for r in (21, 23, 25, 27, 29, 31, 33, 35): A(f"v_mov_b32 v{r}, s6")
    A("s_mov_b32 s56, 0x000f000f")
    A("s_mov_b32 s57, 0x000f000f")
    A("s_waitcnt lgkmcnt(0)")
    A("s_barrier")
    stamp("h6")
    def gemv(T_):
        OFR = 40
        for ks in range(4):
            A(f"ds_read_b128 v[{OFR+4*ks}:{OFR+4*ks+3}], v6 offset:{T_*1024+ks*64}")
        for ks in range(4):
            A(f"s_waitcnt lgkmcnt({3-ks})")
            for ct in range(2):
                d = 12 + 4 * ct
                r = FR[T_] + (ct * 4 + ks) * 4
                c = "0" if ks == 0 else f"v[{d}:{d+3}]"
                A(f"v_mfma_f32_16x16x32_bf16 v[{d}:{d+3}], v[{r}:{r+3}], v[{OFR+4*ks}:{OFR+4*ks+3}], {c}")
        for ct in range(2):
            for r in range(4): A(f"v_mov_b32 v{20+8*ct+2*r}, v{12+4*ct+r}")
        A("s_mov_b64 exec, s[56:57]")
        for ct in range(2):
            A(f"buffer_store_dwordx4 v[{20+8*ct}:{23+8*ct}], v8, s[24:27], s{52+2*T_+ct} offen sc1")
            A(f"buffer_store_dwordx4 v[{24+8*ct}:{27+8*ct}], v8, s[24:27], s{52+2*T_+ct} offen offset:16 sc1")
        A("s_mov_b64 exec, -1")
    gemv(1)
    def iss():
        for i in range(8):
            A(f"buffer_load_dwordx4 v[{G+4*i}:{G+4*i+3}], v{2+i//4}, s[24:27], s45 offen offset:{(i%4)*1024} sc1")
    poll(iss, [G + 4 * i + k for i in range(8) for k in (1, 3)], 56, 57, 0)
    stamp("h7")
    combine(G, 8, L_OA)
    A("s_waitcnt lgkmcnt(0)")
    A("s_barrier")
    gemv(0)
    stamp("h8")
    A("s_cmp_ge_u32 s3, 2")
    A("s_cbranch_scc1 L_hend")
    A("s_lshl_b32 s45, s3, 3")
    A("s_add_u32 s45, s45, s5")
    A("s_lshl_b32 s45, s45, 5")
    A("s_add_u32 s45, s45, s4")
    A("s_lshl_b32 s45, s45, 12")
    A(f"s_add_u32 s45, s45, {hex(W_Y)}")
    def iss():
        for i in range(4):
            A(f"buffer_load_dwordx4 v[{G+4*i}:{G+4*i+3}], v2, s[24:27], s45 offen offset:{i*1024} sc1")
    poll(iss, [G + 4 * i + k for i in range(4) for k in (1, 3)], 56, 57, 0)
    stamp("h9")
    for k in (0, 2):
        A(f"v_add_f32 v{G+k}, v{G+k}, v{G+4+k}")
        A(f"v_add_f32 v{G+8+k}, v{G+8+k}, v{G+12+k}")
    for k in (0, 2):
        A(f"v_add_f32 v{G+k}, v{G+k}, v{G+8+k}")
    for k in (0, 2):
        A(f"v_add_f32_dpp v{G+k}, v{G+k}, v{G+k} row_ror:8 row_mask:0xf bank_mask:0xf")
    allred("v_add_f32", G + 4, G, G + 8, G + 9)
    allred("v_add_f32", G + 5, G + 2, G + 10, G + 11)
    A(f"v_cvt_pk_bf16_f32 v{G+4}, v{G+4}, v{G+5}")
    A("s_lshr_b32 s43, s4, 3")
    A("s_lshl_b32 s43, s43, 12")
    A("s_lshl_b32 s44, s3, 11")
    A("s_add_u32 s43, s43, s44")
    A("s_lshl_b32 s44, s5, 8")
    A("s_add_u32 s43, s43, s44")
    A("s_and_b32 s44, s4, 7")
    A("s_lshl_b32 s44, s44, 5")
    A("s_add_u32 s43, s43, s44")
    A("v_lshlrev_b32 v3, 2, v1")
    A("s_mov_b64 exec, 0xff")
    A(f"buffer_store_dword v{G+4}, v3, s[28:31], s43 offen")
    A("s_mov_b64 exec, -1")
    A("s_cmp_lg_u32 s2, 0")
    A("s_cbranch_scc1 L_hend")
    A("s_barrier")
    A("s_cmp_lg_u32 s3, 0")
    A("s_cbranch_scc1 L_hend")
    A("v_mov_b32 v3, 0")
    A("v_mov_b32 v4, s6")
    A("s_mov_b64 exec, 1")
    A("buffer_store_dword v4, v3, s[24:27], 0 offen")
    A("s_mov_b64 exec, -1")
    A.label("L_hend")
    if stamps:
        A(f"s_memrealtime s[{90+2*(stamps-1)}:{91+2*(stamps-1)}]")
        stamp_store(stamps, 200)
    A("s_endpgm")

    A.label("L_stream")
    srdp(8, "A_k", 0x10000000)
    srdp(12, "A_v", 0x10000000)
    srdp(16, "B_k", 0x2000000)
    srdp(20, "B_v", 0x2000000)
    A("s_sub_u32 s33, s3, 4")
    A("s_lshr_b32 s34, s2, 4")
    A("s_lshl_b32 s34, s34, 21")
    A("s_and_b32 s35, s2, 15")
    A("s_lshl_b32 s35, s35, 15")
    A("s_add_u32 s34, s34, s35")
    A("s_lshl_b32 s35, s33, 13")
    A("s_add_u32 s34, s34, s35")
    A(f"s_add_u32 s34, s34, {6144*256}")
    A(f"s_add_u32 s35, s35, {L_KV}")
    if bar0: A("s_barrier")
    for which in range(2):
        for half in range(2):
            A(f"s_add_u32 s36, s35, {which*32768+half*4096}")
            A(f"s_add_u32 s37, s34, {half*4096}")
            A("s_mov_b32 m0, s36")
            for u in range(4):
                A(f"buffer_load_dwordx4 v2, s[{16+4*which}:{19+4*which}], s37 offen offset:{u*1024} nt lds")
    A("s_lshl_b32 s38, s33, 5")
    A("s_add_u32 s38, s38, s4")
    A("s_lshl_b32 s39, s38, 8")
    A(f"s_add_u32 s39, s39, {hex(W_CNT)}")
    A(f"s_add_u32 s52, s{P['ws']}, s39")
    A(f"s_addc_u32 s53, s{P['ws']+1}, 0")
    A("s_lshl_b32 s38, s38, 21")
    A("s_mov_b32 s37, s5")
    A(f"s_mul_i32 s31, s37, {chunk_bytes}")
    A("s_add_u32 s31, s31, s38")
    A("v_add_u32 v3, 0x1000, v2")
    Q, ACC, M, LS, AL, NM = 8, 12, 20, 21, 22, 23
    S = 24; PL = S + tl; PH = PL + tl
    R0 = (PH + tl + 3) // 4 * 4
    def kreg(slot): return R0 + slot * (2 * tl * 4)
    def vreg(slot): return R0 + slot * (2 * tl * 4) + tl * 4
    def loads(slot, which):
        sd = "s[8:11]" if which == "k" else "s[12:15]"
        for j in range(tl):
            r = (kreg(slot) if which == "k" else vreg(slot)) + 4 * j
            A(f"buffer_load_dwordx4 v[{r}:{r+3}], v{2 + j // 4}, {sd}, s31 offen offset:{(j % 4) * 1024} nt")
    for t in range(ring):
        loads(t, "k"); loads(t, "v")
        A(f"s_add_u32 s31, s31, {tile_keys*256}")
    init_state(M, LS, ACC)
    A("s_waitcnt lgkmcnt(0)")
    A("s_mul_i32 s6, s6, 0x9e3779b1")
    A("s_add_u32 s6, s6, 0x7f4a7c15")
    A("s_lshl_b32 s43, s33, 8")
    A(f"s_add_u32 s43, s43, {L_QA}")
    A("v_and_b32 v4, 0xf0, v2")
    A("v_add_u32 v4, s43, v4")
    A("s_barrier")
    A(f"s_waitcnt vmcnt({2*tl*ring})")
    stamp("s1")
    A("s_barrier")
    stamp("s2")
    A(f"ds_read_b128 v[{Q}:{Q+3}], v4")
    A("s_waitcnt lgkmcnt(0)")
    W = 2 * tl * ring - tl
    def rnd():
        for sl in range(ring):
            A(f"s_waitcnt vmcnt({W})")
            scores(kreg(sl), Q, S, tl)
            loads(sl, "k")
            softmax(S, tl, M, LS, ACC, AL, NM, PL, PH)
            A(f"s_waitcnt vmcnt({W})")
            pv(vreg(sl), tl, ACC, PL, PH)
            loads(sl, "v")
            A(f"s_add_u32 s31, s31, {tile_keys*256}")
    def claim():
        A("s_mov_b32 s50, 1")
        A("s_atomic_add s50, s[52:53], 0 glc")
    A(f"s_mov_b32 s51, {ns-1}")
    A.label("L_sloop")
    A(f"s_add_u32 s37, s37, {NWP}")
    A(f"s_mul_i32 s31, s37, {chunk_bytes}")
    A("s_add_u32 s31, s31, s38")
    A("s_cmp_lg_u32 s51, 1")
    A("s_cbranch_scc1 L_body")
    A.label("L_claim")
    claim()
    A.label("L_body")
    rnd()
    A("s_sub_u32 s51, s51, 1")
    A("s_cmp_gt_i32 s51, 0")
    A("s_cbranch_scc1 L_sloop")
    A("s_waitcnt lgkmcnt(0)")
    A(f"s_add_u32 s35, s50, {NWP*ns}")
    A(f"s_mul_i32 s31, s35, {chunk_bytes}")
    A("s_add_u32 s31, s31, s38")
    A(f"s_cmp_lt_u32 s35, {NCH}")
    A("s_cbranch_scc1 L_claim")
    stamp("s3")
    for sl in range(ring):
        A(f"s_waitcnt vmcnt({2*tl*(ring-sl)-tl})")
        scores(kreg(sl), Q, S, tl)
        softmax(S, tl, M, LS, ACC, AL, NM, PL, PH)
        A(f"s_waitcnt vmcnt({2*tl*(ring-sl)-2*tl})")
        pv(vreg(sl), tl, ACC, PL, PH)
    A("v_and_b32 v4, 15, v1")
    A("v_lshlrev_b32 v4, 6, v4")
    A("v_lshrrev_b32 v5, 4, v1")
    A("v_lshl_add_u32 v4, v5, 4, v4")
    A("s_lshl_b32 s43, s4, 2")
    A("s_add_u32 s43, s43, s33")
    A("s_lshl_b32 s43, s43, 3")
    A("s_add_u32 s43, s43, s5")
    A("s_lshl_b32 s43, s43, 10")
    A(f"s_add_u32 s43, s43, {hex(W_PA)}")
    finalize(M, LS, ACC, 24, 28)
    A("buffer_store_dwordx4 v[28:31], v4, s[24:27], s43 offen sc1")
    if stamps:
        A(f"s_memrealtime s[{90+2*(stamps-1)}:{91+2*(stamps-1)}]")
        stamp_store(stamps, 200)
    A.label("L_end")
    A("s_endpgm")

    body = A.render()
    nv = 224 if stamps else 192
    txt = HEADER + f"; @launch grid=(256,1,1) block=(512,1,1) lds={L_TOT}\n"
    txt += '.amdgcn_target "amdgcn-amd-amdhsa--gfx950"\n.text\n'
    txt += f".globl {NAME}\n.p2align 8\n.type {NAME},@function\n"
    txt += body
    txt += '.section .rodata,"a"\n.p2align 6\n'
    txt += f".amdhsa_kernel {NAME}\n"
    txt += f"  .amdhsa_next_free_vgpr {nv}\n  .amdhsa_next_free_sgpr 102\n  .amdhsa_accum_offset {nv}\n"
    txt += "  .amdhsa_group_segment_fixed_size 0\n  .amdhsa_kernarg_size 104\n  .amdhsa_user_sgpr_count 2\n"
    txt += "  .amdhsa_user_sgpr_kernarg_segment_ptr 1\n  .amdhsa_system_sgpr_workgroup_id_x 1\n.end_amdhsa_kernel\n"
    return txt

if __name__ == "__main__":
    import argparse
    ap = argparse.ArgumentParser()
    ap.add_argument("out")
    ap.add_argument("--kw", default="")
    a = ap.parse_args()
    kw = eval("dict(" + a.kw + ")")
    open(a.out, "w").write(gen(**kw))
```

```python
import sys, struct
sys.path.insert(0, "dev")
from asmlib import Asm
from gen import HEADER, NAME

L_W = 0
L_WO = 65536
L_QA = 131072
L_QB = L_QA + 1024
L_OA = L_QB + 2048
L_OB = L_OA + 1024
L_FL = L_OB + 1024
L_OWN = L_FL + 64
L_TOT = L_OWN + 2048
W_CNT = 0x1000
W_QP = 0x10000
W_PA = 0x100000
W_PB = 0x200000
W_Y = 0x400000
W_STAMP = 0x20000000

CEXP = struct.unpack("<I", struct.pack("<f", 1.4426950408889634 / (128 ** 0.5)))[0]

def gen(TD=3, CS=4, ns=12, NBW=1, JB=2, ksk=4, stamps=0, spin=200000, hst=("h1", "h2", "h3", "h4"),
        sst=("s1", "s2", "s3", "s4"), rot=1, wox=8, psl=16, qsl=4, ysl=0, early=0, esl=16,
        bst="sc1 nt", bld="sc1 nt", ast="sc1", ald="sc1", ab=()):
    tl = 4
    A = Asm()
    NWP = 8
    NT = 512
    CD = CS
    CSB = CS * 4096
    assert ns * NWP * CS <= NT and (NT - ns * NWP * CS) % CD == 0
    NSK = NBW * ksk
    NDYN = (NT - ns * NWP * CS) // CD + NSK
    assert CS >= TD and ns - ksk >= 2
    NP = 2 * NBW
    BT = 16 // NBW
    uid = [0]
    def lab(p):
        uid[0] += 1
        return f"L_{p}_{uid[0]}"

    P = dict(A_x=64, A_k=66, A_v=68, A_wq=70, A_wo=72, B_x=74, B_k=76, B_v=78, B_wq=80, B_wo=82, out=84, dbg=86, ws=88)
    def srd(d, lo, hi, n):
        A(f"s_mov_b32 s{d}, s{lo}")
        A(f"s_and_b32 s{d+1}, s{hi}, 0xffff")
        A(f"s_mov_b32 s{d+2}, {hex(n)}")
        A(f"s_mov_b32 s{d+3}, 0x20000")
    def srdp(d, name, n): srd(d, P[name], P[name] + 1, n)

    def stamp(i):
        if not stamps: return
        if isinstance(i, str):
            lst = hst if i[0] == "h" else sst
            if i not in lst: return
            i = 1 + list(lst).index(i)
        A(f"s_memrealtime s[{90+2*i}:{91+2*i}]")
    def stamp_store(vt):
        if not stamps: return
        A(f"s_memrealtime s[{90+2*(stamps-1)}:{91+2*(stamps-1)}]")
        A("s_waitcnt lgkmcnt(0)")
        A("s_lshl_b32 s32, s2, 3")
        A("s_add_u32 s32, s32, s3")
        A(f"s_mul_i32 s32, s32, {stamps*8}")
        A(f"s_add_u32 s32, s32, {hex(W_STAMP)}")
        for i in range(stamps):
            A(f"v_mov_b32 v{vt+2*i}, s{90+2*i}")
            A(f"v_mov_b32 v{vt+2*i+1}, s{91+2*i}")
        A(f"v_mov_b32 v{vt+2*stamps}, 0")
        A("s_mov_b64 exec, 1")
        for i in range(stamps):
            A(f"buffer_store_dwordx2 v[{vt+2*i}:{vt+2*i+1}], v{vt+2*stamps}, s[24:27], s32 offen offset:{8*i}")
        A("s_mov_b64 exec, -1")

    def chain(op3, op2, dst, regs):
        if len(regs) == 2:
            A(f"{op2} v{dst}, {regs[0]}, {regs[1]}"); return
        A(f"{op3} v{dst}, {regs[0]}, {regs[1]}, {regs[2]}")
        i = 3
        while i < len(regs):
            if i + 1 < len(regs):
                A(f"{op3} v{dst}, v{dst}, {regs[i]}, {regs[i+1]}"); i += 2
            else:
                A(f"{op2} v{dst}, v{dst}, {regs[i]}"); i += 1
    def scores(K, Q, S, n):
        for r in range(4):
            for j in range(n):
                c = "0" if r == 0 else f"v{S+j}"
                A(f"v_dot2_f32_bf16 v{S+j}, v{K+4*j+r}, v{Q+r}, {c}")
        for st in (8, 4, 2, 1):
            for j in range(n):
                A(f"v_add_f32_dpp v{S+j}, v{S+j}, v{S+j} row_ror:{st} row_mask:0xf bank_mask:0xf")
    def softmax(S, n, M, LS, ACC, AL, NM, PL, PH):
        chain("v_max3_f32", "v_max_f32", AL, [f"v{S+j}" for j in range(n)] + [f"v{M}"])
        A(f"v_sub_f32 v{NM}, v{M}, v{AL}")
        A(f"v_mov_b32 v{M}, v{AL}")
        A(f"v_mul_f32 v{AL}, s7, v{NM}")
        A(f"v_mul_f32 v{NM}, s7, v{M}")
        A(f"v_exp_f32 v{AL}, v{AL}")
        for j in range(n):
            A(f"v_fma_f32 v{S+j}, v{S+j}, s7, -v{NM}")
        for j in range(n):
            A(f"v_exp_f32 v{S+j}, v{S+j}")
        for e in range(8):
            A(f"v_mul_f32 v{ACC+e}, v{ACC+e}, v{AL}")
        A(f"v_fma_f32 v{LS}, v{LS}, v{AL}, v{S}")
        for j in range(1, n):
            A(f"v_add_f32 v{LS}, v{LS}, v{S+j}")
        for j in range(n):
            A(f"v_cvt_pk_bf16_f32 v{PL+j}, v{S+j}, 0")
            A(f"v_cvt_pk_bf16_f32 v{PH+j}, 0, v{S+j}")
    def pv(V, n, ACC, PL, PH):
        for j in range(n):
            for r in range(4):
                A(f"v_dot2_f32_bf16 v{ACC+2*r}, v{V+4*j+r}, v{PL+j}, v{ACC+2*r}")
                A(f"v_dot2_f32_bf16 v{ACC+2*r+1}, v{V+4*j+r}, v{PH+j}, v{ACC+2*r+1}")
    def init_state(M, LS, ACC):
        for e in range(8): A(f"v_mov_b32 v{ACC+e}, 0")
        A(f"v_mov_b32 v{M}, 0xf149f2ca")
        A(f"v_mov_b32 v{LS}, 0")
    def finalize(M, LS, ACC, T, OPK, OLSE):
        A(f"v_mov_b32 v{T+1}, v{M}")
        A(f"v_mov_b32 v{T+2}, v{M}")
        A(f"v_permlane32_swap_b32 v{T+1}, v{T+2}")
        A(f"v_max_f32 v{T+1}, v{T+1}, v{T+2}")
        A(f"v_mov_b32 v{T+2}, v{T+1}")
        A(f"v_permlane16_swap_b32 v{T+1}, v{T+2}")
        A(f"v_max_f32 v{T}, v{T+1}, v{T+2}")
        A(f"v_sub_f32 v{T+1}, v{M}, v{T}")
        A(f"v_mul_f32 v{T+1}, s7, v{T+1}")
        A(f"v_exp_f32 v{T+1}, v{T+1}")
        A(f"v_mul_f32 v{LS}, v{LS}, v{T+1}")
        for e in range(8): A(f"v_mul_f32 v{ACC+e}, v{ACC+e}, v{T+1}")
        A(f"v_mov_b32 v{T+1}, v{LS}")
        A(f"v_mov_b32 v{T+2}, v{LS}")
        for e in range(4): A(f"v_permlane32_swap_b32 v{ACC+e}, v{ACC+e+4}")
        A(f"v_permlane32_swap_b32 v{T+1}, v{T+2}")
        for e in range(4): A(f"v_add_f32 v{ACC+e}, v{ACC+e}, v{ACC+e+4}")
        A(f"v_add_f32 v{T+1}, v{T+1}, v{T+2}")
        A(f"v_mov_b32 v{T+2}, v{T+1}")
        for e in range(2): A(f"v_permlane16_swap_b32 v{ACC+e}, v{ACC+e+2}")
        A(f"v_permlane16_swap_b32 v{T+1}, v{T+2}")
        A(f"v_add_f32 v{T+3}, v{T+1}, v{T+2}")
        for e in range(2): A(f"v_add_f32 v{ACC+e}, v{ACC+e}, v{ACC+e+2}")
        A(f"v_rcp_f32 v{T+1}, v{T+3}")
        A(f"v_log_f32 v{T+2}, v{T+3}")
        A(f"v_mul_f32 v{ACC}, v{ACC}, v{T+1}")
        A(f"v_mul_f32 v{ACC+1}, v{ACC+1}, v{T+1}")
        A(f"v_fma_f32 v{OLSE}, v{T}, s7, v{T+2}")
        A(f"v_cvt_pk_bf16_f32 v{OPK}, v{ACC}, v{ACC+1}")
    def combine(G, n, OPK, OLSE=None):
        T1, T2, T3, T4 = 56, 57, 58, 59
        chain("v_max3_f32", "v_max_f32", T1, [f"v{G+4*i+2}" for i in range(n)])
        for i in range(n): A(f"v_sub_f32 v{G+4*i+2}, v{G+4*i+2}, v{T1}")
        for i in range(n): A(f"v_exp_f32 v{G+4*i+2}, v{G+4*i+2}")
        for i in range(n):
            A(f"v_lshlrev_b32 v{G+4*i+1}, 16, v{G+4*i}")
            A(f"v_and_b32 v{G+4*i+3}, 0xffff0000, v{G+4*i}")
        A(f"v_add_f32 v{T4}, v{G+2}, v{G+6}")
        A(f"v_mul_f32 v{T2}, v{G+2}, v{G+1}")
        A(f"v_mul_f32 v{T3}, v{G+2}, v{G+3}")
        for i in range(2, n): A(f"v_add_f32 v{T4}, v{T4}, v{G+4*i+2}")
        if OLSE is not None: A(f"v_log_f32 v{OLSE}, v{T4}")
        A(f"v_rcp_f32 v{T4}, v{T4}")
        for i in range(1, n):
            A(f"v_fmac_f32 v{T2}, v{G+4*i+2}, v{G+4*i+1}")
            A(f"v_fmac_f32 v{T3}, v{G+4*i+2}, v{G+4*i+3}")
        if OLSE is not None: A(f"v_add_f32 v{OLSE}, v{OLSE}, v{T1}")
        A(f"v_mul_f32 v{T2}, v{T2}, v{T4}")
        A(f"v_mul_f32 v{T3}, v{T3}, v{T4}")
        A(f"v_cvt_pk_bf16_f32 v{OPK}, v{T2}, v{T3}")
    def poll_masked(n, issue1, tagregs, sleep, mbase=64, extra=None):
        top, done = lab("pk"), lab("pkdone")
        A(f"s_mov_b32 s42, {spin}")
        for i in range(n): A(f"s_mov_b64 s[{mbase+2*i}:{mbase+2*i+1}], -1")
        A.label(top)
        for i in range(n):
            A(f"s_mov_b64 exec, s[{mbase+2*i}:{mbase+2*i+1}]")
            issue1(i)
        A("s_mov_b64 exec, -1")
        if extra: extra[0]()
        A("s_waitcnt vmcnt(0) lgkmcnt(0)" if extra else "s_waitcnt vmcnt(0)")
        for i in range(n):
            tr = tagregs(i)
            A(f"v_cmp_ne_u32 s[{mbase+2*i}:{mbase+2*i+1}], s6, v{tr[0]}")
            for r in tr[1:]:
                A(f"v_cmp_ne_u32 vcc, s6, v{r}")
                A(f"s_or_b64 s[{mbase+2*i}:{mbase+2*i+1}], s[{mbase+2*i}:{mbase+2*i+1}], vcc")
            if i == 0: A(f"s_mov_b64 s[40:41], s[{mbase}:{mbase+1}]")
            else: A(f"s_or_b64 s[40:41], s[40:41], s[{mbase+2*i}:{mbase+2*i+1}]")
        A("s_cmp_eq_u64 s[40:41], 0")
        A(f"s_cbranch_scc1 {done}")
        if extra: extra[1]()
        elif sleep: A(f"s_sleep {sleep}")
        A("s_sub_u32 s42, s42, 1")
        A("s_cmp_lg_u32 s42, 0")
        A(f"s_cbranch_scc1 {top}")
        A.label(done)
    def flag_add(addr_v, off=0):
        A("s_mov_b64 exec, 1")
        A(f"ds_add_u32 v{addr_v}, v63 offset:{off}")
        A("s_mov_b64 exec, -1")
    def flag_wait(addr_v, off, target, tmp_v, sleep):
        top, done = lab("fw"), lab("fwdone")
        A(f"s_mov_b32 s42, {spin*16}")
        A.label(top)
        A(f"ds_read_b32 v{tmp_v}, v{addr_v} offset:{off}")
        A("s_waitcnt lgkmcnt(0)")
        A(f"v_readfirstlane_b32 s47, v{tmp_v}")
        A(f"s_cmp_ge_u32 s47, {target}")
        A(f"s_cbranch_scc1 {done}")
        if sleep: A(f"s_sleep {sleep}")
        A("s_sub_u32 s42, s42, 1")
        A("s_cmp_lg_u32 s42, 0")
        A(f"s_cbranch_scc1 {top}")
        A.label(done)
    def mktag():
        A("s_mul_i32 s6, s6, 0x9e3779b1")
        A("s_add_u32 s6, s6, 0x7f4a7c15")

    A.label(NAME)
    A("s_cmp_ge_u32 s2, 256")
    A("s_cbranch_scc1 L_end")
    for i in range(stamps): stamp(i)
    A("s_load_dwordx16 s[64:79], s[0:1], 0")
    A("s_load_dwordx8 s[80:87], s[0:1], 64")
    A("s_load_dwordx2 s[88:89], s[0:1], 96")
    A("v_lshrrev_b32 v1, 6, v0")
    A("v_readfirstlane_b32 s3, v1")
    A("v_and_b32 v1, 63, v0")
    A("s_lshr_b32 s4, s2, 3")
    A("s_and_b32 s5, s2, 7")
    if rot:
        A(f"s_mul_i32 s7, s5, {rot}")
        A("s_add_u32 s4, s4, s7")
        A("s_and_b32 s4, s4, 31")
    A(f"s_mov_b32 s7, {hex(CEXP)}")
    A("v_lshlrev_b32 v2, 4, v1")
    A(f"v_mov_b32 v62, {L_FL}")
    A("v_mov_b32 v63, 1")
    A(f"s_and_b32 s62, s5, {8//NBW-1}")
    A(f"s_cmp_eq_u32 s62, {JB}")
    A("s_cselect_b32 s62, 1, 0")
    A("s_waitcnt lgkmcnt(0)")
    A("s_load_dword s6, s[88:89], 0")
    srdp(24, "ws", 0x40000000)
    A("s_cmp_ge_u32 s3, 4")
    A("s_cbranch_scc1 L_stream")

    A("s_lshr_b32 s33, s5, 2")
    A("s_bfe_u32 s34, s5, 0x10001")
    A("s_and_b32 s35, s5, 1")
    A("s_cmp_eq_u32 s33, 0")
    A(f"s_cselect_b32 s36, s{P['A_wq']}, s{P['B_wq']}")
    A(f"s_cselect_b32 s37, s{P['A_wq']+1}, s{P['B_wq']+1}")
    A(f"s_cselect_b32 s38, s{P['A_x']}, s{P['B_x']}")
    A(f"s_cselect_b32 s39, s{P['A_x']+1}, s{P['B_x']+1}")
    srd(12, 36, 37, 0x800000)
    srd(8, 38, 39, 8192)
    A("v_lshrrev_b32 v3, 3, v1")
    A("v_lshlrev_b32 v3, 13, v3")
    A("v_and_b32 v4, 7, v1")
    A("v_lshl_add_u32 v3, v4, 4, v3")
    A("s_lshl_b32 s43, s35, 9")
    A("s_lshl_b32 s44, s3, 7")
    A("s_add_u32 s43, s43, s44")
    A("s_lshl_b32 s43, s43, 13")
    A("s_lshl_b32 s44, s4, 8")
    A("s_add_u32 s43, s43, s44")
    A("s_lshl_b32 s44, s34, 7")
    A("s_add_u32 s43, s43, s44")
    A("s_lshl_b32 s44, s3, 14")
    for u in range(16):
        A("s_mov_b32 m0, s44")
        A("buffer_load_dwordx4 v3, s[12:15], s43 offen nt lds")
        if u < 15:
            A("s_add_u32 s43, s43, 0x10000")
            A("s_add_u32 s44, s44, 1024")
    XF = 64
    A("v_and_b32 v4, 15, v1")
    A("v_lshlrev_b32 v4, 11, v4")
    A("v_lshrrev_b32 v5, 4, v1")
    A("v_lshl_add_u32 v4, v5, 4, v4")
    A("s_lshl_b32 s43, s35, 10")
    for ks in range(16):
        A(f"buffer_load_dwordx4 v[{XF+4*ks}:{XF+4*ks+3}], v4, s[8:11], s43 offen offset:{ks*64}")
    A("v_mov_b32 v7, 0")
    A("v_lshl_add_u32 v6, v1, 2, v62")
    A("s_mov_b64 exec, 0xffff")
    A("ds_write_b32 v6, v7")
    A("s_mov_b64 exec, -1")
    A("s_or_b32 s43, s5, s3")
    A("s_cmp_lg_u32 s43, 0")
    A("s_cbranch_scc1 L_noinit")
    A("v_lshlrev_b32 v6, 13, v1")
    A("s_lshl_b32 s43, s4, 8")
    A(f"s_add_u32 s43, s43, {hex(W_CNT)}")
    A("s_mov_b64 exec, 15")
    A("buffer_store_dword v7, v6, s[24:27], s43 offen sc1")
    A("s_mov_b64 exec, -1")
    A.label("L_noinit")
    A("s_waitcnt lgkmcnt(0)")
    A("s_barrier")
    srdp(16, "B_k", 0x2000000)
    srdp(20, "B_v", 0x2000000)
    srdp(28, "out", 16384)
    A("v_lshrrev_b32 v5, 4, v1")
    A("v_lshlrev_b32 v5, 3, v5")
    A("v_bfe_u32 v6, v1, 2, 2")
    A("v_add_u32 v5, v5, v6")
    A("v_and_b32 v6, 3, v1")
    A("v_lshlrev_b32 v6, 3, v6")
    A("v_lshl_add_u32 v8, v5, 7, v6")
    A("v_lshl_add_u32 v9, v5, 8, v6")
    A("s_lshl_b32 s43, s3, 5")
    A("v_add_u32 v8, s43, v8")
    A("s_lshl_b32 s43, s3, 6")
    A(f"s_add_u32 s43, s43, {L_WO}")
    A("v_add_u32 v9, s43, v9")
    mktag()
    A("v_and_b32 v4, 3, v1")
    A("v_lshlrev_b32 v4, 10, v4")
    A("v_lshrrev_b32 v5, 4, v1")
    A("v_lshl_add_u32 v4, v5, 5, v4")
    A("v_and_b32 v5, 4, v1")
    A("v_lshl_add_u32 v4, v5, 2, v4")
    A("s_lshl_b32 s43, s33, 5")
    A("s_add_u32 s43, s43, s4")
    A("s_lshl_b32 s43, s43, 1")
    A("s_add_u32 s43, s43, s35")
    A("s_lshl_b32 s43, s43, 12")
    A("s_lshl_b32 s44, s34, 9")
    A("s_add_u32 s43, s43, s44")
    A("s_lshl_b32 s44, s3, 7")
    A("s_add_u32 s43, s43, s44")
    A(f"s_add_u32 s43, s43, {hex(W_QP)}")
    for r in (21, 23): A(f"v_mov_b32 v{r}, s6")
    A("s_mov_b32 s56, 0x00ff00ff")
    A("s_mov_b32 s57, 0x00ff00ff")
    A("s_waitcnt vmcnt(0)")
    flag_add(62, 0)
    flag_wait(62, 0, 4, 10, 0)
    stamp("h1")
    WF = 128
    for ks in range(16):
        A(f"ds_read_b64_tr_b16 v[{WF+4*ks}:{WF+4*ks+1}], v8 offset:{ks*4096}")
        A(f"ds_read_b64_tr_b16 v[{WF+4*ks+2}:{WF+4*ks+3}], v8 offset:{ks*4096+512}")
    for ks in range(16):
        A(f"s_waitcnt lgkmcnt({min(15, 2*(15-ks))})")
        d = 12 + 4 * (ks & 1)
        c = "0" if ks < 2 else f"v[{d}:{d+3}]"
        A(f"v_mfma_f32_16x16x32_bf16 v[{d}:{d+3}], v[{WF+4*ks}:{WF+4*ks+3}], v[{XF+4*ks}:{XF+4*ks+3}], {c}")
    for r in range(4): A(f"v_add_f32 v{20+2*r}, v{12+r}, v{16+r}")
    A("v_mov_b32_dpp v20, v24 row_shr:4 row_mask:0xf bank_mask:0x2")
    A("v_mov_b32_dpp v22, v26 row_shr:4 row_mask:0xf bank_mask:0x2")
    A("s_mov_b64 exec, s[56:57]")
    A("buffer_store_dwordx4 v[20:23], v4, s[24:27], s43 offen sc1")
    A("s_mov_b64 exec, -1")
    stamp("h2")
    A("s_lshl_b32 s43, s4, 13")
    A("s_lshl_b32 s44, s3, 10")
    A("s_add_u32 s43, s43, s44")
    A(f"s_add_u32 s43, s43, {hex(W_QP)}")
    A("s_add_u32 s44, s43, 4096")
    A("s_lshl_b32 s45, s3, 8")
    A(f"s_add_u32 s45, s45, {L_QA}")
    A("v_lshl_add_u32 v10, v1, 2, s45")
    poll_masked(2, lambda i: A(f"buffer_load_dwordx4 v[{28+4*i}:{31+4*i}], v2, s[24:27], s{43+i} offen sc1"),
                lambda i: [29 + 4 * i, 31 + 4 * i], qsl)
    A("v_add_f32 v28, v28, v32")
    A("v_add_f32 v30, v30, v34")
    A("v_cvt_pk_bf16_f32 v28, v28, v30")
    A("ds_write_b32 v10, v28")
    A("s_waitcnt lgkmcnt(0)")
    A("s_barrier")
    stamp("h3")
    if 1 in ab: A("s_branch L_hend")
    A("s_cmp_eq_u32 s62, 0")
    A("s_cbranch_scc1 L_noB")

    lgNP = {2: 1, 4: 2}[NP]
    if NBW == 1: A("s_mov_b32 s58, s4")
    else:
        A("s_lshl_b32 s58, s4, 1")
        A("s_lshr_b32 s59, s5, 2")
        A("s_add_u32 s58, s58, s59")
    A(f"s_lshr_b32 s59, s58, {lgNP}")
    A(f"s_and_b32 s58, s58, {NP-1}")
    A("s_lshl_b32 s60, s59, 21")
    A(f"s_mul_i32 s61, s58, {2048//NP*256}")
    A("s_add_u32 s60, s60, s61")
    A("s_lshl_b32 s61, s3, 12")
    A("s_add_u32 s60, s60, s61")
    A(f"s_add_u32 s60, s60, {6144*256}")
    A("s_and_b32 s48, s59, 3")
    A("s_lshl_b32 s48, s48, 3")
    A("s_lshl_b32 s49, s3, 1")
    A("s_add_u32 s48, s48, s49")
    A("s_add_u32 s49, s48, 32")
    A("s_lshl_b32 s49, s49, 13")
    A("s_lshr_b32 s61, s59, 2")
    A("s_lshl_b32 s50, s61, 10")
    A("s_add_u32 s49, s49, s50")
    A(f"s_add_u32 s49, s49, {hex(W_QP)}")
    A("s_add_u32 s50, s49, 4096")
    A("s_add_u32 s51, s49, 8192")
    A("s_add_u32 s52, s49, 12288")
    poll_masked(4, lambda i: A(f"buffer_load_dwordx4 v[{28+4*i}:{31+4*i}], v2, s[24:27], s{49+i} offen sc1"),
                lambda i: [29 + 4 * i, 31 + 4 * i], 16)
    KB = 64
    def bload(par):
        for u in range(4):
            A(f"buffer_load_dwordx4 v[{KB+32*par+4*u}:{KB+32*par+4*u+3}], v2, s[16:19], s60 offen offset:{u*1024} nt")
        for u in range(4):
            A(f"buffer_load_dwordx4 v[{KB+32*par+16+4*u}:{KB+32*par+16+4*u+3}], v2, s[20:23], s60 offen offset:{u*1024} nt")
        A("s_add_u32 s60, s60, 0x4000")
    bload(0); bload(1)
    A("v_add_f32 v28, v28, v32")
    A("v_add_f32 v30, v30, v34")
    A("v_add_f32 v36, v36, v40")
    A("v_add_f32 v38, v38, v42")
    A("v_cvt_pk_bf16_f32 v28, v28, v30")
    A("v_cvt_pk_bf16_f32 v36, v36, v38")
    A("s_lshl_b32 s43, s3, 9")
    A(f"s_add_u32 s43, s43, {L_QB}")
    A("v_lshl_add_u32 v10, v1, 2, s43")
    A("ds_write_b32 v10, v28")
    A("ds_write_b32 v10, v36 offset:256")
    A("s_waitcnt lgkmcnt(0)")
    flag_add(62, 4)
    flag_wait(62, 4, 4, 10, 1)
    A("v_and_b32 v11, 0xf0, v2")
    A(f"v_add_u32 v11, {L_QB}, v11")
    QB = 128
    for hh in range(8):
        A(f"ds_read_b128 v[{QB+4*hh}:{QB+4*hh+3}], v11 offset:{hh*256}")
    SB = 160
    def bs(hh): return dict(M=SB + 10 * hh, LS=SB + 10 * hh + 1, ACC=SB + 10 * hh + 2)
    for hh in range(8):
        st = bs(hh); init_state(st["M"], st["LS"], st["ACC"])
    A(f"s_mov_b32 s45, {BT//2}")
    A("s_waitcnt lgkmcnt(0)")
    A.label("L_battn")
    for par in range(2):
        A("s_waitcnt vmcnt(8)")
        for hh in range(8):
            st = bs(hh)
            o = 20 * (hh & 1)
            S_, AL_, NM_, PL_, PH_ = 12 + o, 16 + o, 17 + o, 20 + o, 24 + o
            scores(KB + 32 * par, QB + 4 * hh, S_, 4)
            softmax(S_, 4, st["M"], st["LS"], st["ACC"], AL_, NM_, PL_, PH_)
            pv(KB + 32 * par + 16, 4, st["ACC"], PL_, PH_)
        if par == 0:
            A("s_cmp_eq_u32 s45, 1")
            A("s_cselect_b32 s60, 0x2000000, s60")
        bload(par)
    A("s_sub_u32 s45, s45, 1")
    A("s_cmp_lg_u32 s45, 0")
    A("s_cbranch_scc1 L_battn")
    A("v_and_b32 v4, 15, v1")
    A("v_lshlrev_b32 v4, 5, v4")
    A("v_lshrrev_b32 v5, 4, v1")
    A("v_lshl_add_u32 v4, v5, 3, v4")
    A("s_lshl_b32 s43, s3, 12")
    A("v_add_u32 v4, s43, v4")
    for hh in range(8):
        st = bs(hh)
        o = 8 * (hh & 1)
        finalize(st["M"], st["LS"], st["ACC"], 12 + o, 17 + o, 16 + o)
        A(f"ds_write_b64 v4, v[{16+o}:{17+o}] offset:{hh*512}")
    A("s_waitcnt lgkmcnt(0)")
    flag_add(62, 12)
    flag_wait(62, 12, 4, 10, 1)
    A("s_waitcnt vmcnt(0)")
    A("s_lshl_b32 s43, s3, 10")
    A("v_lshl_add_u32 v4, v1, 3, s43")
    A("s_lshl_b32 s43, s48, 2")
    A("s_add_u32 s43, s43, s61")
    A(f"s_lshl_b32 s43, s43, {lgNP}")
    A("s_add_u32 s43, s43, s58")
    A("s_lshl_b32 s43, s43, 10")
    A(f"s_add_u32 s43, s43, {hex(W_PB)}")
    A(f"s_add_u32 s44, s43, {4*NP*1024}")
    G = 64
    for k in range(2):
        for w_ in range(4):
            A(f"ds_read_b64 v[{G+16*k+4*w_+2}:{G+16*k+4*w_+3}], v4 offset:{w_*4096+k*512}")
    A("s_waitcnt lgkmcnt(0)")
    for k in range(2):
        for w_ in range(4): A(f"v_mov_b32 v{G+16*k+4*w_}, v{G+16*k+4*w_+3}")
        A(f"v_mov_b32 v{13+4*k}, s6")
        A(f"v_mov_b32 v{15+4*k}, s6")
        combine(G + 16 * k, 4, 12 + 4 * k, 14 + 4 * k)
        A(f"buffer_store_dwordx4 v[{12+4*k}:{15+4*k}], v2, s[24:27], s{43+k} offen {bst}")
    stamp("h4")
    A.label("L_noB")
    if 2 in ab: A("s_branch L_hend")

    flag_wait(62, 8, 4, 56, 8)
    FR = [128, 160]
    for T_ in range(2):
        for ct in range(2):
            for ks in range(4):
                r = FR[T_] + (ct * 4 + ks) * 4
                off = T_ * 32768 + ks * 8192 + ct * 32
                A(f"ds_read_b64_tr_b16 v[{r}:{r+1}], v9 offset:{off}")
                A(f"ds_read_b64_tr_b16 v[{r+2}:{r+3}], v9 offset:{off+1024}")
    G = 64
    A("s_lshl_b32 s43, s3, 8")
    A(f"s_add_u32 s43, s43, {L_OA}")
    A("v_lshl_add_u32 v60, v1, 2, s43")
    A("v_and_b32 v6, 3, v1")
    A("v_lshlrev_b32 v6, 8, v6")
    A("v_lshrrev_b32 v7, 4, v1")
    A("v_lshl_add_u32 v6, v7, 4, v6")
    A(f"v_add_u32 v6, {L_OA}, v6")
    A("v_and_b32 v8, 3, v1")
    A("v_lshlrev_b32 v8, 14, v8")
    A("v_lshl_add_u32 v8, v7, 4, v8")
    A("v_and_b32 v7, 4, v1")
    A("v_lshl_add_u32 v8, v7, 4, v8")
    A("s_lshl_b32 s52, s5, 4")
    A("s_add_u32 s52, s52, s3")
    A("s_lshl_b32 s52, s52, 12")
    A("s_lshl_b32 s53, s4, 7")
    A("s_add_u32 s52, s52, s53")
    A(f"s_add_u32 s52, s52, {hex(W_Y)}")
    A("s_add_u32 s53, s52, 0x80000")
    for r in (21, 23, 29, 31): A(f"v_mov_b32 v{r}, s6")
    A("s_bfe_u32 s60, s4, 0x20002")
    A("s_lshl_b32 s60, s60, 12")
    A("s_lshl_b32 s44, s5, 8")
    A("s_add_u32 s60, s60, s44")
    A("s_and_b32 s44, s4, 3")
    A("s_lshl_b32 s44, s44, 6")
    A("s_add_u32 s60, s60, s44")
    A("s_lshr_b32 s44, s4, 4")
    A("s_lshl_b32 s45, s44, 11")
    A("s_add_u32 s60, s60, s45")
    A("v_lshlrev_b32 v11, 3, v1")
    A("s_lshl_b32 s61, s5, 4")
    A("s_and_b32 s45, s4, 15")
    A("s_add_u32 s61, s61, s45")
    A("s_lshl_b32 s61, s61, 12")
    A("s_lshl_b32 s44, s44, 19")
    A("s_add_u32 s61, s61, s44")
    A(f"s_add_u32 s61, s61, {hex(W_Y)}")
    A("s_lshl_b32 s43, s3, 2")
    A("v_add_u32 v10, s43, v62")
    A("s_lshl_b32 s45, s4, 2")
    A("s_add_u32 s45, s45, s3")
    A(f"s_mul_i32 s46, s45, {NP*1024}")
    A(f"s_add_u32 s46, s46, {hex(W_PB)}")
    A("s_lshl_b32 s45, s45, 13")
    A(f"s_add_u32 s45, s45, {hex(W_PA)}")
    for i in range(7):
        A(f"s_add_u32 s44, s5, {i+1}")
        A("s_and_b32 s44, s44, 7")
        A("s_lshl_b32 s44, s44, 10")
        A(f"s_add_u32 s{80+i}, s45, s44")
    A("s_lshl_b32 s44, s3, 9")
    A(f"s_add_u32 s44, s44, {L_OWN}")
    A("s_waitcnt lgkmcnt(0)")
    A("v_lshl_add_u32 v9, v1, 3, s44")
    flag_wait(10, 16, 1, 56, esl)
    stamp("h5")
    poll_masked(NP, lambda i: A(f"buffer_load_dwordx4 v[{G+4*i}:{G+4*i+3}], v2, s[24:27], s46 offen offset:{i*1024} {bld}"),
                lambda i: [G + 4 * i + 1, G + 4 * i + 3], 16)
    combine(G, NP, 61)
    A("ds_write_b32 v60, v61 offset:1024")
    if not early: flag_wait(10, 48, 2, 56, 0)
    else: flag_wait(10, 48, 1, 56, 2)
    stamp("h6")
    if early:
        def ex0(): A("ds_read_b32 v56, v10 offset:48")
        def ex1():
            nosl = lab("nosl")
            A("v_readfirstlane_b32 s47, v56")
            A("s_cmp_ge_u32 s47, 2")
            A(f"s_cbranch_scc1 {nosl}")
            A(f"s_sleep {psl}")
            A.label(nosl)
        extra = (ex0, ex1)
    else:
        A(f"ds_read_b64 v[{G+30}:{G+31}], v9")
        extra = None
    poll_masked(7, lambda i: A(f"buffer_load_dwordx4 v[{G+4*i}:{G+4*i+3}], v2, s[24:27], s{80+i} offen {ald}"),
                lambda i: [G + 4 * i + 1, G + 4 * i + 3], 0, extra=extra)
    if early:
        flag_wait(10, 48, 2, 56, 0)
        A(f"ds_read_b64 v[{G+30}:{G+31}], v9")
    A("s_waitcnt lgkmcnt(0)")
    A(f"v_mov_b32 v{G+28}, v{G+31}")
    stamp("h7")
    if stamps and "hc" in hst:
        k = 1 + list(hst).index("hc")
        A("s_waitcnt lgkmcnt(0)")
        A(f"s_sub_u32 s44, {spin}, s42")
        A("s_mul_i32 s44, s44, 100")
        A(f"s_add_u32 s{90+2*k}, s90, s44")
        A(f"s_addc_u32 s{91+2*k}, s91, 0")
    combine(G, 8, 61)
    A("ds_write_b32 v60, v61")
    A("s_waitcnt lgkmcnt(0)")
    A("s_barrier")
    OFR = [40, 96]
    DD = [12, 112]
    for T_ in range(2):
        for ks in range(4):
            A(f"ds_read_b128 v[{OFR[T_]+4*ks}:{OFR[T_]+4*ks+3}], v6 offset:{T_*1024+ks*64}")
    for T_ in range(2):
        for ks in range(4):
            A(f"s_waitcnt lgkmcnt({7-4*T_-ks})")
            for ct in range(2):
                d = DD[T_] + 4 * ct
                r = FR[T_] + (ct * 4 + ks) * 4
                c = "0" if ks == 0 else f"v[{d}:{d+3}]"
                A(f"v_mfma_f32_16x16x32_bf16 v[{d}:{d+3}], v[{r}:{r+3}], v[{OFR[T_]+4*ks}:{OFR[T_]+4*ks+3}], {c}")
    for T_ in range(2):
        y, d = 20 + 8 * T_, DD[T_]
        A(f"v_cvt_pk_bf16_f32 v{y}, v{d}, v{d+1}")
        A(f"v_cvt_pk_bf16_f32 v{y+2}, v{d+2}, v{d+3}")
        A(f"v_cvt_pk_bf16_f32 v{y+4}, v{d+4}, v{d+5}")
        A(f"v_cvt_pk_bf16_f32 v{y+6}, v{d+6}, v{d+7}")
        A(f"v_mov_b32_dpp v{y}, v{y+4} row_shr:4 row_mask:0xf bank_mask:0x2")
        A(f"v_mov_b32_dpp v{y+2}, v{y+6} row_shr:4 row_mask:0xf bank_mask:0x2")
        A("s_mov_b64 exec, s[56:57]")
        A(f"buffer_store_dwordx4 v[{y}:{y+3}], v8, s[24:27], s{52+T_} offen {ast}")
        A("s_mov_b64 exec, -1")
    stamp("h8")
    A("s_cmp_lg_u32 s3, 0")
    A("s_cbranch_scc1 L_hend")
    poll_masked(4, lambda i: A(f"buffer_load_dwordx4 v[{G+4*i}:{G+4*i+3}], v2, s[24:27], s61 offen offset:{i*1024} {ald}"),
                lambda i: [G + 4 * i + 1, G + 4 * i + 3], ysl)
    stamp("h9")
    U = G + 16
    for i in range(4):
        A(f"v_lshlrev_b32 v{U+4*i}, 16, v{G+4*i}")
        A(f"v_and_b32 v{U+4*i+1}, 0xffff0000, v{G+4*i}")
        A(f"v_lshlrev_b32 v{U+4*i+2}, 16, v{G+4*i+2}")
        A(f"v_and_b32 v{U+4*i+3}, 0xffff0000, v{G+4*i+2}")
    for k in range(4):
        A(f"v_add_f32 v{U+k}, v{U+k}, v{U+4+k}")
        A(f"v_add_f32 v{U+8+k}, v{U+8+k}, v{U+12+k}")
    for k in range(4):
        A(f"v_add_f32 v{U+k}, v{U+k}, v{U+8+k}")
    A(f"v_permlane32_swap_b32 v{U}, v{U+2}")
    A(f"v_permlane32_swap_b32 v{U+1}, v{U+3}")
    A(f"v_add_f32 v{U}, v{U}, v{U+2}")
    A(f"v_add_f32 v{U+1}, v{U+1}, v{U+3}")
    A(f"v_add_f32_dpp v{U}, v{U}, v{U} row_ror:8 row_mask:0xf bank_mask:0xf")
    A(f"v_add_f32_dpp v{U+1}, v{U+1}, v{U+1} row_ror:8 row_mask:0xf bank_mask:0xf")
    A(f"v_mov_b32 v{U+2}, v{U}")
    A(f"v_mov_b32 v{U+3}, v{U+1}")
    A(f"v_permlane16_swap_b32 v{U}, v{U+2}")
    A(f"v_permlane16_swap_b32 v{U+1}, v{U+3}")
    A(f"v_add_f32 v{U}, v{U}, v{U+2}")
    A(f"v_add_f32 v{U+1}, v{U+1}, v{U+3}")
    A(f"v_cvt_pk_bf16_f32 v{U+4}, v{U}, v{U+1}")
    A(f"v_mov_b32 v{U+5}, v{U+4}")
    A(f"v_permlane32_swap_b32 v{U+4}, v{U+5}")
    A("s_mov_b64 exec, 0xff")
    A(f"buffer_store_dwordx2 v[{U+4}:{U+5}], v11, s[28:31], s60 offen")
    A("s_mov_b64 exec, -1")
    A("s_cmp_lg_u32 s2, 0")
    A("s_cbranch_scc1 L_hend")
    A("v_mov_b32 v3, 0")
    A("v_mov_b32 v4, s6")
    A("s_mov_b64 exec, 1")
    A("buffer_store_dword v4, v3, s[24:27], 0 offen")
    A("s_mov_b64 exec, -1")
    A.label("L_hend")
    stamp_store(240)
    A("s_endpgm")

    A.label("L_stream")
    srdp(8, "A_k", 0x10000000)
    srdp(12, "A_v", 0x10000000)
    srdp(16, "A_wo", 0x800000)
    srdp(20, "B_wo", 0x800000)
    A("s_sub_u32 s33, s3, 4")
    A("v_lshrrev_b32 v3, 4, v1")
    A("v_lshlrev_b32 v3, 11, v3")
    A("v_and_b32 v4, 0xf0, v2")
    A("v_add_u32 v3, v3, v4")
    A("s_lshl_b32 s34, s4, 18")
    A("s_lshl_b32 s35, s33, 16")
    A("s_add_u32 s34, s34, s35")
    A("s_lshl_b32 s35, s5, 8")
    A("s_add_u32 s34, s34, s35")
    A("s_lshl_b32 s35, s33, 13")
    A(f"s_add_u32 s35, s35, {L_WO}")
    A("s_lshl_b32 s38, s33, 5")
    A("s_add_u32 s38, s38, s4")
    A("s_lshl_b32 s39, s38, 8")
    A(f"s_add_u32 s39, s39, {hex(W_CNT)}")
    A(f"s_add_u32 s52, s{P['ws']}, s39")
    A(f"s_addc_u32 s53, s{P['ws']+1}, 0")
    A("s_lshl_b32 s38, s38, 21")
    A(f"s_mul_i32 s29, s5, {CSB}")
    A("s_add_u32 s29, s29, s38")
    A("s_mov_b32 s30, s29")
    A(f"s_add_u32 s28, s38, {ns*NWP*CSB - NSK*CSB}")
    A(f"s_add_u32 s36, s38, {(JB + 8*(ns-ksk))*CSB}")
    Q, ACC, M, LS, AL, NM = 8, 12, 20, 21, 22, 23
    S = 24; PL = S + tl; PH = PL + tl
    R0 = 64
    def kbuf(t): return R0 + (t % TD) * 32
    def vbuf(t): return R0 + (t % TD) * 32 + 16
    def load(r, sd):
        for j in range(tl):
            A(f"buffer_load_dwordx4 v[{r+4*j}:{r+4*j+3}], v2, {sd}, s30 offen offset:{j*1024} nt")
    A("s_barrier")
    for t in range(TD):
        load(kbuf(t), "s[8:11]"); load(vbuf(t), "s[12:15]")
        A("s_add_u32 s30, s30, 4096")
    for T_ in range(2):
        for u in range(8):
            A(f"s_add_u32 s37, s35, {T_*32768+u*1024}")
            A("s_mov_b32 m0, s37")
            A(f"s_add_u32 s39, s34, {u*8192}")
            A(f"buffer_load_dwordx4 v3, s[{16+4*T_}:{19+4*T_}], s39 offen nt lds")
    init_state(M, LS, ACC)
    A("s_waitcnt lgkmcnt(0)")
    mktag()
    A("s_lshl_b32 s43, s33, 8")
    A(f"s_add_u32 s43, s43, {L_QA}")
    A("v_add_u32 v4, s43, v4")
    A(f"v_mov_b32 v7, {L_FL}")
    A("s_lshl_b32 s43, s33, 2")
    A("v_add_u32 v62, s43, v62")
    A("v_and_b32 v5, 15, v1")
    A("v_lshlrev_b32 v5, 6, v5")
    A("v_lshrrev_b32 v6, 4, v1")
    A("v_lshl_add_u32 v5, v6, 4, v5")
    A("s_lshl_b32 s43, s33, 9")
    A(f"s_add_u32 s43, s43, {L_OWN}")
    A("v_lshrrev_b32 v6, 1, v5")
    A("v_add_u32 v6, s43, v6")
    A("s_lshl_b32 s43, s4, 2")
    A("s_add_u32 s43, s43, s33")
    A("s_lshl_b32 s43, s43, 3")
    A("s_add_u32 s43, s43, s5")
    A("s_lshl_b32 s43, s43, 10")
    A(f"s_add_u32 s43, s43, {hex(W_PA)}")
    A("v_mov_b32 v41, s6")
    A("v_mov_b32 v43, s6")
    A(f"s_mov_b32 s31, {CS-TD}")
    A("s_cmp_eq_u32 s62, 0")
    A(f"s_cselect_b32 s51, {ns-1}, {ns-1-ksk}")
    A("s_mov_b32 s54, 0")
    A("s_mov_b32 s55, 0x7fffffff")
    stamp("s1")
    A("s_barrier")
    stamp("s2")
    A(f"ds_read_b128 v[{Q}:{Q+3}], v4")
    A("s_waitcnt lgkmcnt(0)")
    def claim():
        A("s_mov_b32 s50, 1")
        A("s_atomic_add s50, s[52:53], 0 glc")
    def nextchunk():
        go, dyn, exh, ne = lab("go"), lab("dyn"), lab("exh"), lab("ne")
        A("s_cmp_lg_u32 s31, 0")
        A(f"s_cbranch_scc1 {go}")
        A(f"s_mov_b32 s31, {CS}")
        A("s_cmp_eq_u32 s51, 0")
        A(f"s_cbranch_scc1 {dyn}")
        A(f"s_add_u32 s29, s29, {NWP*CSB}")
        A("s_mov_b32 s30, s29")
        A("s_sub_u32 s51, s51, 1")
        A("s_cmp_lg_u32 s51, 0")
        A(f"s_cbranch_scc1 {go}")
        claim()
        A(f"s_branch {go}")
        A.label(dyn)
        A("s_waitcnt lgkmcnt(0)")
        A(f"s_cmp_ge_u32 s50, {NDYN}")
        A(f"s_cbranch_scc1 {exh}")
        A(f"s_mul_i32 s30, s50, {CSB}")
        A("s_add_u32 s30, s30, s28")
        A(f"s_mul_i32 s37, s50, {8//NBW*CSB}")
        A("s_add_u32 s37, s37, s36")
        A(f"s_cmp_lt_u32 s50, {NSK}")
        A("s_cselect_b32 s30, s37, s30")
        A(f"s_cmp_lt_u32 s50, {max(0, NDYN-wox)}")
        A(f"s_cbranch_scc1 {ne}")
        flag_add(62, 16)
        A.label(ne)
        claim()
        A(f"s_branch {go}")
        A.label(exh)
        A("s_mov_b32 s30, 0x10000000")
        A("s_mov_b32 s31, 0x7fffffff")
        A(f"s_mov_b32 s55, {TD}")
        flag_add(62, 16)
        flag_add(62, 48)
        stamp("s3")
        A.label(go)
        A("s_sub_u32 s31, s31, 1")
    W = (2 * TD - 1) * tl
    def round_(first):
        for t in range(TD):
            nextchunk()
            ex = 16 if first else 0
            A(f"s_waitcnt vmcnt({W+ex})")
            scores(kbuf(t), Q, S, tl)
            load(kbuf(t), "s[8:11]")
            softmax(S, tl, M, LS, ACC, AL, NM, PL, PH)
            A(f"s_waitcnt vmcnt({W+ex})")
            pv(vbuf(t), tl, ACC, PL, PH)
            load(vbuf(t), "s[12:15]")
            A("s_add_u32 s30, s30, 4096")
            if not first:
                A("s_sub_u32 s55, s55, 1")
                A("s_cmp_eq_u32 s55, 0")
                A("s_cbranch_scc1 L_fin")
    round_(True)
    A(f"s_waitcnt vmcnt({2*TD*tl})")
    flag_add(7, 8)
    A.label("L_round")
    if stamps:
        for nm in sst:
            if nm.startswith("sr"):
                sk = lab("nost")
                A(f"s_cmp_lg_u32 s54, {int(nm[2:])}")
                A(f"s_cbranch_scc1 {sk}")
                stamp(nm)
                A.label(sk)
        A("s_add_u32 s54, s54, 1")
    round_(False)
    A("s_branch L_round")
    A.label("L_fin")
    stamp("s5")
    A("s_nop 2")
    finalize(M, LS, ACC, 24, 40, 42)
    stamp("s4")
    A(f"buffer_store_dwordx4 v[40:43], v5, s[24:27], s43 offen {ast}")
    A("v_mov_b32 v33, v40")
    A("v_mov_b32 v32, v42")
    A("ds_write_b64 v6, v[32:33]")
    A("s_waitcnt lgkmcnt(0)")
    flag_add(62, 48)
    if stamps and "ack" in ab: A("s_waitcnt vmcnt(0)")
    stamp_store(240)
    A.label("L_end")
    A("s_endpgm")

    body = A.render()
    nv = 256 if stamps else 240
    txt = HEADER + f"; @launch grid=(256,1,1) block=(512,1,1) lds={L_TOT}\n"
    txt += '.amdgcn_target "amdgcn-amd-amdhsa--gfx950"\n.text\n'
    txt += f".globl {NAME}\n.p2align 8\n.type {NAME},@function\n"
    txt += body
    txt += '.section .rodata,"a"\n.p2align 6\n'
    txt += f".amdhsa_kernel {NAME}\n"
    txt += f"  .amdhsa_next_free_vgpr {nv}\n  .amdhsa_next_free_sgpr 102\n  .amdhsa_accum_offset {nv}\n"
    txt += "  .amdhsa_group_segment_fixed_size 0\n  .amdhsa_kernarg_size 104\n  .amdhsa_user_sgpr_count 2\n"
    txt += "  .amdhsa_user_sgpr_kernarg_segment_ptr 1\n  .amdhsa_system_sgpr_workgroup_id_x 1\n.end_amdhsa_kernel\n"
    return txt

if __name__ == "__main__":
    import argparse
    ap = argparse.ArgumentParser()
    ap.add_argument("out")
    ap.add_argument("--kw", default="")
    a = ap.parse_args()
    kw = eval("dict(" + a.kw + ")")
    open(a.out, "w").write(gen(**kw))
```

```python
import sys, struct
sys.path.insert(0, "dev")
from asmlib import Asm
from gen import HEADER, NAME

L_W = 0
L_WO = 65536
L_QA = 131072
L_QB = L_QA + 1024
L_OA = L_QB + 2048
L_OB = L_OA + 1024
L_FL = L_OB + 1024
L_OWN = L_FL + 64
L_TOT = L_OWN + 2048
W_CNT = 0x1000
W_QP = 0x10000
W_PA = 0x100000
W_PB = 0x200000
W_Y = 0x400000
W_STAMP = 0x20000000

CEXP = struct.unpack("<I", struct.pack("<f", 1.4426950408889634 / (128 ** 0.5)))[0]

def gen(TD=3, CS=4, ns=12, NBW=1, JB=2, ksk=4, stamps=0, spin=200000, hst=("h1", "h2", "h3", "h4"),
        sst=("s1", "s2", "s3", "s4"), rot=1, wox=8, psl=16, qsl=4, ysl=0, early=0, esl=16,
        bst="sc1 nt", bld="sc1 nt", ast="sc1", ald="sc1", ab=(), wolate=0, pasl=0, touch=0, woh=0, kp="nt", vp="nt"):
    tl = 4
    A = Asm()
    NWP = 8
    NT = 512
    CD = CS
    CSB = CS * 4096
    assert ns * NWP * CS <= NT and (NT - ns * NWP * CS) % CD == 0
    NSK = NBW * ksk
    NDYN = (NT - ns * NWP * CS) // CD + NSK
    assert CS >= TD and ns - ksk >= 2
    NP = 2 * NBW
    BT = 16 // NBW
    uid = [0]
    def lab(p):
        uid[0] += 1
        return f"L_{p}_{uid[0]}"

    P = dict(A_x=64, A_k=66, A_v=68, A_wq=70, A_wo=72, B_x=74, B_k=76, B_v=78, B_wq=80, B_wo=82, out=84, dbg=86, ws=88)
    def srd(d, lo, hi, n):
        A(f"s_mov_b32 s{d}, s{lo}")
        A(f"s_and_b32 s{d+1}, s{hi}, 0xffff")
        A(f"s_mov_b32 s{d+2}, {hex(n)}")
        A(f"s_mov_b32 s{d+3}, 0x20000")
    def srdp(d, name, n): srd(d, P[name], P[name] + 1, n)

    def stamp(i):
        if not stamps: return
        if isinstance(i, str):
            lst = hst if i[0] == "h" else sst
            if i not in lst: return
            i = 1 + list(lst).index(i)
        A(f"s_memrealtime s[{90+2*i}:{91+2*i}]")
    def stamp_store(vt):
        if not stamps: return
        A(f"s_memrealtime s[{90+2*(stamps-1)}:{91+2*(stamps-1)}]")
        A("s_waitcnt lgkmcnt(0)")
        A("s_lshl_b32 s32, s2, 3")
        A("s_add_u32 s32, s32, s3")
        A(f"s_mul_i32 s32, s32, {stamps*8}")
        A(f"s_add_u32 s32, s32, {hex(W_STAMP)}")
        for i in range(stamps):
            A(f"v_mov_b32 v{vt+2*i}, s{90+2*i}")
            A(f"v_mov_b32 v{vt+2*i+1}, s{91+2*i}")
        A(f"v_mov_b32 v{vt+2*stamps}, 0")
        A("s_mov_b64 exec, 1")
        for i in range(stamps):
            A(f"buffer_store_dwordx2 v[{vt+2*i}:{vt+2*i+1}], v{vt+2*stamps}, s[24:27], s32 offen offset:{8*i}")
        A("s_mov_b64 exec, -1")

    def chain(op3, op2, dst, regs):
        if len(regs) == 2:
            A(f"{op2} v{dst}, {regs[0]}, {regs[1]}"); return
        A(f"{op3} v{dst}, {regs[0]}, {regs[1]}, {regs[2]}")
        i = 3
        while i < len(regs):
            if i + 1 < len(regs):
                A(f"{op3} v{dst}, v{dst}, {regs[i]}, {regs[i+1]}"); i += 2
            else:
                A(f"{op2} v{dst}, v{dst}, {regs[i]}"); i += 1
    def scores(K, Q, S, n):
        for r in range(4):
            for j in range(n):
                c = "0" if r == 0 else f"v{S+j}"
                A(f"v_dot2_f32_bf16 v{S+j}, v{K+4*j+r}, v{Q+r}, {c}")
        for st in (8, 4, 2, 1):
            for j in range(n):
                A(f"v_add_f32_dpp v{S+j}, v{S+j}, v{S+j} row_ror:{st} row_mask:0xf bank_mask:0xf")
    def softmax(S, n, M, LS, ACC, AL, NM, PL, PH):
        chain("v_max3_f32", "v_max_f32", AL, [f"v{S+j}" for j in range(n)] + [f"v{M}"])
        A(f"v_sub_f32 v{NM}, v{M}, v{AL}")
        A(f"v_mov_b32 v{M}, v{AL}")
        A(f"v_mul_f32 v{AL}, s7, v{NM}")
        A(f"v_mul_f32 v{NM}, s7, v{M}")
        A(f"v_exp_f32 v{AL}, v{AL}")
        for j in range(n):
            A(f"v_fma_f32 v{S+j}, v{S+j}, s7, -v{NM}")
        for j in range(n):
            A(f"v_exp_f32 v{S+j}, v{S+j}")
        for e in range(8):
            A(f"v_mul_f32 v{ACC+e}, v{ACC+e}, v{AL}")
        A(f"v_fma_f32 v{LS}, v{LS}, v{AL}, v{S}")
        for j in range(1, n):
            A(f"v_add_f32 v{LS}, v{LS}, v{S+j}")
        for j in range(n):
            A(f"v_cvt_pk_bf16_f32 v{PL+j}, v{S+j}, 0")
            A(f"v_cvt_pk_bf16_f32 v{PH+j}, 0, v{S+j}")
    def pv(V, n, ACC, PL, PH):
        for j in range(n):
            for r in range(4):
                A(f"v_dot2_f32_bf16 v{ACC+2*r}, v{V+4*j+r}, v{PL+j}, v{ACC+2*r}")
                A(f"v_dot2_f32_bf16 v{ACC+2*r+1}, v{V+4*j+r}, v{PH+j}, v{ACC+2*r+1}")
    def init_state(M, LS, ACC):
        for e in range(8): A(f"v_mov_b32 v{ACC+e}, 0")
        A(f"v_mov_b32 v{M}, 0xf149f2ca")
        A(f"v_mov_b32 v{LS}, 0")
    def finalize(M, LS, ACC, T, OPK, OLSE):
        A(f"v_mov_b32 v{T+1}, v{M}")
        A(f"v_mov_b32 v{T+2}, v{M}")
        A(f"v_permlane32_swap_b32 v{T+1}, v{T+2}")
        A(f"v_max_f32 v{T+1}, v{T+1}, v{T+2}")
        A(f"v_mov_b32 v{T+2}, v{T+1}")
        A(f"v_permlane16_swap_b32 v{T+1}, v{T+2}")
        A(f"v_max_f32 v{T}, v{T+1}, v{T+2}")
        A(f"v_sub_f32 v{T+1}, v{M}, v{T}")
        A(f"v_mul_f32 v{T+1}, s7, v{T+1}")
        A(f"v_exp_f32 v{T+1}, v{T+1}")
        A(f"v_mul_f32 v{LS}, v{LS}, v{T+1}")
        for e in range(8): A(f"v_mul_f32 v{ACC+e}, v{ACC+e}, v{T+1}")
        A(f"v_mov_b32 v{T+1}, v{LS}")
        A(f"v_mov_b32 v{T+2}, v{LS}")
        for e in range(4): A(f"v_permlane32_swap_b32 v{ACC+e}, v{ACC+e+4}")
        A(f"v_permlane32_swap_b32 v{T+1}, v{T+2}")
        for e in range(4): A(f"v_add_f32 v{ACC+e}, v{ACC+e}, v{ACC+e+4}")
        A(f"v_add_f32 v{T+1}, v{T+1}, v{T+2}")
        A(f"v_mov_b32 v{T+2}, v{T+1}")
        for e in range(2): A(f"v_permlane16_swap_b32 v{ACC+e}, v{ACC+e+2}")
        A(f"v_permlane16_swap_b32 v{T+1}, v{T+2}")
        A(f"v_add_f32 v{T+3}, v{T+1}, v{T+2}")
        for e in range(2): A(f"v_add_f32 v{ACC+e}, v{ACC+e}, v{ACC+e+2}")
        A(f"v_rcp_f32 v{T+1}, v{T+3}")
        A(f"v_log_f32 v{T+2}, v{T+3}")
        A(f"v_mul_f32 v{ACC}, v{ACC}, v{T+1}")
        A(f"v_mul_f32 v{ACC+1}, v{ACC+1}, v{T+1}")
        A(f"v_fma_f32 v{OLSE}, v{T}, s7, v{T+2}")
        A(f"v_cvt_pk_bf16_f32 v{OPK}, v{ACC}, v{ACC+1}")
    def combine(G, n, OPK, OLSE=None):
        T1, T2, T3, T4 = 56, 57, 58, 59
        chain("v_max3_f32", "v_max_f32", T1, [f"v{G+4*i+2}" for i in range(n)])
        for i in range(n): A(f"v_sub_f32 v{G+4*i+2}, v{G+4*i+2}, v{T1}")
        for i in range(n): A(f"v_exp_f32 v{G+4*i+2}, v{G+4*i+2}")
        for i in range(n):
            A(f"v_lshlrev_b32 v{G+4*i+1}, 16, v{G+4*i}")
            A(f"v_and_b32 v{G+4*i+3}, 0xffff0000, v{G+4*i}")
        A(f"v_add_f32 v{T4}, v{G+2}, v{G+6}")
        A(f"v_mul_f32 v{T2}, v{G+2}, v{G+1}")
        A(f"v_mul_f32 v{T3}, v{G+2}, v{G+3}")
        for i in range(2, n): A(f"v_add_f32 v{T4}, v{T4}, v{G+4*i+2}")
        if OLSE is not None: A(f"v_log_f32 v{OLSE}, v{T4}")
        A(f"v_rcp_f32 v{T4}, v{T4}")
        for i in range(1, n):
            A(f"v_fmac_f32 v{T2}, v{G+4*i+2}, v{G+4*i+1}")
            A(f"v_fmac_f32 v{T3}, v{G+4*i+2}, v{G+4*i+3}")
        if OLSE is not None: A(f"v_add_f32 v{OLSE}, v{OLSE}, v{T1}")
        A(f"v_mul_f32 v{T2}, v{T2}, v{T4}")
        A(f"v_mul_f32 v{T3}, v{T3}, v{T4}")
        A(f"v_cvt_pk_bf16_f32 v{OPK}, v{T2}, v{T3}")
    def poll_masked(n, issue1, tagregs, sleep, mbase=64, extra=None):
        top, done = lab("pk"), lab("pkdone")
        A(f"s_mov_b32 s42, {spin}")
        for i in range(n): A(f"s_mov_b64 s[{mbase+2*i}:{mbase+2*i+1}], -1")
        A.label(top)
        for i in range(n):
            A(f"s_mov_b64 exec, s[{mbase+2*i}:{mbase+2*i+1}]")
            issue1(i)
        A("s_mov_b64 exec, -1")
        if extra: extra[0]()
        A("s_waitcnt vmcnt(0) lgkmcnt(0)" if extra else "s_waitcnt vmcnt(0)")
        for i in range(n):
            tr = tagregs(i)
            A(f"v_cmp_ne_u32 s[{mbase+2*i}:{mbase+2*i+1}], s6, v{tr[0]}")
            for r in tr[1:]:
                A(f"v_cmp_ne_u32 vcc, s6, v{r}")
                A(f"s_or_b64 s[{mbase+2*i}:{mbase+2*i+1}], s[{mbase+2*i}:{mbase+2*i+1}], vcc")
            if i == 0: A(f"s_mov_b64 s[40:41], s[{mbase}:{mbase+1}]")
            else: A(f"s_or_b64 s[40:41], s[40:41], s[{mbase+2*i}:{mbase+2*i+1}]")
        A("s_cmp_eq_u64 s[40:41], 0")
        A(f"s_cbranch_scc1 {done}")
        if extra: extra[1]()
        elif sleep: A(f"s_sleep {sleep}")
        A("s_sub_u32 s42, s42, 1")
        A("s_cmp_lg_u32 s42, 0")
        A(f"s_cbranch_scc1 {top}")
        A.label(done)
    def flag_add(addr_v, off=0):
        A("s_mov_b64 exec, 1")
        A(f"ds_add_u32 v{addr_v}, v63 offset:{off}")
        A("s_mov_b64 exec, -1")
    def flag_wait(addr_v, off, target, tmp_v, sleep):
        top, done = lab("fw"), lab("fwdone")
        A(f"s_mov_b32 s42, {spin*16}")
        A.label(top)
        A(f"ds_read_b32 v{tmp_v}, v{addr_v} offset:{off}")
        A("s_waitcnt lgkmcnt(0)")
        A(f"v_readfirstlane_b32 s47, v{tmp_v}")
        A(f"s_cmp_ge_u32 s47, {target}")
        A(f"s_cbranch_scc1 {done}")
        if sleep: A(f"s_sleep {sleep}")
        A("s_sub_u32 s42, s42, 1")
        A("s_cmp_lg_u32 s42, 0")
        A(f"s_cbranch_scc1 {top}")
        A.label(done)
    def mktag():
        A("s_mul_i32 s6, s6, 0x9e3779b1")
        A("s_add_u32 s6, s6, 0x7f4a7c15")

    A.label(NAME)
    A("s_cmp_ge_u32 s2, 256")
    A("s_cbranch_scc1 L_end")
    for i in range(stamps): stamp(i)
    A("s_load_dwordx16 s[64:79], s[0:1], 0")
    A("s_load_dwordx8 s[80:87], s[0:1], 64")
    A("s_load_dwordx2 s[88:89], s[0:1], 96")
    A("v_lshrrev_b32 v1, 6, v0")
    A("v_readfirstlane_b32 s3, v1")
    A("v_and_b32 v1, 63, v0")
    A("s_lshr_b32 s4, s2, 3")
    A("s_and_b32 s5, s2, 7")
    if rot:
        A(f"s_mul_i32 s7, s5, {rot}")
        A("s_add_u32 s4, s4, s7")
        A("s_and_b32 s4, s4, 31")
    A(f"s_mov_b32 s7, {hex(CEXP)}")
    A("v_lshlrev_b32 v2, 4, v1")
    A(f"v_mov_b32 v62, {L_FL}")
    A("v_mov_b32 v63, 1")
    A(f"s_and_b32 s62, s5, {8//NBW-1}")
    A(f"s_cmp_eq_u32 s62, {JB}")
    A("s_cselect_b32 s62, 1, 0")
    A("s_waitcnt lgkmcnt(0)")
    A("s_load_dword s6, s[88:89], 0")
    srdp(24, "ws", 0x40000000)
    A("s_cmp_ge_u32 s3, 4")
    A("s_cbranch_scc1 L_stream")

    A("s_lshr_b32 s33, s5, 2")
    A("s_bfe_u32 s34, s5, 0x10001")
    A("s_and_b32 s35, s5, 1")
    A("s_cmp_eq_u32 s33, 0")
    A(f"s_cselect_b32 s36, s{P['A_wq']}, s{P['B_wq']}")
    A(f"s_cselect_b32 s37, s{P['A_wq']+1}, s{P['B_wq']+1}")
    A(f"s_cselect_b32 s38, s{P['A_x']}, s{P['B_x']}")
    A(f"s_cselect_b32 s39, s{P['A_x']+1}, s{P['B_x']+1}")
    srd(12, 36, 37, 0x800000)
    srd(8, 38, 39, 8192)
    A("v_lshrrev_b32 v3, 3, v1")
    A("v_lshlrev_b32 v3, 13, v3")
    A("v_and_b32 v4, 7, v1")
    A("v_lshl_add_u32 v3, v4, 4, v3")
    A("s_lshl_b32 s43, s35, 9")
    A("s_lshl_b32 s44, s3, 7")
    A("s_add_u32 s43, s43, s44")
    A("s_lshl_b32 s43, s43, 13")
    A("s_lshl_b32 s44, s4, 8")
    A("s_add_u32 s43, s43, s44")
    A("s_lshl_b32 s44, s34, 7")
    A("s_add_u32 s43, s43, s44")
    A("s_lshl_b32 s44, s3, 14")
    for u in range(16):
        A("s_mov_b32 m0, s44")
        A("buffer_load_dwordx4 v3, s[12:15], s43 offen nt lds")
        if u < 15:
            A("s_add_u32 s43, s43, 0x10000")
            A("s_add_u32 s44, s44, 1024")
    XF = 64
    A("v_and_b32 v4, 15, v1")
    A("v_lshlrev_b32 v4, 11, v4")
    A("v_lshrrev_b32 v5, 4, v1")
    A("v_lshl_add_u32 v4, v5, 4, v4")
    A("s_lshl_b32 s43, s35, 10")
    for ks in range(16):
        A(f"buffer_load_dwordx4 v[{XF+4*ks}:{XF+4*ks+3}], v4, s[8:11], s43 offen offset:{ks*64}")
    A("v_mov_b32 v7, 0")
    A("v_lshl_add_u32 v6, v1, 2, v62")
    A("s_mov_b64 exec, 0xffff")
    A("ds_write_b32 v6, v7")
    A("s_mov_b64 exec, -1")
    A("s_or_b32 s43, s5, s3")
    A("s_cmp_lg_u32 s43, 0")
    A("s_cbranch_scc1 L_noinit")
    A("v_lshlrev_b32 v6, 13, v1")
    A("s_lshl_b32 s43, s4, 8")
    A(f"s_add_u32 s43, s43, {hex(W_CNT)}")
    A("s_mov_b64 exec, 15")
    A("buffer_store_dword v7, v6, s[24:27], s43 offen sc1")
    A("s_mov_b64 exec, -1")
    A.label("L_noinit")
    A("s_waitcnt lgkmcnt(0)")
    A("s_barrier")
    srdp(16, "B_k", 0x2000000)
    srdp(20, "B_v", 0x2000000)
    srdp(28, "out", 16384)
    if woh:
        srdp(8, "A_wo", 0x800000)
        srdp(12, "B_wo", 0x800000)
    A("v_lshrrev_b32 v5, 4, v1")
    A("v_lshlrev_b32 v5, 3, v5")
    A("v_bfe_u32 v6, v1, 2, 2")
    A("v_add_u32 v5, v5, v6")
    A("v_and_b32 v6, 3, v1")
    A("v_lshlrev_b32 v6, 3, v6")
    A("v_lshl_add_u32 v8, v5, 7, v6")
    A("v_lshl_add_u32 v9, v5, 8, v6")
    A("s_lshl_b32 s43, s3, 5")
    A("v_add_u32 v8, s43, v8")
    A("v_bfe_u32 v5, v1, 2, 3")
    A("s_lshl_b32 s43, s3, 1")
    A("v_xor_b32 v5, s43, v5")
    A("v_lshl_add_u32 v9, v5, 5, v9")
    A(f"v_add_u32 v9, {L_WO}, v9")

    mktag()
    A("v_and_b32 v4, 3, v1")
    A("v_lshlrev_b32 v4, 10, v4")
    A("v_lshrrev_b32 v5, 4, v1")
    A("v_lshl_add_u32 v4, v5, 5, v4")
    A("v_and_b32 v5, 4, v1")
    A("v_lshl_add_u32 v4, v5, 2, v4")
    A("s_lshl_b32 s43, s33, 5")
    A("s_add_u32 s43, s43, s4")
    A("s_lshl_b32 s43, s43, 1")
    A("s_add_u32 s43, s43, s35")
    A("s_lshl_b32 s43, s43, 12")
    A("s_lshl_b32 s44, s34, 9")
    A("s_add_u32 s43, s43, s44")
    A("s_lshl_b32 s44, s3, 7")
    A("s_add_u32 s43, s43, s44")
    A(f"s_add_u32 s43, s43, {hex(W_QP)}")
    for r in (21, 23): A(f"v_mov_b32 v{r}, s6")
    A("s_mov_b32 s56, 0x00ff00ff")
    A("s_mov_b32 s57, 0x00ff00ff")
    A("s_waitcnt vmcnt(0)")
    flag_add(62, 0)
    flag_wait(62, 0, 4, 10, 0)
    stamp("h1")
    WF = 128
    for ks in range(16):
        A(f"ds_read_b64_tr_b16 v[{WF+4*ks}:{WF+4*ks+1}], v8 offset:{ks*4096}")
        A(f"ds_read_b64_tr_b16 v[{WF+4*ks+2}:{WF+4*ks+3}], v8 offset:{ks*4096+512}")
    for ks in range(16):
        A(f"s_waitcnt lgkmcnt({min(15, 2*(15-ks))})")
        d = 12 + 4 * (ks & 1)
        c = "0" if ks < 2 else f"v[{d}:{d+3}]"
        A(f"v_mfma_f32_16x16x32_bf16 v[{d}:{d+3}], v[{WF+4*ks}:{WF+4*ks+3}], v[{XF+4*ks}:{XF+4*ks+3}], {c}")
    for r in range(4): A(f"v_add_f32 v{20+2*r}, v{12+r}, v{16+r}")
    A("v_mov_b32_dpp v20, v24 row_shr:4 row_mask:0xf bank_mask:0x2")
    A("v_mov_b32_dpp v22, v26 row_shr:4 row_mask:0xf bank_mask:0x2")
    A("s_mov_b64 exec, s[56:57]")
    A("buffer_store_dwordx4 v[20:23], v4, s[24:27], s43 offen sc1")
    A("s_mov_b64 exec, -1")
    stamp("h2")
    A("s_lshl_b32 s43, s4, 13")
    A("s_lshl_b32 s44, s3, 10")
    A("s_add_u32 s43, s43, s44")
    A(f"s_add_u32 s43, s43, {hex(W_QP)}")
    A("s_add_u32 s44, s43, 4096")
    A("s_lshl_b32 s45, s3, 8")
    A(f"s_add_u32 s45, s45, {L_QA}")
    A("v_lshl_add_u32 v10, v1, 2, s45")
    poll_masked(2, lambda i: A(f"buffer_load_dwordx4 v[{28+4*i}:{31+4*i}], v2, s[24:27], s{43+i} offen sc1"),
                lambda i: [29 + 4 * i, 31 + 4 * i], qsl)
    A("v_add_f32 v28, v28, v32")
    A("v_add_f32 v30, v30, v34")
    A("v_cvt_pk_bf16_f32 v28, v28, v30")
    A("ds_write_b32 v10, v28")
    A("s_waitcnt lgkmcnt(0)")
    A("s_barrier")
    stamp("h3")
    if 1 in ab: A("s_branch L_hend")
    A("s_cmp_eq_u32 s62, 0")
    A("s_cbranch_scc1 L_noB")

    lgNP = {2: 1, 4: 2}[NP]
    if NBW == 1: A("s_mov_b32 s58, s4")
    else:
        A("s_lshl_b32 s58, s4, 1")
        A("s_lshr_b32 s59, s5, 2")
        A("s_add_u32 s58, s58, s59")
    A(f"s_lshr_b32 s59, s58, {lgNP}")
    A(f"s_and_b32 s58, s58, {NP-1}")
    A("s_lshl_b32 s60, s59, 21")
    A(f"s_mul_i32 s61, s58, {2048//NP*256}")
    A("s_add_u32 s60, s60, s61")
    A("s_lshl_b32 s61, s3, 12")
    A("s_add_u32 s60, s60, s61")
    A(f"s_add_u32 s60, s60, {6144*256}")
    A("s_and_b32 s48, s59, 3")
    A("s_lshl_b32 s48, s48, 3")
    A("s_lshl_b32 s49, s3, 1")
    A("s_add_u32 s48, s48, s49")
    A("s_add_u32 s49, s48, 32")
    A("s_lshl_b32 s49, s49, 13")
    A("s_lshr_b32 s61, s59, 2")
    A("s_lshl_b32 s50, s61, 10")
    A("s_add_u32 s49, s49, s50")
    A(f"s_add_u32 s49, s49, {hex(W_QP)}")
    A("s_add_u32 s50, s49, 4096")
    A("s_add_u32 s51, s49, 8192")
    A("s_add_u32 s52, s49, 12288")
    poll_masked(4, lambda i: A(f"buffer_load_dwordx4 v[{28+4*i}:{31+4*i}], v2, s[24:27], s{49+i} offen sc1"),
                lambda i: [29 + 4 * i, 31 + 4 * i], 16)
    KB = 64
    def bload(par):
        for u in range(4):
            A(f"buffer_load_dwordx4 v[{KB+32*par+4*u}:{KB+32*par+4*u+3}], v2, s[16:19], s60 offen offset:{u*1024} nt")
        for u in range(4):
            A(f"buffer_load_dwordx4 v[{KB+32*par+16+4*u}:{KB+32*par+16+4*u+3}], v2, s[20:23], s60 offen offset:{u*1024} nt")
        A("s_add_u32 s60, s60, 0x4000")
    bload(0); bload(1)
    A("v_add_f32 v28, v28, v32")
    A("v_add_f32 v30, v30, v34")
    A("v_add_f32 v36, v36, v40")
    A("v_add_f32 v38, v38, v42")
    A("v_cvt_pk_bf16_f32 v28, v28, v30")
    A("v_cvt_pk_bf16_f32 v36, v36, v38")
    A("s_lshl_b32 s43, s3, 9")
    A(f"s_add_u32 s43, s43, {L_QB}")
    A("v_lshl_add_u32 v10, v1, 2, s43")
    A("ds_write_b32 v10, v28")
    A("ds_write_b32 v10, v36 offset:256")
    A("s_waitcnt lgkmcnt(0)")
    flag_add(62, 4)
    flag_wait(62, 4, 4, 10, 1)
    A("v_and_b32 v11, 0xf0, v2")
    A(f"v_add_u32 v11, {L_QB}, v11")
    QB = 128
    for hh in range(8):
        A(f"ds_read_b128 v[{QB+4*hh}:{QB+4*hh+3}], v11 offset:{hh*256}")
    SB = 160
    def bs(hh): return dict(M=SB + 10 * hh, LS=SB + 10 * hh + 1, ACC=SB + 10 * hh + 2)
    for hh in range(8):
        st = bs(hh); init_state(st["M"], st["LS"], st["ACC"])
    A(f"s_mov_b32 s45, {BT//2}")
    A("s_waitcnt lgkmcnt(0)")
    A.label("L_battn")
    for par in range(2):
        A("s_waitcnt vmcnt(8)")
        for hh in range(8):
            st = bs(hh)
            o = 20 * (hh & 1)
            S_, AL_, NM_, PL_, PH_ = 12 + o, 16 + o, 17 + o, 20 + o, 24 + o
            scores(KB + 32 * par, QB + 4 * hh, S_, 4)
            softmax(S_, 4, st["M"], st["LS"], st["ACC"], AL_, NM_, PL_, PH_)
            pv(KB + 32 * par + 16, 4, st["ACC"], PL_, PH_)
        if par == 0:
            A("s_cmp_eq_u32 s45, 1")
            A("s_cselect_b32 s60, 0x2000000, s60")
        bload(par)
    A("s_sub_u32 s45, s45, 1")
    A("s_cmp_lg_u32 s45, 0")
    A("s_cbranch_scc1 L_battn")
    A("v_and_b32 v4, 15, v1")
    A("v_lshlrev_b32 v4, 5, v4")
    A("v_lshrrev_b32 v5, 4, v1")
    A("v_lshl_add_u32 v4, v5, 3, v4")
    A("s_lshl_b32 s43, s3, 12")
    A("v_add_u32 v4, s43, v4")
    for hh in range(8):
        st = bs(hh)
        o = 8 * (hh & 1)
        finalize(st["M"], st["LS"], st["ACC"], 12 + o, 17 + o, 16 + o)
        A(f"ds_write_b64 v4, v[{16+o}:{17+o}] offset:{hh*512}")
    A("s_waitcnt lgkmcnt(0)")
    flag_add(62, 12)
    flag_wait(62, 12, 4, 10, 1)
    A("s_waitcnt vmcnt(0)")
    A("s_lshl_b32 s43, s3, 10")
    A("v_lshl_add_u32 v4, v1, 3, s43")
    A("s_lshl_b32 s43, s48, 2")
    A("s_add_u32 s43, s43, s61")
    A(f"s_lshl_b32 s43, s43, {lgNP}")
    A("s_add_u32 s43, s43, s58")
    A("s_lshl_b32 s43, s43, 10")
    A(f"s_add_u32 s43, s43, {hex(W_PB)}")
    A(f"s_add_u32 s44, s43, {4*NP*1024}")
    G = 64
    for k in range(2):
        for w_ in range(4):
            A(f"ds_read_b64 v[{G+16*k+4*w_+2}:{G+16*k+4*w_+3}], v4 offset:{w_*4096+k*512}")
    A("s_waitcnt lgkmcnt(0)")
    for k in range(2):
        for w_ in range(4): A(f"v_mov_b32 v{G+16*k+4*w_}, v{G+16*k+4*w_+3}")
        A(f"v_mov_b32 v{13+4*k}, s6")
        A(f"v_mov_b32 v{15+4*k}, s6")
        combine(G + 16 * k, 4, 12 + 4 * k, 14 + 4 * k)
        A(f"buffer_store_dwordx4 v[{12+4*k}:{15+4*k}], v2, s[24:27], s{43+k} offen {bst}")
    stamp("h4")
    A.label("L_noB")
    if 2 in ab: A("s_branch L_hend")

    FR = [128, 160]
    def wofrag(T_):
        for ct in range(2):
            for ks in range(4):
                r = FR[T_] + (ct * 4 + ks) * 4
                off = T_ * 32768 + ks * 8192
                ar = 3 if ct else 9
                A(f"ds_read_b64_tr_b16 v[{r}:{r+1}], v{ar} offset:{off}")
                A(f"ds_read_b64_tr_b16 v[{r+2}:{r+3}], v{ar} offset:{off+1024}")
    A("v_xor_b32 v3, 32, v9")
    WE = [T_ for T_ in range(2) if T_ >= wolate]
    WL = [T_ for T_ in range(2) if T_ < wolate]
    if WE:
        flag_wait(62, 8, 4, 56, 8)
        for T_ in WE: wofrag(T_)
    G = 64
    A("s_lshl_b32 s43, s3, 8")
    A(f"s_add_u32 s43, s43, {L_OA}")
    A("v_lshl_add_u32 v60, v1, 2, s43")
    A("v_and_b32 v6, 3, v1")
    A("v_lshlrev_b32 v6, 8, v6")
    A("v_lshrrev_b32 v7, 4, v1")
    A("v_lshl_add_u32 v6, v7, 4, v6")
    A(f"v_add_u32 v6, {L_OA}, v6")
    A("v_and_b32 v8, 3, v1")
    A("v_lshlrev_b32 v8, 14, v8")
    A("v_lshl_add_u32 v8, v7, 4, v8")
    A("v_and_b32 v7, 4, v1")
    A("v_lshl_add_u32 v8, v7, 4, v8")
    A("s_lshl_b32 s52, s5, 4")
    A("s_add_u32 s52, s52, s3")
    A("s_lshl_b32 s52, s52, 12")
    A("s_lshl_b32 s53, s4, 7")
    A("s_add_u32 s52, s52, s53")
    A(f"s_add_u32 s52, s52, {hex(W_Y)}")
    A("s_add_u32 s53, s52, 0x80000")
    for r in (21, 23, 29, 31): A(f"v_mov_b32 v{r}, s6")
    A("s_bfe_u32 s60, s4, 0x20002")
    A("s_lshl_b32 s60, s60, 12")
    A("s_lshl_b32 s44, s5, 8")
    A("s_add_u32 s60, s60, s44")
    A("s_and_b32 s44, s4, 3")
    A("s_lshl_b32 s44, s44, 6")
    A("s_add_u32 s60, s60, s44")
    A("s_lshr_b32 s44, s4, 4")
    A("s_lshl_b32 s45, s44, 11")
    A("s_add_u32 s60, s60, s45")
    A("v_lshlrev_b32 v11, 3, v1")
    A("s_lshl_b32 s61, s5, 4")
    A("s_and_b32 s45, s4, 15")
    A("s_add_u32 s61, s61, s45")
    A("s_lshl_b32 s61, s61, 12")
    A("s_lshl_b32 s44, s44, 19")
    A("s_add_u32 s61, s61, s44")
    A(f"s_add_u32 s61, s61, {hex(W_Y)}")
    A("s_lshl_b32 s43, s3, 2")
    A("v_add_u32 v10, s43, v62")
    A("s_lshl_b32 s45, s4, 2")
    A("s_add_u32 s45, s45, s3")
    A(f"s_mul_i32 s46, s45, {NP*1024}")
    A(f"s_add_u32 s46, s46, {hex(W_PB)}")
    A("s_lshl_b32 s45, s45, 13")
    A(f"s_add_u32 s45, s45, {hex(W_PA)}")
    for i in range(7):
        A(f"s_add_u32 s44, s5, {i+1}")
        A("s_and_b32 s44, s44, 7")
        A("s_lshl_b32 s44, s44, 10")
        A(f"s_add_u32 s{80+i}, s45, s44")
    A("s_lshl_b32 s44, s3, 9")
    A(f"s_add_u32 s44, s44, {L_OWN}")
    A("s_waitcnt lgkmcnt(0)")
    A("v_lshl_add_u32 v5, v1, 3, s44")
    if woh:
        A("v_lshrrev_b32 v36, 4, v1")
        A("v_and_b32 v37, 0xf0, v2")
        A("v_lshlrev_b32 v38, 5, v36")
        A("v_xor_b32 v38, v38, v37")
        A("v_lshl_add_u32 v36, v36, 11, v38")
        A("v_xor_b32 v37, 0x80, v36")
        A("s_lshl_b32 s34, s4, 18")
        A("s_lshl_b32 s35, s3, 16")
        A("s_add_u32 s34, s34, s35")
        A("s_lshl_b32 s35, s5, 8")
        A("s_add_u32 s34, s34, s35")
        A("s_lshl_b32 s35, s3, 13")
        A(f"s_add_u32 s35, s35, {L_WO}")
    flag_wait(10, 16, 1, 56, esl)
    stamp("h5")
    if woh:
        for T_ in WL:
            for u in range(8):
                A(f"s_add_u32 s37, s35, {T_*32768+u*1024}")
                A("s_mov_b32 m0, s37")
                A(f"s_add_u32 s39, s34, {u*8192}")
                A(f"buffer_load_dwordx4 v{37 if (u>>1)&1 else 36}, s[{8+4*T_}:{11+4*T_}], s39 offen nt lds")
    if touch:
        A("v_mov_b32 v56, 0")
        A(f"s_mov_b32 s44, {hex(W_Y + 0x1ff000)}")
        A(f"s_mov_b32 s45, {hex(W_PA - 0x1000)}")
        A("s_mov_b64 exec, 1")
        A("buffer_load_dword v57, v56, s[24:27], s44 offen nt")
        A("buffer_load_dword v58, v56, s[24:27], s45 offen nt")
        A("buffer_load_dword v59, v56, s[28:31], s60 offen nt")
        A("s_mov_b64 exec, -1")
    poll_masked(NP, lambda i: A(f"buffer_load_dwordx4 v[{G+4*i}:{G+4*i+3}], v2, s[24:27], s46 offen offset:{i*1024} {bld}"),
                lambda i: [G + 4 * i + 1, G + 4 * i + 3], 16)
    if woh: flag_add(62, 32)
    combine(G, NP, 61)
    A("ds_write_b32 v60, v61 offset:1024")
    if not early: flag_wait(10, 48, 2, 56, 0)
    else: flag_wait(10, 48, 1, 56, 2)
    stamp("h6")
    if early:
        def ex0(): A("ds_read_b32 v56, v10 offset:48")
        def ex1():
            nosl = lab("nosl")
            A("v_readfirstlane_b32 s47, v56")
            A("s_cmp_ge_u32 s47, 2")
            A(f"s_cbranch_scc1 {nosl}")
            A(f"s_sleep {psl}")
            A.label(nosl)
        extra = (ex0, ex1)
    else:
        A(f"ds_read_b64 v[{G+30}:{G+31}], v5")
        extra = None
    poll_masked(7, lambda i: A(f"buffer_load_dwordx4 v[{G+4*i}:{G+4*i+3}], v2, s[24:27], s{80+i} offen {ald}"),
                lambda i: [G + 4 * i + 1, G + 4 * i + 3], pasl, extra=extra)
    if early:
        flag_wait(10, 48, 2, 56, 0)
        A(f"ds_read_b64 v[{G+30}:{G+31}], v5")
    A("s_waitcnt lgkmcnt(0)")
    A(f"v_mov_b32 v{G+28}, v{G+31}")
    stamp("h7")
    if WL:
        flag_wait(62, 32, 4, 56, 0)
        stamp("h7b")
        for T_ in WL: wofrag(T_)
    if stamps and "hc" in hst:
        k = 1 + list(hst).index("hc")
        A("s_waitcnt lgkmcnt(0)")
        A(f"s_sub_u32 s44, {spin}, s42")
        A("s_mul_i32 s44, s44, 100")
        A(f"s_add_u32 s{90+2*k}, s90, s44")
        A(f"s_addc_u32 s{91+2*k}, s91, 0")
    combine(G, 8, 61)
    A("ds_write_b32 v60, v61")
    A("s_waitcnt lgkmcnt(0)")
    A("s_barrier")
    OFR = [40, 96]
    DD = [12, 112]
    for T_ in range(2):
        for ks in range(4):
            A(f"ds_read_b128 v[{OFR[T_]+4*ks}:{OFR[T_]+4*ks+3}], v6 offset:{T_*1024+ks*64}")
    for T_ in range(2):
        for ks in range(4):
            A(f"s_waitcnt lgkmcnt({7-4*T_-ks})")
            for ct in range(2):
                d = DD[T_] + 4 * ct
                r = FR[T_] + (ct * 4 + ks) * 4
                c = "0" if ks == 0 else f"v[{d}:{d+3}]"
                A(f"v_mfma_f32_16x16x32_bf16 v[{d}:{d+3}], v[{r}:{r+3}], v[{OFR[T_]+4*ks}:{OFR[T_]+4*ks+3}], {c}")
    for T_ in range(2):
        y, d = 20 + 8 * T_, DD[T_]
        A(f"v_cvt_pk_bf16_f32 v{y}, v{d}, v{d+1}")
        A(f"v_cvt_pk_bf16_f32 v{y+2}, v{d+2}, v{d+3}")
        A(f"v_cvt_pk_bf16_f32 v{y+4}, v{d+4}, v{d+5}")
        A(f"v_cvt_pk_bf16_f32 v{y+6}, v{d+6}, v{d+7}")
        A(f"v_mov_b32_dpp v{y}, v{y+4} row_shr:4 row_mask:0xf bank_mask:0x2")
        A(f"v_mov_b32_dpp v{y+2}, v{y+6} row_shr:4 row_mask:0xf bank_mask:0x2")
        A("s_mov_b64 exec, s[56:57]")
        A(f"buffer_store_dwordx4 v[{y}:{y+3}], v8, s[24:27], s{52+T_} offen {ast}")
        A("s_mov_b64 exec, -1")
    stamp("h8")
    A("s_cmp_lg_u32 s3, 0")
    A("s_cbranch_scc1 L_hend")
    poll_masked(4, lambda i: A(f"buffer_load_dwordx4 v[{G+4*i}:{G+4*i+3}], v2, s[24:27], s61 offen offset:{i*1024} {ald}"),
                lambda i: [G + 4 * i + 1, G + 4 * i + 3], ysl)
    stamp("h9")
    U = G + 16
    for i in range(4):
        A(f"v_lshlrev_b32 v{U+4*i}, 16, v{G+4*i}")
        A(f"v_and_b32 v{U+4*i+1}, 0xffff0000, v{G+4*i}")
        A(f"v_lshlrev_b32 v{U+4*i+2}, 16, v{G+4*i+2}")
        A(f"v_and_b32 v{U+4*i+3}, 0xffff0000, v{G+4*i+2}")
    for k in range(4):
        A(f"v_add_f32 v{U+k}, v{U+k}, v{U+4+k}")
        A(f"v_add_f32 v{U+8+k}, v{U+8+k}, v{U+12+k}")
    for k in range(4):
        A(f"v_add_f32 v{U+k}, v{U+k}, v{U+8+k}")
    A(f"v_permlane32_swap_b32 v{U}, v{U+2}")
    A(f"v_permlane32_swap_b32 v{U+1}, v{U+3}")
    A(f"v_add_f32 v{U}, v{U}, v{U+2}")
    A(f"v_add_f32 v{U+1}, v{U+1}, v{U+3}")
    A(f"v_add_f32_dpp v{U}, v{U}, v{U} row_ror:8 row_mask:0xf bank_mask:0xf")
    A(f"v_add_f32_dpp v{U+1}, v{U+1}, v{U+1} row_ror:8 row_mask:0xf bank_mask:0xf")
    A(f"v_mov_b32 v{U+2}, v{U}")
    A(f"v_mov_b32 v{U+3}, v{U+1}")
    A(f"v_permlane16_swap_b32 v{U}, v{U+2}")
    A(f"v_permlane16_swap_b32 v{U+1}, v{U+3}")
    A(f"v_add_f32 v{U}, v{U}, v{U+2}")
    A(f"v_add_f32 v{U+1}, v{U+1}, v{U+3}")
    A(f"v_cvt_pk_bf16_f32 v{U+4}, v{U}, v{U+1}")
    A(f"v_mov_b32 v{U+5}, v{U+4}")
    A(f"v_permlane32_swap_b32 v{U+4}, v{U+5}")
    A("s_mov_b64 exec, 0xff")
    A(f"buffer_store_dwordx2 v[{U+4}:{U+5}], v11, s[28:31], s60 offen")
    A("s_mov_b64 exec, -1")
    A("s_cmp_lg_u32 s2, 0")
    A("s_cbranch_scc1 L_hend")
    A("v_mov_b32 v3, 0")
    A("v_mov_b32 v4, s6")
    A("s_mov_b64 exec, 1")
    A("buffer_store_dword v4, v3, s[24:27], 0 offen")
    A("s_mov_b64 exec, -1")
    A.label("L_hend")
    stamp_store(240)
    A("s_endpgm")

    A.label("L_stream")
    srdp(8, "A_k", 0x10000000)
    srdp(12, "A_v", 0x10000000)
    srdp(16, "A_wo", 0x800000)
    srdp(20, "B_wo", 0x800000)
    A("s_sub_u32 s33, s3, 4")
    A("v_lshrrev_b32 v3, 4, v1")
    A("v_and_b32 v4, 0xf0, v2")
    A("v_lshlrev_b32 v44, 5, v3")
    A("v_xor_b32 v44, v44, v4")
    A("v_lshl_add_u32 v3, v3, 11, v44")
    A("v_xor_b32 v44, 0x80, v3")
    A("s_lshl_b32 s34, s4, 18")
    A("s_lshl_b32 s35, s33, 16")
    A("s_add_u32 s34, s34, s35")
    A("s_lshl_b32 s35, s5, 8")
    A("s_add_u32 s34, s34, s35")
    A("s_lshl_b32 s35, s33, 13")
    A(f"s_add_u32 s35, s35, {L_WO}")
    A("s_lshl_b32 s38, s33, 5")
    A("s_add_u32 s38, s38, s4")
    A("s_lshl_b32 s39, s38, 8")
    A(f"s_add_u32 s39, s39, {hex(W_CNT)}")
    A(f"s_add_u32 s52, s{P['ws']}, s39")
    A(f"s_addc_u32 s53, s{P['ws']+1}, 0")
    A("s_lshl_b32 s38, s38, 21")
    A(f"s_mul_i32 s29, s5, {CSB}")
    A("s_add_u32 s29, s29, s38")
    A("s_mov_b32 s30, s29")
    A(f"s_add_u32 s28, s38, {ns*NWP*CSB - NSK*CSB}")
    A(f"s_add_u32 s36, s38, {(JB + 8*(ns-ksk))*CSB}")
    Q, ACC, M, LS, AL, NM = 8, 12, 20, 21, 22, 23
    S = 24; PL = S + tl; PH = PL + tl
    R0 = 64
    def kbuf(t): return R0 + (t % TD) * 32
    def vbuf(t): return R0 + (t % TD) * 32 + 16
    def load(r, sd):
        for j in range(tl):
            A(f"buffer_load_dwordx4 v[{r+4*j}:{r+4*j+3}], v2, {sd}, s30 offen offset:{j*1024} {kp if sd == 's[8:11]' else vp}")
    A("s_barrier")
    for t in range(TD):
        load(kbuf(t), "s[8:11]"); load(vbuf(t), "s[12:15]")
        A("s_add_u32 s30, s30, 4096")
    def wodma(T_):
        for u in range(8):
            A(f"s_add_u32 s37, s35, {T_*32768+u*1024}")
            A("s_mov_b32 m0, s37")
            A(f"s_add_u32 s39, s34, {u*8192}")
            A(f"buffer_load_dwordx4 v{44 if (u>>1)&1 else 3}, s[{16+4*T_}:{19+4*T_}], s39 offen nt lds")
    for T_ in WE: wodma(T_)
    NE = 8 * len(WE)
    init_state(M, LS, ACC)
    A("s_waitcnt lgkmcnt(0)")
    mktag()
    A("s_lshl_b32 s43, s33, 8")
    A(f"s_add_u32 s43, s43, {L_QA}")
    A("v_add_u32 v4, s43, v4")
    A(f"v_mov_b32 v7, {L_FL}")
    A("s_lshl_b32 s43, s33, 2")
    A("v_add_u32 v62, s43, v62")
    A("v_and_b32 v5, 15, v1")
    A("v_lshlrev_b32 v5, 6, v5")
    A("v_lshrrev_b32 v6, 4, v1")
    A("v_lshl_add_u32 v5, v6, 4, v5")
    A("s_lshl_b32 s43, s33, 9")
    A(f"s_add_u32 s43, s43, {L_OWN}")
    A("v_lshrrev_b32 v6, 1, v5")
    A("v_add_u32 v6, s43, v6")
    A("s_lshl_b32 s43, s4, 2")
    A("s_add_u32 s43, s43, s33")
    A("s_lshl_b32 s43, s43, 3")
    A("s_add_u32 s43, s43, s5")
    A("s_lshl_b32 s43, s43, 10")
    A(f"s_add_u32 s43, s43, {hex(W_PA)}")
    A("v_mov_b32 v41, s6")
    A("v_mov_b32 v43, s6")
    A(f"s_mov_b32 s31, {CS-TD}")
    A("s_cmp_eq_u32 s62, 0")
    A(f"s_cselect_b32 s51, {ns-1}, {ns-1-ksk}")
    A("s_mov_b32 s54, 0")
    A("s_mov_b32 s55, 0x7fffffff")
    stamp("s1")
    A("s_barrier")
    stamp("s2")
    A(f"ds_read_b128 v[{Q}:{Q+3}], v4")
    A("s_waitcnt lgkmcnt(0)")
    def claim():
        A("s_mov_b32 s50, 1")
        A("s_atomic_add s50, s[52:53], 0 glc")
    def nextchunk():
        go, dyn, exh, ne = lab("go"), lab("dyn"), lab("exh"), lab("ne")
        A("s_cmp_lg_u32 s31, 0")
        A(f"s_cbranch_scc1 {go}")
        A(f"s_mov_b32 s31, {CS}")
        A("s_cmp_eq_u32 s51, 0")
        A(f"s_cbranch_scc1 {dyn}")
        A(f"s_add_u32 s29, s29, {NWP*CSB}")
        A("s_mov_b32 s30, s29")
        A("s_sub_u32 s51, s51, 1")
        A("s_cmp_lg_u32 s51, 0")
        A(f"s_cbranch_scc1 {go}")
        claim()
        A(f"s_branch {go}")
        A.label(dyn)
        A("s_waitcnt lgkmcnt(0)")
        A(f"s_cmp_ge_u32 s50, {NDYN}")
        A(f"s_cbranch_scc1 {exh}")
        A(f"s_mul_i32 s30, s50, {CSB}")
        A("s_add_u32 s30, s30, s28")
        A(f"s_mul_i32 s37, s50, {8//NBW*CSB}")
        A("s_add_u32 s37, s37, s36")
        A(f"s_cmp_lt_u32 s50, {NSK}")
        A("s_cselect_b32 s30, s37, s30")
        A(f"s_cmp_lt_u32 s50, {max(0, NDYN-wox)}")
        A(f"s_cbranch_scc1 {ne}")
        flag_add(62, 16)
        A.label(ne)
        claim()
        A(f"s_branch {go}")
        A.label(exh)
        A("s_mov_b32 s30, 0x10000000")
        A("s_mov_b32 s31, 0x7fffffff")
        A(f"s_mov_b32 s55, {TD}")
        flag_add(62, 16)
        flag_add(62, 48)
        stamp("s3")
        A.label(go)
        A("s_sub_u32 s31, s31, 1")
    W = (2 * TD - 1) * tl
    def round_(first):
        for t in range(TD):
            nextchunk()
            ex = NE if first else 0
            A(f"s_waitcnt vmcnt({W+ex})")
            scores(kbuf(t), Q, S, tl)
            load(kbuf(t), "s[8:11]")
            softmax(S, tl, M, LS, ACC, AL, NM, PL, PH)
            A(f"s_waitcnt vmcnt({W+ex})")
            pv(vbuf(t), tl, ACC, PL, PH)
            load(vbuf(t), "s[12:15]")
            A("s_add_u32 s30, s30, 4096")
            if not first:
                A("s_sub_u32 s55, s55, 1")
                A("s_cmp_eq_u32 s55, 0")
                A("s_cbranch_scc1 L_fin")
    if WE:
        round_(True)
        A(f"s_waitcnt vmcnt({2*TD*tl})")
        flag_add(7, 8)
    A.label("L_round")
    if stamps:
        for nm in sst:
            if nm.startswith("sr"):
                sk = lab("nost")
                A(f"s_cmp_lg_u32 s54, {int(nm[2:])}")
                A(f"s_cbranch_scc1 {sk}")
                stamp(nm)
                A.label(sk)
        A("s_add_u32 s54, s54, 1")
    round_(False)
    A("s_branch L_round")
    A.label("L_fin")
    stamp("s5")
    A("s_nop 2")
    finalize(M, LS, ACC, 24, 40, 42)
    stamp("s4")
    A(f"buffer_store_dwordx4 v[40:43], v5, s[24:27], s43 offen {ast}")
    A("v_mov_b32 v33, v40")
    A("v_mov_b32 v32, v42")
    A("ds_write_b64 v6, v[32:33]")
    A("s_waitcnt lgkmcnt(0)")
    flag_add(62, 48)
    if WL and not woh:
        for T_ in WL: wodma(T_)
        A("s_waitcnt vmcnt(0)")
        flag_add(7, 32)
    if stamps and "ack" in ab: A("s_waitcnt vmcnt(0)")
    stamp_store(240)
    A.label("L_end")
    A("s_endpgm")

    body = A.render()
    nv = 256 if stamps else 240
    txt = HEADER + f"; @launch grid=(256,1,1) block=(512,1,1) lds={L_TOT}\n"
    txt += '.amdgcn_target "amdgcn-amd-amdhsa--gfx950"\n.text\n'
    txt += f".globl {NAME}\n.p2align 8\n.type {NAME},@function\n"
    txt += body
    txt += '.section .rodata,"a"\n.p2align 6\n'
    txt += f".amdhsa_kernel {NAME}\n"
    txt += f"  .amdhsa_next_free_vgpr {nv}\n  .amdhsa_next_free_sgpr 102\n  .amdhsa_accum_offset {nv}\n"
    txt += "  .amdhsa_group_segment_fixed_size 0\n  .amdhsa_kernarg_size 104\n  .amdhsa_user_sgpr_count 2\n"
    txt += "  .amdhsa_user_sgpr_kernarg_segment_ptr 1\n  .amdhsa_system_sgpr_workgroup_id_x 1\n.end_amdhsa_kernel\n"
    return txt

if __name__ == "__main__":
    import argparse
    ap = argparse.ArgumentParser()
    ap.add_argument("out")
    ap.add_argument("--kw", default="")
    a = ap.parse_args()
    kw = eval("dict(" + a.kw + ")")
    open(a.out, "w").write(gen(**kw))
```

```python
import sys, struct
sys.path.insert(0, "dev")
from asmlib import Asm
from gen import HEADER, NAME

L_W = 0
L_WO = 65536
L_QA = 131072
L_QB = L_QA + 1024
L_OA = L_QB + 2048
L_OB = L_OA + 1024
L_FL = L_OB + 1024
L_OWN = L_FL + 64
L_X = L_OWN + 2048
L_TOT = L_X + 4096
W_CNT = 0x1000
W_QP = 0x10000
W_PA = 0x100000
W_PB = 0x200000
W_Y = 0x400000
W_STAMP = 0x20000000

CEXP = struct.unpack("<I", struct.pack("<f", 1.4426950408889634 / (128 ** 0.5)))[0]

def gen(TD=3, CS=4, ns=12, NBW=1, JB=2, ksk=4, stamps=0, spin=200000, hst=("h1", "h2", "h3", "h4"),
        sst=("s1", "s2", "s3", "s4"), rot=1, wox=8, psl=16, qsl=4, ysl=0, early=0, esl=16,
        bst="sc1 nt", bld="sc1 nt", ast="sc1", ald="sc1", ab=(), wolate=0, pasl=0, touch=0, woh=0, kp="nt", vp="nt", til=0, gate=3, n2=0, n1=0):
    tl = 4
    A = Asm()
    NWP = 8
    NT = 512
    CD = CS
    CSB = CS * 4096
    assert ns * NWP * CS <= NT and (NT - ns * NWP * CS) % CD == 0
    NSK = NBW * ksk
    assert not til and (2 * n2 + n1) % CS == 0
    N4 = (NT - ns * NWP * CS - 2 * n2 - n1) // CS + NSK
    NDYN = N4 + n2 + n1
    T2 = NT - 2 * n2 - n1
    T1 = NT - n1
    assert CS >= TD and ns - ksk >= 2
    NP = 2 * NBW
    BT = 16 // NBW
    uid = [0]
    def lab(p):
        uid[0] += 1
        return f"L_{p}_{uid[0]}"

    P = dict(A_x=64, A_k=66, A_v=68, A_wq=70, A_wo=72, B_x=74, B_k=76, B_v=78, B_wq=80, B_wo=82, out=84, dbg=86, ws=88)
    def srd(d, lo, hi, n):
        A(f"s_mov_b32 s{d}, s{lo}")
        A(f"s_and_b32 s{d+1}, s{hi}, 0xffff")
        A(f"s_mov_b32 s{d+2}, {hex(n)}")
        A(f"s_mov_b32 s{d+3}, 0x20000")
    def srdp(d, name, n): srd(d, P[name], P[name] + 1, n)

    def stamp(i):
        if not stamps: return
        if isinstance(i, str):
            lst = hst if i[0] == "h" else sst
            if i not in lst: return
            i = 1 + list(lst).index(i)
        A(f"s_memrealtime s[{90+2*i}:{91+2*i}]")
    def stamp_store(vt):
        if not stamps: return
        A(f"s_memrealtime s[{90+2*(stamps-1)}:{91+2*(stamps-1)}]")
        A("s_waitcnt lgkmcnt(0)")
        A("s_lshl_b32 s32, s2, 3")
        A("s_add_u32 s32, s32, s3")
        A(f"s_mul_i32 s32, s32, {stamps*8}")
        A(f"s_add_u32 s32, s32, {hex(W_STAMP)}")
        for i in range(stamps):
            A(f"v_mov_b32 v{vt+2*i}, s{90+2*i}")
            A(f"v_mov_b32 v{vt+2*i+1}, s{91+2*i}")
        A(f"v_mov_b32 v{vt+2*stamps}, 0")
        A("s_mov_b64 exec, 1")
        for i in range(stamps):
            A(f"buffer_store_dwordx2 v[{vt+2*i}:{vt+2*i+1}], v{vt+2*stamps}, s[24:27], s32 offen offset:{8*i}")
        A("s_mov_b64 exec, -1")

    def chain(op3, op2, dst, regs):
        if len(regs) == 2:
            A(f"{op2} v{dst}, {regs[0]}, {regs[1]}"); return
        A(f"{op3} v{dst}, {regs[0]}, {regs[1]}, {regs[2]}")
        i = 3
        while i < len(regs):
            if i + 1 < len(regs):
                A(f"{op3} v{dst}, v{dst}, {regs[i]}, {regs[i+1]}"); i += 2
            else:
                A(f"{op2} v{dst}, v{dst}, {regs[i]}"); i += 1
    def scores(K, Q, S, n):
        for r in range(4):
            for j in range(n):
                c = "0" if r == 0 else f"v{S+j}"
                A(f"v_dot2_f32_bf16 v{S+j}, v{K+4*j+r}, v{Q+r}, {c}")
        for st in (8, 4, 2, 1):
            for j in range(n):
                A(f"v_add_f32_dpp v{S+j}, v{S+j}, v{S+j} row_ror:{st} row_mask:0xf bank_mask:0xf")
    def softmax(S, n, M, LS, ACC, AL, NM, PL, PH):
        chain("v_max3_f32", "v_max_f32", AL, [f"v{S+j}" for j in range(n)] + [f"v{M}"])
        A(f"v_sub_f32 v{NM}, v{M}, v{AL}")
        A(f"v_mov_b32 v{M}, v{AL}")
        A(f"v_mul_f32 v{AL}, s7, v{NM}")
        A(f"v_mul_f32 v{NM}, s7, v{M}")
        A(f"v_exp_f32 v{AL}, v{AL}")
        for j in range(n):
            A(f"v_fma_f32 v{S+j}, v{S+j}, s7, -v{NM}")
        for j in range(n):
            A(f"v_exp_f32 v{S+j}, v{S+j}")
        for e in range(8):
            A(f"v_mul_f32 v{ACC+e}, v{ACC+e}, v{AL}")
        A(f"v_fma_f32 v{LS}, v{LS}, v{AL}, v{S}")
        for j in range(1, n):
            A(f"v_add_f32 v{LS}, v{LS}, v{S+j}")
        for j in range(n):
            A(f"v_cvt_pk_bf16_f32 v{PL+j}, v{S+j}, 0")
            A(f"v_cvt_pk_bf16_f32 v{PH+j}, 0, v{S+j}")
    def pv(V, n, ACC, PL, PH):
        for j in range(n):
            for r in range(4):
                A(f"v_dot2_f32_bf16 v{ACC+2*r}, v{V+4*j+r}, v{PL+j}, v{ACC+2*r}")
                A(f"v_dot2_f32_bf16 v{ACC+2*r+1}, v{V+4*j+r}, v{PH+j}, v{ACC+2*r+1}")
    def init_state(M, LS, ACC):
        for e in range(8): A(f"v_mov_b32 v{ACC+e}, 0")
        A(f"v_mov_b32 v{M}, 0xf149f2ca")
        A(f"v_mov_b32 v{LS}, 0")
    def finalize(M, LS, ACC, T, OPK, OLSE):
        A(f"v_mov_b32 v{T+1}, v{M}")
        A(f"v_mov_b32 v{T+2}, v{M}")
        A(f"v_permlane32_swap_b32 v{T+1}, v{T+2}")
        A(f"v_max_f32 v{T+1}, v{T+1}, v{T+2}")
        A(f"v_mov_b32 v{T+2}, v{T+1}")
        A(f"v_permlane16_swap_b32 v{T+1}, v{T+2}")
        A(f"v_max_f32 v{T}, v{T+1}, v{T+2}")
        A(f"v_sub_f32 v{T+1}, v{M}, v{T}")
        A(f"v_mul_f32 v{T+1}, s7, v{T+1}")
        A(f"v_exp_f32 v{T+1}, v{T+1}")
        A(f"v_mul_f32 v{LS}, v{LS}, v{T+1}")
        for e in range(8): A(f"v_mul_f32 v{ACC+e}, v{ACC+e}, v{T+1}")
        A(f"v_mov_b32 v{T+1}, v{LS}")
        A(f"v_mov_b32 v{T+2}, v{LS}")
        for e in range(4): A(f"v_permlane32_swap_b32 v{ACC+e}, v{ACC+e+4}")
        A(f"v_permlane32_swap_b32 v{T+1}, v{T+2}")
        for e in range(4): A(f"v_add_f32 v{ACC+e}, v{ACC+e}, v{ACC+e+4}")
        A(f"v_add_f32 v{T+1}, v{T+1}, v{T+2}")
        A(f"v_mov_b32 v{T+2}, v{T+1}")
        for e in range(2): A(f"v_permlane16_swap_b32 v{ACC+e}, v{ACC+e+2}")
        A(f"v_permlane16_swap_b32 v{T+1}, v{T+2}")
        A(f"v_add_f32 v{T+3}, v{T+1}, v{T+2}")
        for e in range(2): A(f"v_add_f32 v{ACC+e}, v{ACC+e}, v{ACC+e+2}")
        A(f"v_rcp_f32 v{T+1}, v{T+3}")
        A(f"v_log_f32 v{T+2}, v{T+3}")
        A(f"v_mul_f32 v{ACC}, v{ACC}, v{T+1}")
        A(f"v_mul_f32 v{ACC+1}, v{ACC+1}, v{T+1}")
        A(f"v_fma_f32 v{OLSE}, v{T}, s7, v{T+2}")
        A(f"v_cvt_pk_bf16_f32 v{OPK}, v{ACC}, v{ACC+1}")
    def combine(G, n, OPK, OLSE=None):
        T1, T2, T3, T4 = 56, 57, 58, 59
        chain("v_max3_f32", "v_max_f32", T1, [f"v{G+4*i+2}" for i in range(n)])
        for i in range(n): A(f"v_sub_f32 v{G+4*i+2}, v{G+4*i+2}, v{T1}")
        for i in range(n): A(f"v_exp_f32 v{G+4*i+2}, v{G+4*i+2}")
        for i in range(n):
            A(f"v_lshlrev_b32 v{G+4*i+1}, 16, v{G+4*i}")
            A(f"v_and_b32 v{G+4*i+3}, 0xffff0000, v{G+4*i}")
        A(f"v_add_f32 v{T4}, v{G+2}, v{G+6}")
        A(f"v_mul_f32 v{T2}, v{G+2}, v{G+1}")
        A(f"v_mul_f32 v{T3}, v{G+2}, v{G+3}")
        for i in range(2, n): A(f"v_add_f32 v{T4}, v{T4}, v{G+4*i+2}")
        if OLSE is not None: A(f"v_log_f32 v{OLSE}, v{T4}")
        A(f"v_rcp_f32 v{T4}, v{T4}")
        for i in range(1, n):
            A(f"v_fmac_f32 v{T2}, v{G+4*i+2}, v{G+4*i+1}")
            A(f"v_fmac_f32 v{T3}, v{G+4*i+2}, v{G+4*i+3}")
        if OLSE is not None: A(f"v_add_f32 v{OLSE}, v{OLSE}, v{T1}")
        A(f"v_mul_f32 v{T2}, v{T2}, v{T4}")
        A(f"v_mul_f32 v{T3}, v{T3}, v{T4}")
        A(f"v_cvt_pk_bf16_f32 v{OPK}, v{T2}, v{T3}")
    def poll_masked(n, issue1, tagregs, sleep, mbase=64, extra=None):
        top, done = lab("pk"), lab("pkdone")
        A(f"s_mov_b32 s42, {spin}")
        for i in range(n): A(f"s_mov_b64 s[{mbase+2*i}:{mbase+2*i+1}], -1")
        A.label(top)
        for i in range(n):
            A(f"s_mov_b64 exec, s[{mbase+2*i}:{mbase+2*i+1}]")
            issue1(i)
        A("s_mov_b64 exec, -1")
        if extra: extra[0]()
        A("s_waitcnt vmcnt(0) lgkmcnt(0)" if extra else "s_waitcnt vmcnt(0)")
        for i in range(n):
            tr = tagregs(i)
            A(f"v_cmp_ne_u32 s[{mbase+2*i}:{mbase+2*i+1}], s6, v{tr[0]}")
            for r in tr[1:]:
                A(f"v_cmp_ne_u32 vcc, s6, v{r}")
                A(f"s_or_b64 s[{mbase+2*i}:{mbase+2*i+1}], s[{mbase+2*i}:{mbase+2*i+1}], vcc")
            if i == 0: A(f"s_mov_b64 s[40:41], s[{mbase}:{mbase+1}]")
            else: A(f"s_or_b64 s[40:41], s[40:41], s[{mbase+2*i}:{mbase+2*i+1}]")
        A("s_cmp_eq_u64 s[40:41], 0")
        A(f"s_cbranch_scc1 {done}")
        if extra: extra[1]()
        elif sleep: A(f"s_sleep {sleep}")
        A("s_sub_u32 s42, s42, 1")
        A("s_cmp_lg_u32 s42, 0")
        A(f"s_cbranch_scc1 {top}")
        A.label(done)
    def flag_add(addr_v, off=0):
        A("s_mov_b64 exec, 1")
        A(f"ds_add_u32 v{addr_v}, v63 offset:{off}")
        A("s_mov_b64 exec, -1")
    def flag_wait(addr_v, off, target, tmp_v, sleep):
        top, done = lab("fw"), lab("fwdone")
        A(f"s_mov_b32 s42, {spin*16}")
        A.label(top)
        A(f"ds_read_b32 v{tmp_v}, v{addr_v} offset:{off}")
        A("s_waitcnt lgkmcnt(0)")
        A(f"v_readfirstlane_b32 s47, v{tmp_v}")
        A(f"s_cmp_ge_u32 s47, {target}")
        A(f"s_cbranch_scc1 {done}")
        if sleep: A(f"s_sleep {sleep}")
        A("s_sub_u32 s42, s42, 1")
        A("s_cmp_lg_u32 s42, 0")
        A(f"s_cbranch_scc1 {top}")
        A.label(done)
    def mktag():
        A("s_mul_i32 s6, s6, 0x9e3779b1")
        A("s_add_u32 s6, s6, 0x7f4a7c15")

    A.label(NAME)
    A("s_cmp_ge_u32 s2, 256")
    A("s_cbranch_scc1 L_end")
    for i in range(stamps): stamp(i)
    A("s_load_dwordx16 s[64:79], s[0:1], 0")
    A("s_load_dwordx8 s[80:87], s[0:1], 64")
    A("s_load_dwordx2 s[88:89], s[0:1], 96")
    A("v_lshrrev_b32 v1, 6, v0")
    A("v_readfirstlane_b32 s3, v1")
    A("v_and_b32 v1, 63, v0")
    A("s_lshr_b32 s4, s2, 3")
    A("s_and_b32 s5, s2, 7")
    if rot:
        A(f"s_mul_i32 s7, s5, {rot}")
        A("s_add_u32 s4, s4, s7")
        A("s_and_b32 s4, s4, 31")
    A(f"s_mov_b32 s7, {hex(CEXP)}")
    A("v_lshlrev_b32 v2, 4, v1")
    A(f"v_mov_b32 v62, {L_FL}")
    A("v_mov_b32 v63, 1")
    A(f"s_and_b32 s62, s5, {8//NBW-1}")
    A(f"s_cmp_eq_u32 s62, {JB}")
    A("s_cselect_b32 s62, 1, 0")
    A("v_mov_b32 v7, 0")
    A("v_and_b32 v6, 15, v1")
    A("v_lshl_add_u32 v6, v6, 2, v62")
    A("ds_write_b32 v6, v7")
    A("s_waitcnt lgkmcnt(0)")
    A("s_barrier")
    A("s_load_dword s6, s[88:89], 0")
    srdp(24, "ws", 0x40000000)
    A("s_cmp_ge_u32 s3, 4")
    A("s_cbranch_scc1 L_stream")

    stamp("h0a")
    A("s_lshr_b32 s33, s5, 2")
    A("s_bfe_u32 s34, s5, 0x10001")
    A("s_and_b32 s35, s5, 1")
    A("s_cmp_eq_u32 s33, 0")
    A(f"s_cselect_b32 s36, s{P['A_wq']}, s{P['B_wq']}")
    A(f"s_cselect_b32 s37, s{P['A_wq']+1}, s{P['B_wq']+1}")
    A(f"s_cselect_b32 s38, s{P['A_x']}, s{P['B_x']}")
    A(f"s_cselect_b32 s39, s{P['A_x']+1}, s{P['B_x']+1}")
    srd(12, 36, 37, 0x800000)
    srd(8, 38, 39, 8192)
    A("v_lshrrev_b32 v3, 3, v1")
    A("v_lshlrev_b32 v3, 13, v3")
    A("v_and_b32 v4, 7, v1")
    A("v_lshl_add_u32 v3, v4, 4, v3")
    A("s_lshl_b32 s43, s35, 9")
    A("s_lshl_b32 s44, s3, 7")
    A("s_add_u32 s43, s43, s44")
    A("s_lshl_b32 s43, s43, 13")
    A("s_lshl_b32 s44, s4, 8")
    A("s_add_u32 s43, s43, s44")
    A("s_lshl_b32 s44, s34, 7")
    A("s_add_u32 s43, s43, s44")
    A("s_lshl_b32 s44, s3, 14")
    for u in range(16):
        A("s_mov_b32 m0, s44")
        A("buffer_load_dwordx4 v3, s[12:15], s43 offen nt lds")
        if u < 15:
            A("s_add_u32 s43, s43, 0x10000")
            A("s_add_u32 s44, s44, 1024")
    XF = 64
    A("s_lshl_b32 s43, s3, 11")
    A("s_lshl_b32 s44, s35, 10")
    A("s_add_u32 s43, s43, s44")
    A("s_lshl_b32 s44, s3, 10")
    A(f"s_add_u32 s44, s44, {L_X}")
    A("s_mov_b32 m0, s44")
    A("buffer_load_dwordx4 v2, s[8:11], s43 offen lds")
    flag_add(62, 36)
    stamp("h0b")
    A("s_or_b32 s43, s5, s3")
    A("s_cmp_lg_u32 s43, 0")
    A("s_cbranch_scc1 L_noinit")
    A("v_lshlrev_b32 v6, 13, v1")
    A("s_lshl_b32 s43, s4, 8")
    A(f"s_add_u32 s43, s43, {hex(W_CNT)}")
    A("s_mov_b64 exec, 15")
    A("buffer_store_dword v7, v6, s[24:27], s43 offen sc1")
    A("s_mov_b64 exec, -1")
    A.label("L_noinit")
    A("s_waitcnt lgkmcnt(0)")
    A("v_and_b32 v11, 3, v1")
    A("v_lshlrev_b32 v11, 10, v11")
    A("v_lshrrev_b32 v5, 4, v1")
    A("v_lshl_add_u32 v11, v5, 4, v11")
    A(f"v_add_u32 v11, {L_X}, v11")
    srdp(16, "B_k", 0x2000000)
    srdp(20, "B_v", 0x2000000)
    srdp(28, "out", 16384)
    if woh:
        srdp(8, "A_wo", 0x800000)
        srdp(12, "B_wo", 0x800000)
    A("v_lshrrev_b32 v5, 4, v1")
    A("v_lshlrev_b32 v5, 3, v5")
    A("v_bfe_u32 v6, v1, 2, 2")
    A("v_add_u32 v5, v5, v6")
    A("v_and_b32 v6, 3, v1")
    A("v_lshlrev_b32 v6, 3, v6")
    A("v_lshl_add_u32 v8, v5, 7, v6")
    A("v_lshl_add_u32 v9, v5, 8, v6")
    A("s_lshl_b32 s43, s3, 5")
    A("v_add_u32 v8, s43, v8")
    A("v_bfe_u32 v5, v1, 2, 3")
    A("s_lshl_b32 s43, s3, 1")
    A("v_xor_b32 v5, s43, v5")
    A("v_lshl_add_u32 v9, v5, 5, v9")
    A(f"v_add_u32 v9, {L_WO}, v9")

    mktag()
    A("v_and_b32 v4, 3, v1")
    A("v_lshlrev_b32 v4, 10, v4")
    A("v_lshrrev_b32 v5, 4, v1")
    A("v_lshl_add_u32 v4, v5, 5, v4")
    A("v_and_b32 v5, 4, v1")
    A("v_lshl_add_u32 v4, v5, 2, v4")
    A("s_lshl_b32 s43, s33, 5")
    A("s_add_u32 s43, s43, s4")
    A("s_lshl_b32 s43, s43, 1")
    A("s_add_u32 s43, s43, s35")
    A("s_lshl_b32 s43, s43, 12")
    A("s_lshl_b32 s44, s34, 9")
    A("s_add_u32 s43, s43, s44")
    A("s_lshl_b32 s44, s3, 7")
    A("s_add_u32 s43, s43, s44")
    A(f"s_add_u32 s43, s43, {hex(W_QP)}")
    for r in (21, 23): A(f"v_mov_b32 v{r}, s6")
    A("s_mov_b32 s56, 0x00ff00ff")
    A("s_mov_b32 s57, 0x00ff00ff")
    A("s_waitcnt vmcnt(0)")
    flag_add(62, 0)
    flag_wait(62, 0, 4, 10, 0)
    stamp("h1")
    WF = 128
    for ks in range(16):
        A(f"ds_read_b64_tr_b16 v[{WF+4*ks}:{WF+4*ks+1}], v8 offset:{ks*4096}")
        A(f"ds_read_b64_tr_b16 v[{WF+4*ks+2}:{WF+4*ks+3}], v8 offset:{ks*4096+512}")
        A(f"ds_read_b128 v[{XF+4*ks}:{XF+4*ks+3}], v11 offset:{ks*64}")
    for ks in range(16):
        A(f"s_waitcnt lgkmcnt({min(15, 3*(15-ks))})")
        d = 12 + 4 * (ks & 1)
        c = "0" if ks < 2 else f"v[{d}:{d+3}]"
        A(f"v_mfma_f32_16x16x32_bf16 v[{d}:{d+3}], v[{WF+4*ks}:{WF+4*ks+3}], v[{XF+4*ks}:{XF+4*ks+3}], {c}")
    for r in range(4): A(f"v_add_f32 v{20+2*r}, v{12+r}, v{16+r}")
    A("v_mov_b32_dpp v20, v24 row_shr:4 row_mask:0xf bank_mask:0x2")
    A("v_mov_b32_dpp v22, v26 row_shr:4 row_mask:0xf bank_mask:0x2")
    A("s_mov_b64 exec, s[56:57]")
    A("buffer_store_dwordx4 v[20:23], v4, s[24:27], s43 offen sc1")
    A("s_mov_b64 exec, -1")
    stamp("h2")
    A("s_lshl_b32 s43, s4, 13")
    A("s_lshl_b32 s44, s3, 10")
    A("s_add_u32 s43, s43, s44")
    A(f"s_add_u32 s43, s43, {hex(W_QP)}")
    A("s_add_u32 s44, s43, 4096")
    A("s_lshl_b32 s45, s3, 8")
    A(f"s_add_u32 s45, s45, {L_QA}")
    A("v_lshl_add_u32 v10, v1, 2, s45")
    poll_masked(2, lambda i: A(f"buffer_load_dwordx4 v[{28+4*i}:{31+4*i}], v2, s[24:27], s{43+i} offen sc1"),
                lambda i: [29 + 4 * i, 31 + 4 * i], qsl)
    A("v_add_f32 v28, v28, v32")
    A("v_add_f32 v30, v30, v34")
    A("v_cvt_pk_bf16_f32 v28, v28, v30")
    A("ds_write_b32 v10, v28")
    A("s_waitcnt lgkmcnt(0)")
    A("s_barrier")
    stamp("h3")
    if 1 in ab: A("s_branch L_hend")
    A("s_cmp_eq_u32 s62, 0")
    A("s_cbranch_scc1 L_noB")

    lgNP = {2: 1, 4: 2}[NP]
    if NBW == 1: A("s_mov_b32 s58, s4")
    else:
        A("s_lshl_b32 s58, s4, 1")
        A("s_lshr_b32 s59, s5, 2")
        A("s_add_u32 s58, s58, s59")
    A(f"s_lshr_b32 s59, s58, {lgNP}")
    A(f"s_and_b32 s58, s58, {NP-1}")
    A("s_lshl_b32 s60, s59, 21")
    A(f"s_mul_i32 s61, s58, {2048//NP*256}")
    A("s_add_u32 s60, s60, s61")
    A("s_lshl_b32 s61, s3, 12")
    A("s_add_u32 s60, s60, s61")
    A(f"s_add_u32 s60, s60, {6144*256}")
    A("s_and_b32 s48, s59, 3")
    A("s_lshl_b32 s48, s48, 3")
    A("s_lshl_b32 s49, s3, 1")
    A("s_add_u32 s48, s48, s49")
    A("s_add_u32 s49, s48, 32")
    A("s_lshl_b32 s49, s49, 13")
    A("s_lshr_b32 s61, s59, 2")
    A("s_lshl_b32 s50, s61, 10")
    A("s_add_u32 s49, s49, s50")
    A(f"s_add_u32 s49, s49, {hex(W_QP)}")
    A("s_add_u32 s50, s49, 4096")
    A("s_add_u32 s51, s49, 8192")
    A("s_add_u32 s52, s49, 12288")
    poll_masked(4, lambda i: A(f"buffer_load_dwordx4 v[{28+4*i}:{31+4*i}], v2, s[24:27], s{49+i} offen sc1"),
                lambda i: [29 + 4 * i, 31 + 4 * i], 16)
    KB = 64
    def bload(par):
        for u in range(4):
            A(f"buffer_load_dwordx4 v[{KB+32*par+4*u}:{KB+32*par+4*u+3}], v2, s[16:19], s60 offen offset:{u*1024} nt")
        for u in range(4):
            A(f"buffer_load_dwordx4 v[{KB+32*par+16+4*u}:{KB+32*par+16+4*u+3}], v2, s[20:23], s60 offen offset:{u*1024} nt")
        A("s_add_u32 s60, s60, 0x4000")
    bload(0); bload(1)
    A("v_add_f32 v28, v28, v32")
    A("v_add_f32 v30, v30, v34")
    A("v_add_f32 v36, v36, v40")
    A("v_add_f32 v38, v38, v42")
    A("v_cvt_pk_bf16_f32 v28, v28, v30")
    A("v_cvt_pk_bf16_f32 v36, v36, v38")
    A("s_lshl_b32 s43, s3, 9")
    A(f"s_add_u32 s43, s43, {L_QB}")
    A("v_lshl_add_u32 v10, v1, 2, s43")
    A("ds_write_b32 v10, v28")
    A("ds_write_b32 v10, v36 offset:256")
    A("s_waitcnt lgkmcnt(0)")
    flag_add(62, 4)
    flag_wait(62, 4, 4, 10, 1)
    A("v_and_b32 v11, 0xf0, v2")
    A(f"v_add_u32 v11, {L_QB}, v11")
    QB = 128
    for hh in range(8):
        A(f"ds_read_b128 v[{QB+4*hh}:{QB+4*hh+3}], v11 offset:{hh*256}")
    SB = 160
    def bs(hh): return dict(M=SB + 10 * hh, LS=SB + 10 * hh + 1, ACC=SB + 10 * hh + 2)
    for hh in range(8):
        st = bs(hh); init_state(st["M"], st["LS"], st["ACC"])
    A(f"s_mov_b32 s45, {BT//2}")
    A("s_waitcnt lgkmcnt(0)")
    A.label("L_battn")
    for par in range(2):
        A("s_waitcnt vmcnt(8)")
        for hh in range(8):
            st = bs(hh)
            o = 20 * (hh & 1)
            S_, AL_, NM_, PL_, PH_ = 12 + o, 16 + o, 17 + o, 20 + o, 24 + o
            scores(KB + 32 * par, QB + 4 * hh, S_, 4)
            softmax(S_, 4, st["M"], st["LS"], st["ACC"], AL_, NM_, PL_, PH_)
            pv(KB + 32 * par + 16, 4, st["ACC"], PL_, PH_)
        if par == 0:
            A("s_cmp_eq_u32 s45, 1")
            A("s_cselect_b32 s60, 0x2000000, s60")
        bload(par)
    A("s_sub_u32 s45, s45, 1")
    A("s_cmp_lg_u32 s45, 0")
    A("s_cbranch_scc1 L_battn")
    A("v_and_b32 v4, 15, v1")
    A("v_lshlrev_b32 v4, 5, v4")
    A("v_lshrrev_b32 v5, 4, v1")
    A("v_lshl_add_u32 v4, v5, 3, v4")
    A("s_lshl_b32 s43, s3, 12")
    A("v_add_u32 v4, s43, v4")
    for hh in range(8):
        st = bs(hh)
        o = 8 * (hh & 1)
        finalize(st["M"], st["LS"], st["ACC"], 12 + o, 17 + o, 16 + o)
        A(f"ds_write_b64 v4, v[{16+o}:{17+o}] offset:{hh*512}")
    A("s_waitcnt lgkmcnt(0)")
    flag_add(62, 12)
    flag_wait(62, 12, 4, 10, 1)
    A("s_waitcnt vmcnt(0)")
    A("s_lshl_b32 s43, s3, 10")
    A("v_lshl_add_u32 v4, v1, 3, s43")
    A("s_lshl_b32 s43, s48, 2")
    A("s_add_u32 s43, s43, s61")
    A(f"s_lshl_b32 s43, s43, {lgNP}")
    A("s_add_u32 s43, s43, s58")
    A("s_lshl_b32 s43, s43, 10")
    A(f"s_add_u32 s43, s43, {hex(W_PB)}")
    A(f"s_add_u32 s44, s43, {4*NP*1024}")
    G = 64
    for k in range(2):
        for w_ in range(4):
            A(f"ds_read_b64 v[{G+16*k+4*w_+2}:{G+16*k+4*w_+3}], v4 offset:{w_*4096+k*512}")
    A("s_waitcnt lgkmcnt(0)")
    for k in range(2):
        for w_ in range(4): A(f"v_mov_b32 v{G+16*k+4*w_}, v{G+16*k+4*w_+3}")
        A(f"v_mov_b32 v{13+4*k}, s6")
        A(f"v_mov_b32 v{15+4*k}, s6")
        combine(G + 16 * k, 4, 12 + 4 * k, 14 + 4 * k)
        A(f"buffer_store_dwordx4 v[{12+4*k}:{15+4*k}], v2, s[24:27], s{43+k} offen {bst}")
    stamp("h4")
    A.label("L_noB")
    if 2 in ab: A("s_branch L_hend")

    FR = [128, 160]
    def wofrag(T_):
        for ct in range(2):
            for ks in range(4):
                r = FR[T_] + (ct * 4 + ks) * 4
                off = T_ * 32768 + ks * 8192
                ar = 3 if ct else 9
                A(f"ds_read_b64_tr_b16 v[{r}:{r+1}], v{ar} offset:{off}")
                A(f"ds_read_b64_tr_b16 v[{r+2}:{r+3}], v{ar} offset:{off+1024}")
    A("v_xor_b32 v3, 32, v9")
    WE = [T_ for T_ in range(2) if T_ >= wolate]
    WL = [T_ for T_ in range(2) if T_ < wolate]
    if WE:
        flag_wait(62, 8, 4, 56, 8)
        for T_ in WE: wofrag(T_)
    G = 64
    A("s_lshl_b32 s43, s3, 8")
    A(f"s_add_u32 s43, s43, {L_OA}")
    A("v_lshl_add_u32 v60, v1, 2, s43")
    A("v_and_b32 v6, 3, v1")
    A("v_lshlrev_b32 v6, 8, v6")
    A("v_lshrrev_b32 v7, 4, v1")
    A("v_lshl_add_u32 v6, v7, 4, v6")
    A(f"v_add_u32 v6, {L_OA}, v6")
    A("v_and_b32 v8, 3, v1")
    A("v_lshlrev_b32 v8, 14, v8")
    A("v_lshl_add_u32 v8, v7, 4, v8")
    A("v_and_b32 v7, 4, v1")
    A("v_lshl_add_u32 v8, v7, 4, v8")
    A("s_lshl_b32 s52, s5, 4")
    A("s_add_u32 s52, s52, s3")
    A("s_lshl_b32 s52, s52, 12")
    A("s_lshl_b32 s53, s4, 7")
    A("s_add_u32 s52, s52, s53")
    A(f"s_add_u32 s52, s52, {hex(W_Y)}")
    A("s_add_u32 s53, s52, 0x80000")
    for r in (21, 23, 29, 31): A(f"v_mov_b32 v{r}, s6")
    A("s_bfe_u32 s60, s4, 0x20002")
    A("s_lshl_b32 s60, s60, 12")
    A("s_lshl_b32 s44, s5, 8")
    A("s_add_u32 s60, s60, s44")
    A("s_and_b32 s44, s4, 3")
    A("s_lshl_b32 s44, s44, 6")
    A("s_add_u32 s60, s60, s44")
    A("s_lshr_b32 s44, s4, 4")
    A("s_lshl_b32 s45, s44, 11")
    A("s_add_u32 s60, s60, s45")
    A("v_lshlrev_b32 v11, 3, v1")
    A("s_lshl_b32 s61, s5, 4")
    A("s_and_b32 s45, s4, 15")
    A("s_add_u32 s61, s61, s45")
    A("s_lshl_b32 s61, s61, 12")
    A("s_lshl_b32 s44, s44, 19")
    A("s_add_u32 s61, s61, s44")
    A(f"s_add_u32 s61, s61, {hex(W_Y)}")
    A("s_lshl_b32 s43, s3, 2")
    A("v_add_u32 v10, s43, v62")
    A("s_lshl_b32 s45, s4, 2")
    A("s_add_u32 s45, s45, s3")
    A(f"s_mul_i32 s46, s45, {NP*1024}")
    A(f"s_add_u32 s46, s46, {hex(W_PB)}")
    A("s_lshl_b32 s45, s45, 13")
    A(f"s_add_u32 s45, s45, {hex(W_PA)}")
    for i in range(7):
        A(f"s_add_u32 s44, s5, {i+1}")
        A("s_and_b32 s44, s44, 7")
        A("s_lshl_b32 s44, s44, 10")
        A(f"s_add_u32 s{80+i}, s45, s44")
    A("s_lshl_b32 s44, s3, 9")
    A(f"s_add_u32 s44, s44, {L_OWN}")
    A("s_waitcnt lgkmcnt(0)")
    A("v_lshl_add_u32 v5, v1, 3, s44")
    if woh:
        A("v_lshrrev_b32 v36, 4, v1")
        A("v_and_b32 v37, 0xf0, v2")
        A("v_lshlrev_b32 v38, 5, v36")
        A("v_xor_b32 v38, v38, v37")
        A("v_lshl_add_u32 v36, v36, 11, v38")
        A("v_xor_b32 v37, 0x80, v36")
        A("s_lshl_b32 s34, s4, 18")
        A("s_lshl_b32 s35, s3, 16")
        A("s_add_u32 s34, s34, s35")
        A("s_lshl_b32 s35, s5, 8")
        A("s_add_u32 s34, s34, s35")
        A("s_lshl_b32 s35, s3, 13")
        A(f"s_add_u32 s35, s35, {L_WO}")
    flag_wait(10, 16, 1, 56, esl)
    stamp("h5")
    if woh:
        for T_ in WL:
            for u in range(8):
                A(f"s_add_u32 s37, s35, {T_*32768+u*1024}")
                A("s_mov_b32 m0, s37")
                A(f"s_add_u32 s39, s34, {u*8192}")
                A(f"buffer_load_dwordx4 v{37 if (u>>1)&1 else 36}, s[{8+4*T_}:{11+4*T_}], s39 offen nt lds")
    if touch:
        A("v_mov_b32 v56, 0")
        A(f"s_mov_b32 s44, {hex(W_Y + 0x1ff000)}")
        A(f"s_mov_b32 s45, {hex(W_PA - 0x1000)}")
        A("s_mov_b64 exec, 1")
        A("buffer_load_dword v57, v56, s[24:27], s44 offen nt")
        A("buffer_load_dword v58, v56, s[24:27], s45 offen nt")
        A("buffer_load_dword v59, v56, s[28:31], s60 offen nt")
        A("s_mov_b64 exec, -1")
    poll_masked(NP, lambda i: A(f"buffer_load_dwordx4 v[{G+4*i}:{G+4*i+3}], v2, s[24:27], s46 offen offset:{i*1024} {bld}"),
                lambda i: [G + 4 * i + 1, G + 4 * i + 3], 16)
    if woh: flag_add(62, 32)
    combine(G, NP, 61)
    A("ds_write_b32 v60, v61 offset:1024")
    if not early: flag_wait(10, 48, 2, 56, 0)
    else: flag_wait(10, 48, 1, 56, 2)
    stamp("h6")
    if early:
        def ex0(): A("ds_read_b32 v56, v10 offset:48")
        def ex1():
            nosl = lab("nosl")
            A("v_readfirstlane_b32 s47, v56")
            A("s_cmp_ge_u32 s47, 2")
            A(f"s_cbranch_scc1 {nosl}")
            A(f"s_sleep {psl}")
            A.label(nosl)
        extra = (ex0, ex1)
    else:
        A(f"ds_read_b64 v[{G+30}:{G+31}], v5")
        extra = None
    poll_masked(7, lambda i: A(f"buffer_load_dwordx4 v[{G+4*i}:{G+4*i+3}], v2, s[24:27], s{80+i} offen {ald}"),
                lambda i: [G + 4 * i + 1, G + 4 * i + 3], pasl, extra=extra)
    if early:
        flag_wait(10, 48, 2, 56, 0)
        A(f"ds_read_b64 v[{G+30}:{G+31}], v5")
    A("s_waitcnt lgkmcnt(0)")
    A(f"v_mov_b32 v{G+28}, v{G+31}")
    stamp("h7")
    if WL:
        flag_wait(62, 32, 4, 56, 0)
        stamp("h7b")
        for T_ in WL: wofrag(T_)
    if stamps and "hc" in hst:
        k = 1 + list(hst).index("hc")
        A("s_waitcnt lgkmcnt(0)")
        A(f"s_sub_u32 s44, {spin}, s42")
        A("s_mul_i32 s44, s44, 100")
        A(f"s_add_u32 s{90+2*k}, s90, s44")
        A(f"s_addc_u32 s{91+2*k}, s91, 0")
    combine(G, 8, 61)
    A("ds_write_b32 v60, v61")
    A("s_waitcnt lgkmcnt(0)")
    A("s_barrier")
    OFR = [40, 96]
    DD = [12, 112]
    for T_ in range(2):
        for ks in range(4):
            A(f"ds_read_b128 v[{OFR[T_]+4*ks}:{OFR[T_]+4*ks+3}], v6 offset:{T_*1024+ks*64}")
    for T_ in range(2):
        for ks in range(4):
            A(f"s_waitcnt lgkmcnt({7-4*T_-ks})")
            for ct in range(2):
                d = DD[T_] + 4 * ct
                r = FR[T_] + (ct * 4 + ks) * 4
                c = "0" if ks == 0 else f"v[{d}:{d+3}]"
                A(f"v_mfma_f32_16x16x32_bf16 v[{d}:{d+3}], v[{r}:{r+3}], v[{OFR[T_]+4*ks}:{OFR[T_]+4*ks+3}], {c}")
    for T_ in range(2):
        y, d = 20 + 8 * T_, DD[T_]
        A(f"v_cvt_pk_bf16_f32 v{y}, v{d}, v{d+1}")
        A(f"v_cvt_pk_bf16_f32 v{y+2}, v{d+2}, v{d+3}")
        A(f"v_cvt_pk_bf16_f32 v{y+4}, v{d+4}, v{d+5}")
        A(f"v_cvt_pk_bf16_f32 v{y+6}, v{d+6}, v{d+7}")
        A(f"v_mov_b32_dpp v{y}, v{y+4} row_shr:4 row_mask:0xf bank_mask:0x2")
        A(f"v_mov_b32_dpp v{y+2}, v{y+6} row_shr:4 row_mask:0xf bank_mask:0x2")
        A("s_mov_b64 exec, s[56:57]")
        A(f"buffer_store_dwordx4 v[{y}:{y+3}], v8, s[24:27], s{52+T_} offen {ast}")
        A("s_mov_b64 exec, -1")
    stamp("h8")
    A("s_cmp_lg_u32 s3, 0")
    A("s_cbranch_scc1 L_hend")
    poll_masked(4, lambda i: A(f"buffer_load_dwordx4 v[{G+4*i}:{G+4*i+3}], v2, s[24:27], s61 offen offset:{i*1024} {ald}"),
                lambda i: [G + 4 * i + 1, G + 4 * i + 3], ysl)
    stamp("h9")
    U = G + 16
    for i in range(4):
        A(f"v_lshlrev_b32 v{U+4*i}, 16, v{G+4*i}")
        A(f"v_and_b32 v{U+4*i+1}, 0xffff0000, v{G+4*i}")
        A(f"v_lshlrev_b32 v{U+4*i+2}, 16, v{G+4*i+2}")
        A(f"v_and_b32 v{U+4*i+3}, 0xffff0000, v{G+4*i+2}")
    for k in range(4):
        A(f"v_add_f32 v{U+k}, v{U+k}, v{U+4+k}")
        A(f"v_add_f32 v{U+8+k}, v{U+8+k}, v{U+12+k}")
    for k in range(4):
        A(f"v_add_f32 v{U+k}, v{U+k}, v{U+8+k}")
    A(f"v_permlane32_swap_b32 v{U}, v{U+2}")
    A(f"v_permlane32_swap_b32 v{U+1}, v{U+3}")
    A(f"v_add_f32 v{U}, v{U}, v{U+2}")
    A(f"v_add_f32 v{U+1}, v{U+1}, v{U+3}")
    A(f"v_add_f32_dpp v{U}, v{U}, v{U} row_ror:8 row_mask:0xf bank_mask:0xf")
    A(f"v_add_f32_dpp v{U+1}, v{U+1}, v{U+1} row_ror:8 row_mask:0xf bank_mask:0xf")
    A(f"v_mov_b32 v{U+2}, v{U}")
    A(f"v_mov_b32 v{U+3}, v{U+1}")
    A(f"v_permlane16_swap_b32 v{U}, v{U+2}")
    A(f"v_permlane16_swap_b32 v{U+1}, v{U+3}")
    A(f"v_add_f32 v{U}, v{U}, v{U+2}")
    A(f"v_add_f32 v{U+1}, v{U+1}, v{U+3}")
    A(f"v_cvt_pk_bf16_f32 v{U+4}, v{U}, v{U+1}")
    A(f"v_mov_b32 v{U+5}, v{U+4}")
    A(f"v_permlane32_swap_b32 v{U+4}, v{U+5}")
    A("s_mov_b64 exec, 0xff")
    A(f"buffer_store_dwordx2 v[{U+4}:{U+5}], v11, s[28:31], s60 offen")
    A("s_mov_b64 exec, -1")
    A("s_cmp_lg_u32 s2, 0")
    A("s_cbranch_scc1 L_hend")
    A("v_mov_b32 v3, 0")
    A("v_mov_b32 v4, s6")
    A("s_mov_b64 exec, 1")
    A("buffer_store_dword v4, v3, s[24:27], 0 offen")
    A("s_mov_b64 exec, -1")
    A.label("L_hend")
    stamp_store(240)
    A("s_endpgm")

    A.label("L_stream")
    srdp(8, "A_k", 0x10000000)
    srdp(12, "A_v", 0x10000000)
    srdp(16, "A_wo", 0x800000)
    srdp(20, "B_wo", 0x800000)
    A("s_sub_u32 s33, s3, 4")
    A("v_lshrrev_b32 v3, 4, v1")
    A("v_and_b32 v4, 0xf0, v2")
    A("v_lshlrev_b32 v44, 5, v3")
    A("v_xor_b32 v44, v44, v4")
    A("v_lshl_add_u32 v3, v3, 11, v44")
    A("v_xor_b32 v44, 0x80, v3")
    A("s_lshl_b32 s34, s4, 18")
    A("s_lshl_b32 s35, s33, 16")
    A("s_add_u32 s34, s34, s35")
    A("s_lshl_b32 s35, s5, 8")
    A("s_add_u32 s34, s34, s35")
    A("s_lshl_b32 s35, s33, 13")
    A(f"s_add_u32 s35, s35, {L_WO}")
    A("s_lshl_b32 s38, s33, 5")
    A("s_add_u32 s38, s38, s4")
    A("s_lshl_b32 s39, s38, 8")
    A(f"s_add_u32 s39, s39, {hex(W_CNT)}")
    A(f"s_add_u32 s52, s{P['ws']}, s39")
    A(f"s_addc_u32 s53, s{P['ws']+1}, 0")
    A("s_lshl_b32 s38, s38, 21")
    TS = 0x8000 if til else 4096
    A(f"s_mul_i32 s29, s5, {4096 if til else CSB}")
    A("s_add_u32 s29, s29, s38")
    A("s_mov_b32 s30, s29")
    Q, ACC, M, LS, AL, NM = 8, 12, 20, 21, 22, 23
    S = 24; PL = S + tl; PH = PL + tl
    R0 = 64
    def kbuf(t): return R0 + (t % TD) * 32
    def vbuf(t): return R0 + (t % TD) * 32 + 16
    def load(r, sd):
        for j in range(tl):
            A(f"buffer_load_dwordx4 v[{r+4*j}:{r+4*j+3}], v2, {sd}, s30 offen offset:{j*1024} {kp if sd == 's[8:11]' else vp}")
    for t in range(TD):
        if t == gate: flag_wait(62, 36, 4, 10, 0)
        load(kbuf(t), "s[8:11]"); load(vbuf(t), "s[12:15]")
        A(f"s_add_u32 s30, s30, {TS}")
    def wodma(T_):
        for u in range(8):
            A(f"s_add_u32 s37, s35, {T_*32768+u*1024}")
            A("s_mov_b32 m0, s37")
            A(f"s_add_u32 s39, s34, {u*8192}")
            A(f"buffer_load_dwordx4 v{44 if (u>>1)&1 else 3}, s[{16+4*T_}:{19+4*T_}], s39 offen nt lds")
    if gate >= TD: flag_wait(62, 36, 4, 10, 0)
    for T_ in WE: wodma(T_)
    NE = 8 * len(WE)
    init_state(M, LS, ACC)
    A("s_waitcnt lgkmcnt(0)")
    mktag()
    A("s_lshl_b32 s43, s33, 8")
    A(f"s_add_u32 s43, s43, {L_QA}")
    A("v_add_u32 v4, s43, v4")
    A(f"v_mov_b32 v7, {L_FL}")
    A("s_lshl_b32 s43, s33, 2")
    A("v_add_u32 v62, s43, v62")
    A("v_and_b32 v5, 15, v1")
    A("v_lshlrev_b32 v5, 6, v5")
    A("v_lshrrev_b32 v6, 4, v1")
    A("v_lshl_add_u32 v5, v6, 4, v5")
    A("s_lshl_b32 s43, s33, 9")
    A(f"s_add_u32 s43, s43, {L_OWN}")
    A("v_lshrrev_b32 v6, 1, v5")
    A("v_add_u32 v6, s43, v6")
    A("s_lshl_b32 s43, s4, 2")
    A("s_add_u32 s43, s43, s33")
    A("s_lshl_b32 s43, s43, 3")
    A("s_add_u32 s43, s43, s5")
    A("s_lshl_b32 s43, s43, 10")
    A(f"s_add_u32 s43, s43, {hex(W_PA)}")
    A("v_mov_b32 v41, s6")
    A("v_mov_b32 v43, s6")
    A(f"s_mov_b32 s31, {CS-TD}")
    A("s_cmp_eq_u32 s62, 0")
    A(f"s_cselect_b32 s51, {ns-1}, {ns-1-ksk}")
    A("s_mov_b32 s54, 0")
    A("s_mov_b32 s55, 0x7fffffff")
    stamp("s1")
    A("s_barrier")
    stamp("s2")
    A(f"ds_read_b128 v[{Q}:{Q+3}], v4")
    A("s_waitcnt lgkmcnt(0)")
    def claim():
        A("s_mov_b32 s50, 1")
        A("s_atomic_add s50, s[52:53], 0 glc")
    def nextchunk():
        go, dyn, exh, ne = lab("go"), lab("dyn"), lab("exh"), lab("ne")
        A("s_cmp_lg_u32 s31, 0")
        A(f"s_cbranch_scc1 {go}")
        A(f"s_mov_b32 s31, {CS}")
        A("s_cmp_eq_u32 s51, 0")
        A(f"s_cbranch_scc1 {dyn}")
        A(f"s_add_u32 s29, s29, {NWP*CSB}")
        A("s_mov_b32 s30, s29")
        A("s_sub_u32 s51, s51, 1")
        A("s_cmp_lg_u32 s51, 0")
        A(f"s_cbranch_scc1 {go}")
        claim()
        A(f"s_branch {go}")
        A.label(dyn)
        A("s_waitcnt lgkmcnt(0)")
        A(f"s_cmp_ge_u32 s50, {NDYN}")
        A(f"s_cbranch_scc1 {exh}")
        A(f"s_add_u32 s36, s50, {ns*NWP-NSK}")
        A(f"s_mul_i32 s37, s50, {8//NBW}")
        A(f"s_add_u32 s37, s37, {JB+8*(ns-ksk)}")
        A(f"s_cmp_lt_u32 s50, {NSK}")
        A("s_cselect_b32 s36, s37, s36")
        A(f"s_mul_i32 s30, s36, {CS}")
        if n2:
            A("s_lshl_b32 s37, s50, 1")
            A(f"s_add_u32 s37, s37, {(T2 - 2*N4) & 0xffffffff}")
            A(f"s_cmp_ge_u32 s50, {N4}")
            A("s_cselect_b32 s30, s37, s30")
            A("s_cselect_b32 s31, 2, s31")
        if n1:
            A(f"s_add_u32 s37, s50, {(T1 - N4 - n2) & 0xffffffff}")
            A(f"s_cmp_ge_u32 s50, {N4+n2}")
            A("s_cselect_b32 s30, s37, s30")
            A("s_cselect_b32 s31, 1, s31")
        A("s_lshl_b32 s30, s30, 12")
        A("s_add_u32 s30, s30, s38")
        A(f"s_cmp_lt_u32 s50, {max(0, NDYN-wox)}")
        A(f"s_cbranch_scc1 {ne}")
        flag_add(62, 16)
        A.label(ne)
        claim()
        A(f"s_branch {go}")
        A.label(exh)
        A("s_mov_b32 s30, 0x10000000")
        A("s_mov_b32 s31, 0x7fffffff")
        A(f"s_mov_b32 s55, {TD}")
        flag_add(62, 16)
        flag_add(62, 48)
        stamp("s3")
        A.label(go)
        A("s_sub_u32 s31, s31, 1")
    W = (2 * TD - 1) * tl
    def round_(first):
        for t in range(TD):
            nextchunk()
            ex = NE if first else 0
            A(f"s_waitcnt vmcnt({W+ex})")
            scores(kbuf(t), Q, S, tl)
            load(kbuf(t), "s[8:11]")
            softmax(S, tl, M, LS, ACC, AL, NM, PL, PH)
            A(f"s_waitcnt vmcnt({W+ex})")
            pv(vbuf(t), tl, ACC, PL, PH)
            load(vbuf(t), "s[12:15]")
            A(f"s_add_u32 s30, s30, {TS}")
            if not first:
                A("s_sub_u32 s55, s55, 1")
                A("s_cmp_eq_u32 s55, 0")
                A("s_cbranch_scc1 L_fin")
    if WE:
        round_(True)
        A(f"s_waitcnt vmcnt({2*TD*tl})")
        flag_add(7, 8)
    A.label("L_round")
    if stamps:
        for nm in sst:
            if nm.startswith("sr"):
                sk = lab("nost")
                A(f"s_cmp_lg_u32 s54, {int(nm[2:])}")
                A(f"s_cbranch_scc1 {sk}")
                stamp(nm)
                A.label(sk)
        A("s_add_u32 s54, s54, 1")
    round_(False)
    A("s_branch L_round")
    A.label("L_fin")
    stamp("s5")
    A("s_nop 2")
    finalize(M, LS, ACC, 24, 40, 42)
    stamp("s4")
    A(f"buffer_store_dwordx4 v[40:43], v5, s[24:27], s43 offen {ast}")
    A("v_mov_b32 v33, v40")
    A("v_mov_b32 v32, v42")
    A("ds_write_b64 v6, v[32:33]")
    A("s_waitcnt lgkmcnt(0)")
    flag_add(62, 48)
    if WL and not woh:
        for T_ in WL: wodma(T_)
        A("s_waitcnt vmcnt(0)")
        flag_add(7, 32)
    if stamps and "ack" in ab: A("s_waitcnt vmcnt(0)")
    stamp_store(240)
    A.label("L_end")
    A("s_endpgm")

    body = A.render()
    nv = 256 if stamps else 240
    txt = HEADER + f"; @launch grid=(256,1,1) block=(512,1,1) lds={L_TOT}\n"
    txt += '.amdgcn_target "amdgcn-amd-amdhsa--gfx950"\n.text\n'
    txt += f".globl {NAME}\n.p2align 8\n.type {NAME},@function\n"
    txt += body
    txt += '.section .rodata,"a"\n.p2align 6\n'
    txt += f".amdhsa_kernel {NAME}\n"
    txt += f"  .amdhsa_next_free_vgpr {nv}\n  .amdhsa_next_free_sgpr 102\n  .amdhsa_accum_offset {nv}\n"
    txt += "  .amdhsa_group_segment_fixed_size 0\n  .amdhsa_kernarg_size 104\n  .amdhsa_user_sgpr_count 2\n"
    txt += "  .amdhsa_user_sgpr_kernarg_segment_ptr 1\n  .amdhsa_system_sgpr_workgroup_id_x 1\n.end_amdhsa_kernel\n"
    return txt

if __name__ == "__main__":
    import argparse
    ap = argparse.ArgumentParser()
    ap.add_argument("out")
    ap.add_argument("--kw", default="")
    a = ap.parse_args()
    kw = eval("dict(" + a.kw + ")")
    open(a.out, "w").write(gen(**kw))
```

```python
import sys, struct
sys.path.insert(0, "dev")
from asmlib import Asm
from gen import HEADER, NAME

L_W = 0
L_FIFO = 32768
L_WO = 65536
L_QA = 131072
L_QB = L_QA + 1024
L_OA = L_QB + 2048
L_OB = L_OA + 1024
L_FL = L_OB + 1024
L_OWN = L_FL + 64
L_X = L_OWN + 2048
L_TOT = L_X + 4096
W_CNT = 0x1000
W_QP = 0x10000
W_PA = 0x100000
W_PB = 0x200000
W_Y = 0x400000
W_STAMP = 0x20000000

F32 = lambda x: struct.unpack("<I", struct.pack("<f", x))[0]
CEXP = struct.unpack("<I", struct.pack("<f", 1.4426950408889634 / (128 ** 0.5)))[0]

def gen(TD=3, CS=4, ns=12, NBW=1, JB=2, ksk=4, stamps=0, spin=200000, hst=("h1", "h2", "h3", "h4"),
        sst=("s1", "s2", "s3", "s4"), rot=1, wox=8, psl=16, qsl=4, ysl=0, early=0, esl=16,
        bst="sc1 nt", bld="sc1 nt", ast="sc1", ald="sc1", ab=(), wolate=0, pasl=0, touch=0, woh=0, kp="nt", vp="nt", til=0, gate=3, n2=0, n1=0, rc=0, rnd=0, mixed=0):
    tl = 4
    A = Asm()
    NWP = 8
    NT = 512
    CD = CS
    CSB = CS * 4096
    assert ns * NWP * CS <= NT and (NT - ns * NWP * CS) % CD == 0
    NSK = NBW * ksk
    assert not til and (2 * n2 + n1) % CS == 0
    N4 = (NT - ns * NWP * CS - 2 * n2 - n1) // CS + NSK
    NDYN = N4 + n2 + n1
    T2 = NT - 2 * n2 - n1
    T1 = NT - n1
    assert CS == 4 and ns - ksk >= 2 and ns <= 16
    NP = 2 * NBW
    BT = 16 // NBW
    uid = [0]
    def lab(p):
        uid[0] += 1
        return f"L_{p}_{uid[0]}"

    P = dict(A_x=64, A_k=66, A_v=68, A_wq=70, A_wo=72, B_x=74, B_k=76, B_v=78, B_wq=80, B_wo=82, out=84, dbg=86, ws=88)
    def srd(d, lo, hi, n):
        A(f"s_mov_b32 s{d}, s{lo}")
        A(f"s_and_b32 s{d+1}, s{hi}, 0xffff")
        A(f"s_mov_b32 s{d+2}, {hex(n)}")
        A(f"s_mov_b32 s{d+3}, 0x20000")
    def srdp(d, name, n): srd(d, P[name], P[name] + 1, n)

    def stamp(i):
        if not stamps: return
        if isinstance(i, str):
            lst = hst if i[0] == "h" else sst
            if i not in lst: return
            i = 1 + list(lst).index(i)
        A(f"s_memrealtime s[{90+2*i}:{91+2*i}]")
    def stamp_store(vt):
        if not stamps: return
        A(f"s_memrealtime s[{90+2*(stamps-1)}:{91+2*(stamps-1)}]")
        A("s_waitcnt lgkmcnt(0)")
        A("s_lshl_b32 s32, s2, 3")
        A("s_add_u32 s32, s32, s3")
        A(f"s_mul_i32 s32, s32, {stamps*8}")
        A(f"s_add_u32 s32, s32, {hex(W_STAMP)}")
        for i in range(stamps):
            A(f"v_mov_b32 v{vt+2*i}, s{90+2*i}")
            A(f"v_mov_b32 v{vt+2*i+1}, s{91+2*i}")
        A(f"v_mov_b32 v{vt+2*stamps}, 0")
        A("s_mov_b64 exec, 1")
        for i in range(stamps):
            A(f"buffer_store_dwordx2 v[{vt+2*i}:{vt+2*i+1}], v{vt+2*stamps}, s[24:27], s32 offen offset:{8*i}")
        A("s_mov_b64 exec, -1")

    def chain(op3, op2, dst, regs):
        if len(regs) == 2:
            A(f"{op2} v{dst}, {regs[0]}, {regs[1]}"); return
        A(f"{op3} v{dst}, {regs[0]}, {regs[1]}, {regs[2]}")
        i = 3
        while i < len(regs):
            if i + 1 < len(regs):
                A(f"{op3} v{dst}, v{dst}, {regs[i]}, {regs[i+1]}"); i += 2
            else:
                A(f"{op2} v{dst}, v{dst}, {regs[i]}"); i += 1
    def scores(K, Q, S, n):
        for r in range(4):
            for j in range(n):
                c = "0" if r == 0 else f"v{S+j}"
                A(f"v_dot2_f32_bf16 v{S+j}, v{K+4*j+r}, v{Q+r}, {c}")
        for st in (8, 4, 2, 1):
            for j in range(n):
                A(f"v_add_f32_dpp v{S+j}, v{S+j}, v{S+j} row_ror:{st} row_mask:0xf bank_mask:0xf")
    def round2(regs):
        for r in regs: A(f"v_cvt_pk_bf16_f32 v{r}, 0, v{r}")
        for r in regs: A(f"v_mul_f32 v{r}, {hex(F32(128 ** -0.5))}, v{r}")
        for r in regs: A(f"v_cvt_pk_bf16_f32 v{r}, 0, v{r}")
    def softmax(S, n, M, LS, ACC, AL, NM, PL, PH):
        if rnd: round2([S + j for j in range(n)])
        chain("v_max3_f32", "v_max_f32", AL, [f"v{S+j}" for j in range(n)] + [f"v{M}"])
        A(f"v_sub_f32 v{NM}, v{M}, v{AL}")
        A(f"v_mov_b32 v{M}, v{AL}")
        A(f"v_mul_f32 v{AL}, s7, v{NM}")
        A(f"v_mul_f32 v{NM}, s7, v{M}")
        A(f"v_exp_f32 v{AL}, v{AL}")
        for j in range(n):
            A(f"v_fma_f32 v{S+j}, v{S+j}, s7, -v{NM}")
        for j in range(n):
            A(f"v_exp_f32 v{S+j}, v{S+j}")
        for e in range(8):
            A(f"v_mul_f32 v{ACC+e}, v{ACC+e}, v{AL}")
        A(f"v_fma_f32 v{LS}, v{LS}, v{AL}, v{S}")
        for j in range(1, n):
            A(f"v_add_f32 v{LS}, v{LS}, v{S+j}")
        for j in range(n):
            A(f"v_cvt_pk_bf16_f32 v{PL+j}, v{S+j}, 0")
            A(f"v_cvt_pk_bf16_f32 v{PH+j}, 0, v{S+j}")
    def pv(V, n, ACC, PL, PH):
        for j in range(n):
            for r in range(4):
                A(f"v_dot2_f32_bf16 v{ACC+2*r}, v{V+4*j+r}, v{PL+j}, v{ACC+2*r}")
                A(f"v_dot2_f32_bf16 v{ACC+2*r+1}, v{V+4*j+r}, v{PH+j}, v{ACC+2*r+1}")
    def init_state(M, LS, ACC):
        for e in range(8): A(f"v_mov_b32 v{ACC+e}, 0")
        A(f"v_mov_b32 v{M}, 0xf149f2ca")
        A(f"v_mov_b32 v{LS}, 0")
    def finalize(M, LS, ACC, T, OPK, OLSE):
        A(f"v_mov_b32 v{T+1}, v{M}")
        A(f"v_mov_b32 v{T+2}, v{M}")
        A(f"v_permlane32_swap_b32 v{T+1}, v{T+2}")
        A(f"v_max_f32 v{T+1}, v{T+1}, v{T+2}")
        A(f"v_mov_b32 v{T+2}, v{T+1}")
        A(f"v_permlane16_swap_b32 v{T+1}, v{T+2}")
        A(f"v_max_f32 v{T}, v{T+1}, v{T+2}")
        A(f"v_sub_f32 v{T+1}, v{M}, v{T}")
        A(f"v_mul_f32 v{T+1}, s7, v{T+1}")
        A(f"v_exp_f32 v{T+1}, v{T+1}")
        A(f"v_mul_f32 v{LS}, v{LS}, v{T+1}")
        for e in range(8): A(f"v_mul_f32 v{ACC+e}, v{ACC+e}, v{T+1}")
        A(f"v_mov_b32 v{T+1}, v{LS}")
        A(f"v_mov_b32 v{T+2}, v{LS}")
        for e in range(4): A(f"v_permlane32_swap_b32 v{ACC+e}, v{ACC+e+4}")
        A(f"v_permlane32_swap_b32 v{T+1}, v{T+2}")
        for e in range(4): A(f"v_add_f32 v{ACC+e}, v{ACC+e}, v{ACC+e+4}")
        A(f"v_add_f32 v{T+1}, v{T+1}, v{T+2}")
        A(f"v_mov_b32 v{T+2}, v{T+1}")
        for e in range(2): A(f"v_permlane16_swap_b32 v{ACC+e}, v{ACC+e+2}")
        A(f"v_permlane16_swap_b32 v{T+1}, v{T+2}")
        A(f"v_add_f32 v{T+3}, v{T+1}, v{T+2}")
        for e in range(2): A(f"v_add_f32 v{ACC+e}, v{ACC+e}, v{ACC+e+2}")
        A(f"v_rcp_f32 v{T+1}, v{T+3}")
        A(f"v_log_f32 v{T+2}, v{T+3}")
        A(f"v_mul_f32 v{ACC}, v{ACC}, v{T+1}")
        A(f"v_mul_f32 v{ACC+1}, v{ACC+1}, v{T+1}")
        A(f"v_fma_f32 v{OLSE}, v{T}, s7, v{T+2}")
        A(f"v_cvt_pk_bf16_f32 v{OPK}, v{ACC}, v{ACC+1}")
    def combine(G, n, OPK, OLSE=None):
        T1, T2, T3, T4 = 56, 57, 58, 59
        chain("v_max3_f32", "v_max_f32", T1, [f"v{G+4*i+2}" for i in range(n)])
        for i in range(n): A(f"v_sub_f32 v{G+4*i+2}, v{G+4*i+2}, v{T1}")
        for i in range(n): A(f"v_exp_f32 v{G+4*i+2}, v{G+4*i+2}")
        for i in range(n):
            A(f"v_lshlrev_b32 v{G+4*i+1}, 16, v{G+4*i}")
            A(f"v_and_b32 v{G+4*i+3}, 0xffff0000, v{G+4*i}")
        A(f"v_add_f32 v{T4}, v{G+2}, v{G+6}")
        A(f"v_mul_f32 v{T2}, v{G+2}, v{G+1}")
        A(f"v_mul_f32 v{T3}, v{G+2}, v{G+3}")
        for i in range(2, n): A(f"v_add_f32 v{T4}, v{T4}, v{G+4*i+2}")
        if OLSE is not None: A(f"v_log_f32 v{OLSE}, v{T4}")
        A(f"v_rcp_f32 v{T4}, v{T4}")
        for i in range(1, n):
            A(f"v_fmac_f32 v{T2}, v{G+4*i+2}, v{G+4*i+1}")
            A(f"v_fmac_f32 v{T3}, v{G+4*i+2}, v{G+4*i+3}")
        if OLSE is not None: A(f"v_add_f32 v{OLSE}, v{OLSE}, v{T1}")
        A(f"v_mul_f32 v{T2}, v{T2}, v{T4}")
        A(f"v_mul_f32 v{T3}, v{T3}, v{T4}")
        A(f"v_cvt_pk_bf16_f32 v{OPK}, v{T2}, v{T3}")
    def poll_masked(n, issue1, tagregs, sleep, mbase=64, extra=None):
        top, done = lab("pk"), lab("pkdone")
        A(f"s_mov_b32 s42, {spin}")
        for i in range(n): A(f"s_mov_b64 s[{mbase+2*i}:{mbase+2*i+1}], -1")
        A.label(top)
        for i in range(n):
            A(f"s_mov_b64 exec, s[{mbase+2*i}:{mbase+2*i+1}]")
            issue1(i)
        A("s_mov_b64 exec, -1")
        if extra: extra[0]()
        A("s_waitcnt vmcnt(0) lgkmcnt(0)" if extra else "s_waitcnt vmcnt(0)")
        for i in range(n):
            tr = tagregs(i)
            A(f"v_cmp_ne_u32 s[{mbase+2*i}:{mbase+2*i+1}], s6, v{tr[0]}")
            for r in tr[1:]:
                A(f"v_cmp_ne_u32 vcc, s6, v{r}")
                A(f"s_or_b64 s[{mbase+2*i}:{mbase+2*i+1}], s[{mbase+2*i}:{mbase+2*i+1}], vcc")
            if i == 0: A(f"s_mov_b64 s[40:41], s[{mbase}:{mbase+1}]")
            else: A(f"s_or_b64 s[40:41], s[40:41], s[{mbase+2*i}:{mbase+2*i+1}]")
        A("s_cmp_eq_u64 s[40:41], 0")
        A(f"s_cbranch_scc1 {done}")
        if extra: extra[1]()
        elif sleep: A(f"s_sleep {sleep}")
        A("s_sub_u32 s42, s42, 1")
        A("s_cmp_lg_u32 s42, 0")
        A(f"s_cbranch_scc1 {top}")
        A.label(done)
    def flag_add(addr_v, off=0):
        A("s_mov_b64 exec, 1")
        A(f"ds_add_u32 v{addr_v}, v63 offset:{off}")
        A("s_mov_b64 exec, -1")
    def flag_wait(addr_v, off, target, tmp_v, sleep):
        top, done = lab("fw"), lab("fwdone")
        A(f"s_mov_b32 s42, {spin*16}")
        A.label(top)
        A(f"ds_read_b32 v{tmp_v}, v{addr_v} offset:{off}")
        A("s_waitcnt lgkmcnt(0)")
        A(f"v_readfirstlane_b32 s47, v{tmp_v}")
        A(f"s_cmp_ge_u32 s47, {target}")
        A(f"s_cbranch_scc1 {done}")
        if sleep: A(f"s_sleep {sleep}")
        A("s_sub_u32 s42, s42, 1")
        A("s_cmp_lg_u32 s42, 0")
        A(f"s_cbranch_scc1 {top}")
        A.label(done)
    def mktag():
        A("s_mul_i32 s6, s6, 0x9e3779b1")
        A("s_add_u32 s6, s6, 0x7f4a7c15")

    A.label(NAME)
    A("s_cmp_ge_u32 s2, 256")
    A("s_cbranch_scc1 L_end")
    for i in range(stamps): stamp(i)
    A("s_load_dwordx16 s[64:79], s[0:1], 0")
    A("s_load_dwordx8 s[80:87], s[0:1], 64")
    A("s_load_dwordx2 s[88:89], s[0:1], 96")
    A("v_lshrrev_b32 v1, 6, v0")
    A("v_readfirstlane_b32 s3, v1")
    A("v_and_b32 v1, 63, v0")
    A("s_lshr_b32 s4, s2, 3")
    A("s_and_b32 s5, s2, 7")
    if rot:
        A(f"s_mul_i32 s7, s5, {rot}")
        A("s_add_u32 s4, s4, s7")
        A("s_and_b32 s4, s4, 31")
    A(f"s_mov_b32 s7, {hex(F32(1.4426950408889634) if rnd else CEXP)}")
    A("v_lshlrev_b32 v2, 4, v1")
    A(f"v_mov_b32 v62, {L_FL}")
    A("v_mov_b32 v63, 1")
    A(f"s_and_b32 s62, s5, {8//NBW-1}")
    A(f"s_cmp_eq_u32 s62, {JB}")
    A("s_cselect_b32 s62, 1, 0")
    A("v_mov_b32 v7, 0")
    A("v_and_b32 v6, 15, v1")
    A("v_lshl_add_u32 v6, v6, 2, v62")
    A("ds_write_b32 v6, v7")
    A("s_waitcnt lgkmcnt(0)")
    A("s_barrier")
    A("s_load_dword s6, s[88:89], 0")
    srdp(24, "ws", 0x40000000)
    A("s_cmp_ge_u32 s3, 4")
    A("s_cbranch_scc1 L_stream")

    stamp("h0a")
    A("s_lshr_b32 s33, s5, 2")
    A("s_bfe_u32 s34, s5, 0x10001")
    A("s_and_b32 s35, s5, 1")
    A("s_cmp_eq_u32 s33, 0")
    A(f"s_cselect_b32 s36, s{P['A_wq']}, s{P['B_wq']}")
    A(f"s_cselect_b32 s37, s{P['A_wq']+1}, s{P['B_wq']+1}")
    A(f"s_cselect_b32 s38, s{P['A_x']}, s{P['B_x']}")
    A(f"s_cselect_b32 s39, s{P['A_x']+1}, s{P['B_x']+1}")
    srd(12, 36, 37, 0x800000)
    srd(8, 38, 39, 8192)
    A("v_lshrrev_b32 v3, 3, v1")
    A("v_lshlrev_b32 v3, 13, v3")
    A("v_and_b32 v4, 7, v1")
    A("v_lshl_add_u32 v3, v4, 4, v3")
    A("s_lshl_b32 s43, s35, 9")
    A("s_lshl_b32 s44, s3, 7")
    A("s_add_u32 s43, s43, s44")
    A("s_lshl_b32 s43, s43, 13")
    A("s_lshl_b32 s44, s4, 8")
    A("s_add_u32 s43, s43, s44")
    A("s_lshl_b32 s44, s34, 7")
    A("s_add_u32 s43, s43, s44")
    A("s_lshl_b32 s44, s3, 14")
    for u in range(16):
        A("s_mov_b32 m0, s44")
        A("buffer_load_dwordx4 v3, s[12:15], s43 offen nt lds")
        if u < 15:
            A("s_add_u32 s43, s43, 0x10000")
            A("s_add_u32 s44, s44, 1024")
    XF = 64
    A("s_lshl_b32 s43, s3, 11")
    A("s_lshl_b32 s44, s35, 10")
    A("s_add_u32 s43, s43, s44")
    A("s_lshl_b32 s44, s3, 10")
    A(f"s_add_u32 s44, s44, {L_X}")
    A("s_mov_b32 m0, s44")
    A("buffer_load_dwordx4 v2, s[8:11], s43 offen lds")
    flag_add(62, 36)
    stamp("h0b")
    A("s_or_b32 s43, s5, s3")
    A("s_cmp_lg_u32 s43, 0")
    A("s_cbranch_scc1 L_noinit")
    A("v_lshlrev_b32 v6, 13, v1")
    A("s_lshl_b32 s43, s4, 8")
    A(f"s_add_u32 s43, s43, {hex(W_CNT)}")
    A("s_mov_b64 exec, 15")
    A("buffer_store_dword v7, v6, s[24:27], s43 offen sc1")
    A("s_mov_b64 exec, -1")
    A.label("L_noinit")
    A("s_waitcnt lgkmcnt(0)")
    A("v_and_b32 v11, 3, v1")
    A("v_lshlrev_b32 v11, 10, v11")
    A("v_lshrrev_b32 v5, 4, v1")
    A("v_lshl_add_u32 v11, v5, 4, v11")
    A(f"v_add_u32 v11, {L_X}, v11")
    srdp(16, "B_k", 0x2000000)
    srdp(20, "B_v", 0x2000000)
    srdp(28, "out", 16384)
    if woh:
        srdp(8, "A_wo", 0x800000)
        srdp(12, "B_wo", 0x800000)
    A("v_lshrrev_b32 v5, 4, v1")
    A("v_lshlrev_b32 v5, 3, v5")
    A("v_bfe_u32 v6, v1, 2, 2")
    A("v_add_u32 v5, v5, v6")
    A("v_and_b32 v6, 3, v1")
    A("v_lshlrev_b32 v6, 3, v6")
    A("v_lshl_add_u32 v8, v5, 7, v6")
    A("v_lshl_add_u32 v9, v5, 8, v6")
    A("s_lshl_b32 s43, s3, 5")
    A("v_add_u32 v8, s43, v8")
    A("v_bfe_u32 v5, v1, 2, 3")
    A("s_lshl_b32 s43, s3, 1")
    A("v_xor_b32 v5, s43, v5")
    A("v_lshl_add_u32 v9, v5, 5, v9")
    A(f"v_add_u32 v9, {L_WO}, v9")

    mktag()
    A("v_and_b32 v4, 3, v1")
    A("v_lshlrev_b32 v4, 10, v4")
    A("v_lshrrev_b32 v5, 4, v1")
    A("v_lshl_add_u32 v4, v5, 5, v4")
    A("v_and_b32 v5, 4, v1")
    A("v_lshl_add_u32 v4, v5, 2, v4")
    A("s_lshl_b32 s43, s33, 5")
    A("s_add_u32 s43, s43, s4")
    A("s_lshl_b32 s43, s43, 1")
    A("s_add_u32 s43, s43, s35")
    A("s_lshl_b32 s43, s43, 12")
    A("s_lshl_b32 s44, s34, 9")
    A("s_add_u32 s43, s43, s44")
    A("s_lshl_b32 s44, s3, 7")
    A("s_add_u32 s43, s43, s44")
    A(f"s_add_u32 s43, s43, {hex(W_QP)}")
    for r in (21, 23): A(f"v_mov_b32 v{r}, s6")
    A("s_mov_b32 s56, 0x00ff00ff")
    A("s_mov_b32 s57, 0x00ff00ff")
    A("s_waitcnt vmcnt(0)")
    flag_add(62, 0)
    flag_wait(62, 0, 4, 10, 0)
    stamp("h1")
    WF = 128
    for ks in range(16):
        A(f"ds_read_b64_tr_b16 v[{WF+4*ks}:{WF+4*ks+1}], v8 offset:{ks*4096}")
        A(f"ds_read_b64_tr_b16 v[{WF+4*ks+2}:{WF+4*ks+3}], v8 offset:{ks*4096+512}")
        A(f"ds_read_b128 v[{XF+4*ks}:{XF+4*ks+3}], v11 offset:{ks*64}")
    for ks in range(16):
        A(f"s_waitcnt lgkmcnt({min(15, 3*(15-ks))})")
        d = 12 + 4 * (ks & 1)
        c = "0" if ks < 2 else f"v[{d}:{d+3}]"
        A(f"v_mfma_f32_16x16x32_bf16 v[{d}:{d+3}], v[{WF+4*ks}:{WF+4*ks+3}], v[{XF+4*ks}:{XF+4*ks+3}], {c}")
    for r in range(4): A(f"v_add_f32 v{20+2*r}, v{12+r}, v{16+r}")
    A("v_mov_b32_dpp v20, v24 row_shr:4 row_mask:0xf bank_mask:0x2")
    A("v_mov_b32_dpp v22, v26 row_shr:4 row_mask:0xf bank_mask:0x2")
    A("s_mov_b64 exec, s[56:57]")
    A("buffer_store_dwordx4 v[20:23], v4, s[24:27], s43 offen sc1")
    A("s_mov_b64 exec, -1")
    stamp("h2")
    A("s_lshl_b32 s43, s4, 13")
    A("s_lshl_b32 s44, s3, 10")
    A("s_add_u32 s43, s43, s44")
    A(f"s_add_u32 s43, s43, {hex(W_QP)}")
    A("s_add_u32 s44, s43, 4096")
    A("s_lshl_b32 s45, s3, 8")
    A(f"s_add_u32 s45, s45, {L_QA}")
    A("v_lshl_add_u32 v10, v1, 2, s45")
    poll_masked(2, lambda i: A(f"buffer_load_dwordx4 v[{28+4*i}:{31+4*i}], v2, s[24:27], s{43+i} offen sc1"),
                lambda i: [29 + 4 * i, 31 + 4 * i], qsl)
    A("v_add_f32 v28, v28, v32")
    A("v_add_f32 v30, v30, v34")
    A("v_cvt_pk_bf16_f32 v28, v28, v30")
    A("ds_write_b32 v10, v28")
    A("s_waitcnt lgkmcnt(0)")
    A("s_barrier")
    stamp("h3")
    if 1 in ab: A("s_branch L_hend")
    A("s_cmp_eq_u32 s62, 0")
    A("s_cbranch_scc1 L_noB")

    lgNP = {2: 1, 4: 2}[NP]
    if NBW == 1: A("s_mov_b32 s58, s4")
    else:
        A("s_lshl_b32 s58, s4, 1")
        A("s_lshr_b32 s59, s5, 2")
        A("s_add_u32 s58, s58, s59")
    A(f"s_lshr_b32 s59, s58, {lgNP}")
    A(f"s_and_b32 s58, s58, {NP-1}")
    A("s_lshl_b32 s60, s59, 21")
    A(f"s_mul_i32 s61, s58, {2048//NP*256}")
    A("s_add_u32 s60, s60, s61")
    A("s_lshl_b32 s61, s3, 12")
    A("s_add_u32 s60, s60, s61")
    A(f"s_add_u32 s60, s60, {6144*256}")
    A("s_and_b32 s48, s59, 3")
    A("s_lshl_b32 s48, s48, 3")
    A("s_lshl_b32 s49, s3, 1")
    A("s_add_u32 s48, s48, s49")
    A("s_add_u32 s49, s48, 32")
    A("s_lshl_b32 s49, s49, 13")
    A("s_lshr_b32 s61, s59, 2")
    A("s_lshl_b32 s50, s61, 10")
    A("s_add_u32 s49, s49, s50")
    A(f"s_add_u32 s49, s49, {hex(W_QP)}")
    A("s_add_u32 s50, s49, 4096")
    A("s_add_u32 s51, s49, 8192")
    A("s_add_u32 s52, s49, 12288")
    poll_masked(4, lambda i: A(f"buffer_load_dwordx4 v[{28+4*i}:{31+4*i}], v2, s[24:27], s{49+i} offen sc1"),
                lambda i: [29 + 4 * i, 31 + 4 * i], 16)
    KB = 64
    def bload(par):
        for u in range(4):
            A(f"buffer_load_dwordx4 v[{KB+32*par+4*u}:{KB+32*par+4*u+3}], v2, s[16:19], s60 offen offset:{u*1024} nt")
        for u in range(4):
            A(f"buffer_load_dwordx4 v[{KB+32*par+16+4*u}:{KB+32*par+16+4*u+3}], v2, s[20:23], s60 offen offset:{u*1024} nt")
        A("s_add_u32 s60, s60, 0x4000")
    bload(0); bload(1)
    A("v_add_f32 v28, v28, v32")
    A("v_add_f32 v30, v30, v34")
    A("v_add_f32 v36, v36, v40")
    A("v_add_f32 v38, v38, v42")
    A("v_cvt_pk_bf16_f32 v28, v28, v30")
    A("v_cvt_pk_bf16_f32 v36, v36, v38")
    A("s_lshl_b32 s43, s3, 9")
    A(f"s_add_u32 s43, s43, {L_QB}")
    A("v_lshl_add_u32 v10, v1, 2, s43")
    A("ds_write_b32 v10, v28")
    A("ds_write_b32 v10, v36 offset:256")
    A("s_waitcnt lgkmcnt(0)")
    flag_add(62, 4)
    flag_wait(62, 4, 4, 10, 1)
    A("v_and_b32 v11, 0xf0, v2")
    A(f"v_add_u32 v11, {L_QB}, v11")
    QB = 128
    for hh in range(8):
        A(f"ds_read_b128 v[{QB+4*hh}:{QB+4*hh+3}], v11 offset:{hh*256}")
    SB = 160
    def bs(hh): return dict(M=SB + 10 * hh, LS=SB + 10 * hh + 1, ACC=SB + 10 * hh + 2)
    for hh in range(8):
        st = bs(hh); init_state(st["M"], st["LS"], st["ACC"])
    A(f"s_mov_b32 s45, {BT//2}")
    A("s_waitcnt lgkmcnt(0)")
    A.label("L_battn")
    for par in range(2):
        A("s_waitcnt vmcnt(8)")
        for hh in range(8):
            st = bs(hh)
            o = 20 * (hh & 1)
            S_, AL_, NM_, PL_, PH_ = 12 + o, 16 + o, 17 + o, 20 + o, 24 + o
            scores(KB + 32 * par, QB + 4 * hh, S_, 4)
            softmax(S_, 4, st["M"], st["LS"], st["ACC"], AL_, NM_, PL_, PH_)
            pv(KB + 32 * par + 16, 4, st["ACC"], PL_, PH_)
        if par == 0:
            A("s_cmp_eq_u32 s45, 1")
            A("s_cselect_b32 s60, 0x2000000, s60")
        bload(par)
    A("s_sub_u32 s45, s45, 1")
    A("s_cmp_lg_u32 s45, 0")
    A("s_cbranch_scc1 L_battn")
    A("v_and_b32 v4, 15, v1")
    A("v_lshlrev_b32 v4, 5, v4")
    A("v_lshrrev_b32 v5, 4, v1")
    A("v_lshl_add_u32 v4, v5, 3, v4")
    A("s_lshl_b32 s43, s3, 12")
    A("v_add_u32 v4, s43, v4")
    for hh in range(8):
        st = bs(hh)
        o = 8 * (hh & 1)
        finalize(st["M"], st["LS"], st["ACC"], 12 + o, 17 + o, 16 + o)
        A(f"ds_write_b64 v4, v[{16+o}:{17+o}] offset:{hh*512}")
    A("s_waitcnt lgkmcnt(0)")
    flag_add(62, 12)
    flag_wait(62, 12, 4, 10, 1)
    A("s_waitcnt vmcnt(0)")
    A("s_lshl_b32 s43, s3, 10")
    A("v_lshl_add_u32 v4, v1, 3, s43")
    A("s_lshl_b32 s43, s48, 2")
    A("s_add_u32 s43, s43, s61")
    A(f"s_lshl_b32 s43, s43, {lgNP}")
    A("s_add_u32 s43, s43, s58")
    A("s_lshl_b32 s43, s43, 10")
    A(f"s_add_u32 s43, s43, {hex(W_PB)}")
    A(f"s_add_u32 s44, s43, {4*NP*1024}")
    G = 64
    for k in range(2):
        for w_ in range(4):
            A(f"ds_read_b64 v[{G+16*k+4*w_+2}:{G+16*k+4*w_+3}], v4 offset:{w_*4096+k*512}")
    A("s_waitcnt lgkmcnt(0)")
    for k in range(2):
        for w_ in range(4): A(f"v_mov_b32 v{G+16*k+4*w_}, v{G+16*k+4*w_+3}")
        A(f"v_mov_b32 v{13+4*k}, s6")
        A(f"v_mov_b32 v{15+4*k}, s6")
        combine(G + 16 * k, 4, 12 + 4 * k, 14 + 4 * k)
        A(f"buffer_store_dwordx4 v[{12+4*k}:{15+4*k}], v2, s[24:27], s{43+k} offen {bst}")
    stamp("h4")
    A.label("L_noB")
    if 2 in ab: A("s_branch L_hend")

    FR = [128, 160]
    def wofrag(T_):
        for ct in range(2):
            for ks in range(4):
                r = FR[T_] + (ct * 4 + ks) * 4
                off = T_ * 32768 + ks * 8192
                ar = 3 if ct else 9
                A(f"ds_read_b64_tr_b16 v[{r}:{r+1}], v{ar} offset:{off}")
                A(f"ds_read_b64_tr_b16 v[{r+2}:{r+3}], v{ar} offset:{off+1024}")
    A("v_xor_b32 v3, 32, v9")
    WE = [T_ for T_ in range(2) if T_ >= wolate]
    WL = [T_ for T_ in range(2) if T_ < wolate]
    if WE:
        flag_wait(62, 8, 4, 56, 8)
        for T_ in WE: wofrag(T_)
    G = 64
    A("s_lshl_b32 s43, s3, 8")
    A(f"s_add_u32 s43, s43, {L_OA}")
    A("v_lshl_add_u32 v60, v1, 2, s43")
    A("v_and_b32 v6, 3, v1")
    A("v_lshlrev_b32 v6, 8, v6")
    A("v_lshrrev_b32 v7, 4, v1")
    A("v_lshl_add_u32 v6, v7, 4, v6")
    A(f"v_add_u32 v6, {L_OA}, v6")
    A("v_and_b32 v8, 3, v1")
    A("v_lshlrev_b32 v8, 14, v8")
    A("v_lshl_add_u32 v8, v7, 4, v8")
    A("v_and_b32 v7, 4, v1")
    A("v_lshl_add_u32 v8, v7, 4, v8")
    A("s_lshl_b32 s52, s5, 4")
    A("s_add_u32 s52, s52, s3")
    A("s_lshl_b32 s52, s52, 12")
    A("s_lshl_b32 s53, s4, 7")
    A("s_add_u32 s52, s52, s53")
    A(f"s_add_u32 s52, s52, {hex(W_Y)}")
    A("s_add_u32 s53, s52, 0x80000")
    for r in (21, 23, 29, 31): A(f"v_mov_b32 v{r}, s6")
    A("s_bfe_u32 s60, s4, 0x20002")
    A("s_lshl_b32 s60, s60, 12")
    A("s_lshl_b32 s44, s5, 8")
    A("s_add_u32 s60, s60, s44")
    A("s_and_b32 s44, s4, 3")
    A("s_lshl_b32 s44, s44, 6")
    A("s_add_u32 s60, s60, s44")
    A("s_lshr_b32 s44, s4, 4")
    A("s_lshl_b32 s45, s44, 11")
    A("s_add_u32 s60, s60, s45")
    A("v_lshlrev_b32 v11, 3, v1")
    A("s_lshl_b32 s61, s5, 4")
    A("s_and_b32 s45, s4, 15")
    A("s_add_u32 s61, s61, s45")
    A("s_lshl_b32 s61, s61, 12")
    A("s_lshl_b32 s44, s44, 19")
    A("s_add_u32 s61, s61, s44")
    A(f"s_add_u32 s61, s61, {hex(W_Y)}")
    A("s_lshl_b32 s43, s3, 2")
    A("v_add_u32 v10, s43, v62")
    A("s_lshl_b32 s45, s4, 2")
    A("s_add_u32 s45, s45, s3")
    A(f"s_mul_i32 s46, s45, {NP*1024}")
    A(f"s_add_u32 s46, s46, {hex(W_PB)}")
    A("s_lshl_b32 s45, s45, 13")
    A(f"s_add_u32 s45, s45, {hex(W_PA)}")
    for i in range(7):
        A(f"s_add_u32 s44, s5, {i+1}")
        A("s_and_b32 s44, s44, 7")
        A("s_lshl_b32 s44, s44, 10")
        A(f"s_add_u32 s{80+i}, s45, s44")
    A("s_lshl_b32 s44, s3, 9")
    A(f"s_add_u32 s44, s44, {L_OWN}")
    A("s_waitcnt lgkmcnt(0)")
    A("v_lshl_add_u32 v5, v1, 3, s44")
    if woh:
        A("v_lshrrev_b32 v36, 4, v1")
        A("v_and_b32 v37, 0xf0, v2")
        A("v_lshlrev_b32 v38, 5, v36")
        A("v_xor_b32 v38, v38, v37")
        A("v_lshl_add_u32 v36, v36, 11, v38")
        A("v_xor_b32 v37, 0x80, v36")
        A("s_lshl_b32 s34, s4, 18")
        A("s_lshl_b32 s35, s3, 16")
        A("s_add_u32 s34, s34, s35")
        A("s_lshl_b32 s35, s5, 8")
        A("s_add_u32 s34, s34, s35")
        A("s_lshl_b32 s35, s3, 13")
        A(f"s_add_u32 s35, s35, {L_WO}")
    flag_wait(10, 16, 1, 56, esl)
    stamp("h5")
    if woh:
        for T_ in WL:
            for u in range(8):
                A(f"s_add_u32 s37, s35, {T_*32768+u*1024}")
                A("s_mov_b32 m0, s37")
                A(f"s_add_u32 s39, s34, {u*8192}")
                A(f"buffer_load_dwordx4 v{37 if (u>>1)&1 else 36}, s[{8+4*T_}:{11+4*T_}], s39 offen nt lds")
    if touch:
        A("v_mov_b32 v56, 0")
        A(f"s_mov_b32 s44, {hex(W_Y + 0x1ff000)}")
        A(f"s_mov_b32 s45, {hex(W_PA - 0x1000)}")
        A("s_mov_b64 exec, 1")
        A("buffer_load_dword v57, v56, s[24:27], s44 offen nt")
        A("buffer_load_dword v58, v56, s[24:27], s45 offen nt")
        A("buffer_load_dword v59, v56, s[28:31], s60 offen nt")
        A("s_mov_b64 exec, -1")
    poll_masked(NP, lambda i: A(f"buffer_load_dwordx4 v[{G+4*i}:{G+4*i+3}], v2, s[24:27], s46 offen offset:{i*1024} {bld}"),
                lambda i: [G + 4 * i + 1, G + 4 * i + 3], 16)
    if woh: flag_add(62, 32)
    combine(G, NP, 61)
    A("ds_write_b32 v60, v61 offset:1024")
    if not early: flag_wait(10, 48, 2, 56, 0)
    else: flag_wait(10, 48, 1, 56, 2)
    stamp("h6")
    if early:
        def ex0(): A("ds_read_b32 v56, v10 offset:48")
        def ex1():
            nosl = lab("nosl")
            A("v_readfirstlane_b32 s47, v56")
            A("s_cmp_ge_u32 s47, 2")
            A(f"s_cbranch_scc1 {nosl}")
            A(f"s_sleep {psl}")
            A.label(nosl)
        extra = (ex0, ex1)
    else:
        A(f"ds_read_b64 v[{G+30}:{G+31}], v5")
        extra = None
    poll_masked(7, lambda i: A(f"buffer_load_dwordx4 v[{G+4*i}:{G+4*i+3}], v2, s[24:27], s{80+i} offen {ald}"),
                lambda i: [G + 4 * i + 1, G + 4 * i + 3], pasl, extra=extra)
    if early:
        flag_wait(10, 48, 2, 56, 0)
        A(f"ds_read_b64 v[{G+30}:{G+31}], v5")
    A("s_waitcnt lgkmcnt(0)")
    A(f"v_mov_b32 v{G+28}, v{G+31}")
    stamp("h7")
    if WL:
        flag_wait(62, 32, 4, 56, 0)
        stamp("h7b")
        for T_ in WL: wofrag(T_)
    if stamps and "hc" in hst:
        k = 1 + list(hst).index("hc")
        A("s_waitcnt lgkmcnt(0)")
        A(f"s_sub_u32 s44, {spin}, s42")
        A("s_mul_i32 s44, s44, 100")
        A(f"s_add_u32 s{90+2*k}, s90, s44")
        A(f"s_addc_u32 s{91+2*k}, s91, 0")
    combine(G, 8, 61)
    A("ds_write_b32 v60, v61")
    A("s_waitcnt lgkmcnt(0)")
    A("s_barrier")
    OFR = [40, 96]
    DD = [12, 112]
    for T_ in range(2):
        for ks in range(4):
            A(f"ds_read_b128 v[{OFR[T_]+4*ks}:{OFR[T_]+4*ks+3}], v6 offset:{T_*1024+ks*64}")
    for T_ in range(2):
        for ks in range(4):
            A(f"s_waitcnt lgkmcnt({7-4*T_-ks})")
            for ct in range(2):
                d = DD[T_] + 4 * ct
                r = FR[T_] + (ct * 4 + ks) * 4
                c = "0" if ks == 0 else f"v[{d}:{d+3}]"
                A(f"v_mfma_f32_16x16x32_bf16 v[{d}:{d+3}], v[{r}:{r+3}], v[{OFR[T_]+4*ks}:{OFR[T_]+4*ks+3}], {c}")
    for T_ in range(2):
        y, d = 20 + 8 * T_, DD[T_]
        A(f"v_cvt_pk_bf16_f32 v{y}, v{d}, v{d+1}")
        A(f"v_cvt_pk_bf16_f32 v{y+2}, v{d+2}, v{d+3}")
        A(f"v_cvt_pk_bf16_f32 v{y+4}, v{d+4}, v{d+5}")
        A(f"v_cvt_pk_bf16_f32 v{y+6}, v{d+6}, v{d+7}")
        A(f"v_mov_b32_dpp v{y}, v{y+4} row_shr:4 row_mask:0xf bank_mask:0x2")
        A(f"v_mov_b32_dpp v{y+2}, v{y+6} row_shr:4 row_mask:0xf bank_mask:0x2")
        A("s_mov_b64 exec, s[56:57]")
        A(f"buffer_store_dwordx4 v[{y}:{y+3}], v8, s[24:27], s{52+T_} offen {ast}")
        A("s_mov_b64 exec, -1")
    stamp("h8")
    A("s_cmp_lg_u32 s3, 0")
    A("s_cbranch_scc1 L_hend")
    poll_masked(4, lambda i: A(f"buffer_load_dwordx4 v[{G+4*i}:{G+4*i+3}], v2, s[24:27], s61 offen offset:{i*1024} {ald}"),
                lambda i: [G + 4 * i + 1, G + 4 * i + 3], ysl)
    stamp("h9")
    U = G + 16
    for i in range(4):
        A(f"v_lshlrev_b32 v{U+4*i}, 16, v{G+4*i}")
        A(f"v_and_b32 v{U+4*i+1}, 0xffff0000, v{G+4*i}")
        A(f"v_lshlrev_b32 v{U+4*i+2}, 16, v{G+4*i+2}")
        A(f"v_and_b32 v{U+4*i+3}, 0xffff0000, v{G+4*i+2}")
    for k in range(4):
        A(f"v_add_f32 v{U+k}, v{U+k}, v{U+4+k}")
        A(f"v_add_f32 v{U+8+k}, v{U+8+k}, v{U+12+k}")
    for k in range(4):
        A(f"v_add_f32 v{U+k}, v{U+k}, v{U+8+k}")
    A(f"v_permlane32_swap_b32 v{U}, v{U+2}")
    A(f"v_permlane32_swap_b32 v{U+1}, v{U+3}")
    A(f"v_add_f32 v{U}, v{U}, v{U+2}")
    A(f"v_add_f32 v{U+1}, v{U+1}, v{U+3}")
    A(f"v_add_f32_dpp v{U}, v{U}, v{U} row_ror:8 row_mask:0xf bank_mask:0xf")
    A(f"v_add_f32_dpp v{U+1}, v{U+1}, v{U+1} row_ror:8 row_mask:0xf bank_mask:0xf")
    A(f"v_mov_b32 v{U+2}, v{U}")
    A(f"v_mov_b32 v{U+3}, v{U+1}")
    A(f"v_permlane16_swap_b32 v{U}, v{U+2}")
    A(f"v_permlane16_swap_b32 v{U+1}, v{U+3}")
    A(f"v_add_f32 v{U}, v{U}, v{U+2}")
    A(f"v_add_f32 v{U+1}, v{U+1}, v{U+3}")
    A(f"v_cvt_pk_bf16_f32 v{U+4}, v{U}, v{U+1}")
    A(f"v_mov_b32 v{U+5}, v{U+4}")
    A(f"v_permlane32_swap_b32 v{U+4}, v{U+5}")
    A("s_mov_b64 exec, 0xff")
    A(f"buffer_store_dwordx2 v[{U+4}:{U+5}], v11, s[28:31], s60 offen")
    A("s_mov_b64 exec, -1")
    A("s_cmp_lg_u32 s2, 0")
    A("s_cbranch_scc1 L_hend")
    A("v_mov_b32 v3, 0")
    A("v_mov_b32 v4, s6")
    A("s_mov_b64 exec, 1")
    A("buffer_store_dword v4, v3, s[24:27], 0 offen")
    A("s_mov_b64 exec, -1")
    A.label("L_hend")
    stamp_store(240)
    A("s_endpgm")

    A.label("L_stream")
    srdp(8, "A_k", 0x10000000)
    A("s_sub_u32 s33, s3, 4")
    A("s_lshl_b32 s38, s33, 5")
    A("s_add_u32 s38, s38, s4")
    A("s_lshl_b32 s39, s38, 8")
    A("s_lshl_b32 s38, s38, 21")
    A(f"s_mul_i32 s28, s33, {rc}")
    A("s_add_u32 s29, s28, s5")
    A("s_and_b32 s29, s29, 7")
    A("s_lshl_b32 s29, s29, 14")
    A("s_add_u32 s29, s29, s38")
    A("s_mov_b32 s30, s29")
    for q in range(4): A(f"v_add_u32 v{48+q}, {q*4096}, v2")
    R0 = 64
    def load(q, so):
        for j in range(4):
            r = R0 + 16 * q + 4 * j
            A(f"buffer_load_dwordx4 v[{r}:{r+3}], v{48+q}, s[8:11], {so} offen offset:{j*1024} nt")
    for q in range(4): load(q, "s30")
    A("s_mov_b32 s12, s8")
    A("s_mov_b32 s13, s9")
    A(f"s_mov_b32 s14, s{P['A_v']}")
    A(f"s_and_b32 s15, s{P['A_v']+1}, 0xffff")
    srdp(16, "A_wo", 0x800000)
    srdp(20, "B_wo", 0x800000)
    A(f"s_add_u32 s39, s39, {hex(W_CNT)}")
    A(f"s_add_u32 s52, s{P['ws']}, s39")
    A(f"s_addc_u32 s53, s{P['ws']+1}, 0")
    A(f"s_add_u32 s28, s28, {JB}")
    A(f"s_and_b32 s28, s28, {8//NBW-1}")
    A(f"s_add_u32 s28, s28, {8*(ns-ksk)}")
    A("s_mov_b32 s57, s29")
    A("v_lshrrev_b32 v3, 4, v1")
    A("v_and_b32 v4, 0xf0, v2")
    A("v_lshlrev_b32 v44, 5, v3")
    A("v_xor_b32 v44, v44, v4")
    A("v_lshl_add_u32 v3, v3, 11, v44")
    A("v_xor_b32 v44, 0x80, v3")
    A("s_lshl_b32 s34, s4, 18")
    A("s_lshl_b32 s35, s33, 16")
    A("s_add_u32 s34, s34, s35")
    A("s_lshl_b32 s35, s5, 8")
    A("s_add_u32 s34, s34, s35")
    A("s_lshl_b32 s35, s33, 13")
    A(f"s_add_u32 s35, s35, {L_WO}")
    flag_wait(62, 36, 4, 10, 0)
    for T_ in range(2):
        for u in range(8):
            A(f"s_add_u32 s37, s35, {T_*32768+u*1024}")
            A("s_mov_b32 m0, s37")
            A(f"s_add_u32 s39, s34, {u*8192}")
            A(f"buffer_load_dwordx4 v{44 if (u>>1)&1 else 3}, s[{16+4*T_}:{19+4*T_}], s39 offen nt lds")
    Q, ACC, M, LS, C, AL, NM, S, T, PL, PH = 8, 12, 20, 21, 22, 23, 24, 28, 32, 34, 35
    init_state(M, LS, ACC)
    mktag()
    A("s_lshl_b32 s43, s33, 8")
    A(f"s_add_u32 s43, s43, {L_QA}")
    A("v_add_u32 v4, s43, v4")
    A(f"v_mov_b32 v7, {L_FL}")
    A("s_lshl_b32 s43, s33, 2")
    A("v_add_u32 v62, s43, v62")
    A("v_and_b32 v5, 15, v1")
    A("v_lshlrev_b32 v5, 6, v5")
    A("v_lshrrev_b32 v6, 4, v1")
    A("v_lshl_add_u32 v5, v6, 4, v5")
    A("s_lshl_b32 s43, s33, 9")
    A(f"s_add_u32 s43, s43, {L_OWN}")
    A("v_lshrrev_b32 v6, 1, v5")
    A("v_add_u32 v6, s43, v6")
    A("s_lshl_b32 s43, s33, 12")
    A(f"s_add_u32 s43, s43, {L_FIFO}")
    A("v_lshl_add_u32 v46, v1, 2, s43")
    A("v_mov_b32 v47, v46")
    A("s_lshl_b32 s43, s4, 2")
    A("s_add_u32 s43, s43, s33")
    A("s_lshl_b32 s43, s43, 3")
    A("s_add_u32 s43, s43, s5")
    A("s_lshl_b32 s43, s43, 10")
    A(f"s_add_u32 s43, s43, {hex(W_PA)}")
    A("v_mov_b32 v41, s6")
    A("v_mov_b32 v43, s6")
    for q in range(4):
        A(f"s_mov_b32 s{64+2*q}, {hex(0x11111111 << q)}")
        A(f"s_mov_b32 s{65+2*q}, {hex(0x11111111 << q)}")
    A("s_cmp_eq_u32 s62, 0")
    A(f"s_cselect_b32 s58, {ns-1}, {ns-1-ksk}")
    A("s_mov_b32 s59, s58")
    A("s_mov_b32 s60, 4")
    A("s_mov_b32 s61, 4")
    A("s_mov_b32 s56, 0")
    A("s_mov_b32 s63, 0x10000000")
    stamp("s1")
    A("s_barrier")
    stamp("s2")
    A(f"ds_read_b128 v[{Q}:{Q+3}], v4")
    def claim():
        A("s_mov_b32 s50, 1")
        A("s_atomic_add s50, s[52:53], 0 glc")
    def issue(q):
        if q == 0 or not (n1 or n2):
            load(q, "s30")
        else:
            A(f"s_cmp_gt_u32 s61, {q}")
            A("s_cselect_b32 s31, s30, s63")
            load(q, "s31")
    def kbody(ex):
        A(f"v_mov_b32 v{C}, 0xf149f2ca")
        for q in range(4):
            sk = lab("ks")
            A(f"s_waitcnt vmcnt({12+ex})")
            if q and (n1 or n2) and not ex:
                A(f"s_cmp_le_u32 s60, {q}")
                A(f"s_cbranch_scc1 {sk}")
            K = R0 + 16 * q
            for r in range(4):
                for j in range(4):
                    c = "0" if r == 0 else f"v{S+j}"
                    A(f"v_dot2_f32_bf16 v{S+j}, v{K+4*j+r}, v{Q+r}, {c}")
            if not (q and (n1 or n2) and not ex): issue(q)
            A(f"v_add_f32_dpp v{T}, v{S}, v{S} row_ror:8 row_mask:0xf bank_mask:0x3")
            A(f"v_add_f32_dpp v{T+1}, v{S+1}, v{S+1} row_ror:8 row_mask:0xf bank_mask:0x3")
            A(f"v_add_f32_dpp v{T}, v{S+2}, v{S+2} row_ror:8 row_mask:0xf bank_mask:0xc")
            A(f"v_add_f32_dpp v{T+1}, v{S+3}, v{S+3} row_ror:8 row_mask:0xf bank_mask:0xc")
            A(f"v_add_f32_dpp v{S}, v{T}, v{T} row_shl:4 row_mask:0xf bank_mask:0x5")
            A(f"v_add_f32_dpp v{S}, v{T+1}, v{T+1} row_shr:4 row_mask:0xf bank_mask:0xa")
            A(f"v_add_f32_dpp v{S}, v{S}, v{S} quad_perm:[2,3,0,1] row_mask:0xf bank_mask:0xf")
            A(f"v_add_f32_dpp v{S}, v{S}, v{S} quad_perm:[1,0,3,2] row_mask:0xf bank_mask:0xf")
            A(f"v_cndmask_b32 v{C}, v{C}, v{S}, s[{64+2*q}:{65+2*q}]")
            if q and (n1 or n2) and not ex:
                A.label(sk)
                issue(q)
    def vbody():
        if rnd: round2([C])
        A(f"v_max_f32_dpp v{AL}, v{C}, v{C} row_ror:8 row_mask:0xf bank_mask:0xf")
        for st in (4, 2, 1):
            A(f"v_max_f32_dpp v{AL}, v{AL}, v{AL} row_ror:{st} row_mask:0xf bank_mask:0xf")
        A(f"v_max_f32 v{AL}, v{AL}, v{M}")
        A(f"v_sub_f32 v{NM}, v{M}, v{AL}")
        A(f"v_mov_b32 v{M}, v{AL}")
        A(f"v_sub_f32 v{C}, v{C}, v{AL}")
        A(f"v_mul_f32 v{AL}, s7, v{NM}")
        A(f"v_mul_f32 v{C}, s7, v{C}")
        A(f"v_exp_f32 v{AL}, v{AL}")
        A(f"v_exp_f32 v{C}, v{C}")
        for e in range(8): A(f"v_mul_f32 v{ACC+e}, v{ACC+e}, v{AL}")
        A(f"v_cvt_pk_bf16_f32 v{PL}, v{C}, 0")
        A(f"v_cvt_pk_bf16_f32 v{PH}, 0, v{C}")
        A(f"v_fma_f32 v{LS}, v{LS}, v{AL}, v{C}")
        for q in range(4):
            sk = lab("vs")
            A("s_waitcnt vmcnt(12)")
            if q and (n1 or n2):
                A(f"s_cmp_le_u32 s60, {q}")
                A(f"s_cbranch_scc1 {sk}")
            V = R0 + 16 * q
            for j in range(4):
                for r in range(4):
                    A(f"v_dot2c_f32_bf16_dpp v{ACC+2*r}, v{PL}, v{V+4*j+r} row_newbcast:{4*j+q} row_mask:0xf bank_mask:0xf")
                    A(f"v_dot2c_f32_bf16_dpp v{ACC+2*r+1}, v{PH}, v{V+4*j+r} row_newbcast:{4*j+q} row_mask:0xf bank_mask:0xf")
            if q and (n1 or n2): A.label(sk)
            issue(q)
    A(f"s_add_u32 s29, s29, {NWP*CSB}")
    A("s_mov_b32 s30, s29")
    A("s_sub_u32 s58, s58, 1")
    A("s_waitcnt lgkmcnt(0)")
    kbody(16)
    A(f"ds_write_b32 v46, v{C}")
    A("v_add_u32 v46, 256, v46")
    A("s_waitcnt vmcnt(16)")
    flag_add(7, 8)
    A.label("L_topK")
    A("s_cmp_lg_u32 s56, 0")
    A("s_cbranch_scc1 L_dynK")
    A("s_cmp_eq_u32 s58, 0")
    A("s_cbranch_scc1 L_lastK")
    A(f"s_add_u32 s29, s29, {NWP*CSB}")
    A("s_mov_b32 s30, s29")
    A("s_sub_u32 s58, s58, 1")
    A("s_mov_b32 s55, 0")
    A("s_branch L_K")
    A.label("L_lastK")
    stamp("sk")
    A("s_mov_b32 s29, s57")
    A("s_mov_b32 s30, s29")
    A("s_branch L_K2")
    A.label("L_dynK")
    claim()
    A.label("L_K2")
    A("s_mov_b32 s8, s14")
    A("s_mov_b32 s9, s15")
    A("s_mov_b32 s55, 1")
    A.label("L_K")
    kbody(0)
    A("s_cmp_lg_u32 s56, 0")
    A("s_cbranch_scc1 L_dynV")
    A(f"ds_write_b32 v46, v{C}")
    A("v_add_u32 v46, 256, v46")
    A("s_cmp_eq_u32 s55, 0")
    A("s_cbranch_scc1 L_topK")
    A.label("L_topV")
    A(f"ds_read_b32 v{C}, v47")
    A("v_add_u32 v47, 256, v47")
    A("s_cmp_eq_u32 s59, 0")
    A("s_cbranch_scc1 L_dynV")
    A(f"s_add_u32 s29, s29, {NWP*CSB}")
    A("s_mov_b32 s30, s29")
    A("s_sub_u32 s59, s59, 1")
    A("s_waitcnt lgkmcnt(0)")
    A("s_cmp_lg_u32 s59, 0")
    A("s_cbranch_scc1 L_V")
    claim()
    A("s_branch L_V")
    A.label("L_dynV")
    A("s_waitcnt lgkmcnt(0)")
    A("s_mov_b32 s56, 1")
    A(f"s_cmp_ge_u32 s50, {NDYN}")
    A("s_cbranch_scc1 L_exh")
    A(f"s_add_u32 s36, s50, {ns*NWP-NSK}")
    A(f"s_mul_i32 s37, s50, {8//NBW}")
    A("s_add_u32 s37, s37, s28")
    A(f"s_cmp_lt_u32 s50, {NSK}")
    A("s_cselect_b32 s36, s37, s36")
    A("s_lshl_b32 s30, s36, 2")
    A("s_mov_b32 s61, 4")
    if n2:
        A("s_lshl_b32 s37, s50, 1")
        A(f"s_add_u32 s37, s37, {(T2 - 2*N4) & 0xffffffff}")
        A(f"s_cmp_ge_u32 s50, {N4}")
        A("s_cselect_b32 s30, s37, s30")
        A("s_cselect_b32 s61, 2, s61")
    if n1:
        A(f"s_add_u32 s37, s50, {(T1 - N4 - n2) & 0xffffffff}")
        A(f"s_cmp_ge_u32 s50, {N4+n2}")
        A("s_cselect_b32 s30, s37, s30")
        A("s_cselect_b32 s61, 1, s61")
    A("s_lshl_b32 s30, s30, 12")
    A("s_add_u32 s30, s30, s38")
    A("s_mov_b32 s8, s12")
    A("s_mov_b32 s9, s13")
    A("s_mov_b32 s55, 0")
    A(f"s_cmp_lt_u32 s50, {max(0, NDYN-wox)}")
    A("s_cbranch_scc1 L_V")
    flag_add(62, 16)
    A("s_branch L_V")
    A.label("L_exh")
    A("s_mov_b32 s30, s63")
    A("s_mov_b32 s55, 2")
    flag_add(62, 16)
    flag_add(62, 48)
    stamp("s3")
    A.label("L_V")
    vbody()
    A("s_mov_b32 s60, s61")
    A("s_cmp_eq_u32 s55, 1")
    A("s_cbranch_scc1 L_topV")
    A("s_cmp_eq_u32 s55, 0")
    A("s_cbranch_scc1 L_topK")
    stamp("s5")
    for st in (8, 4, 2, 1):
        A(f"v_add_f32_dpp v{LS}, v{LS}, v{LS} row_ror:{st} row_mask:0xf bank_mask:0xf")
    finalize(M, LS, ACC, 24, 40, 42)
    stamp("s4")
    A(f"buffer_store_dwordx4 v[40:43], v5, s[24:27], s43 offen {ast}")
    A("v_mov_b32 v33, v40")
    A("v_mov_b32 v32, v42")
    A("ds_write_b64 v6, v[32:33]")
    A("s_waitcnt lgkmcnt(0)")
    flag_add(62, 48)
    stamp_store(240)
    A.label("L_end")
    A("s_endpgm")

    body = A.render()
    nv = 256 if stamps else 240
    txt = HEADER + f"; @launch grid=(256,1,1) block=(512,1,1) lds={L_TOT}\n"
    txt += '.amdgcn_target "amdgcn-amd-amdhsa--gfx950"\n.text\n'
    txt += f".globl {NAME}\n.p2align 8\n.type {NAME},@function\n"
    txt += body
    txt += '.section .rodata,"a"\n.p2align 6\n'
    txt += f".amdhsa_kernel {NAME}\n"
    txt += f"  .amdhsa_next_free_vgpr {nv}\n  .amdhsa_next_free_sgpr 102\n  .amdhsa_accum_offset {nv}\n"
    txt += "  .amdhsa_group_segment_fixed_size 0\n  .amdhsa_kernarg_size 104\n  .amdhsa_user_sgpr_count 2\n"
    txt += "  .amdhsa_user_sgpr_kernarg_segment_ptr 1\n  .amdhsa_system_sgpr_workgroup_id_x 1\n.end_amdhsa_kernel\n"
    return txt

if __name__ == "__main__":
    import argparse
    ap = argparse.ArgumentParser()
    ap.add_argument("out")
    ap.add_argument("--kw", default="")
    a = ap.parse_args()
    kw = eval("dict(" + a.kw + ")")
    open(a.out, "w").write(gen(**kw))
```

```python
import sys, struct
sys.path.insert(0, "dev")
from asmlib import Asm
from gen import HEADER, NAME

L_W = 0
L_FIFO = 32768
L_WO = 65536
L_QA = 131072
L_QB = L_QA + 1024
L_O = L_QB + 2048
L_FL = L_O + 4608
L_X = L_FL + 64
L_TOT = L_X + 4352
W_CNT = 0x1000
W_QP = 0x10000
W_PA = 0x100000
W_PB = 0x200000
W_Y = 0x400000
W_STAMP = 0x20000000

F32 = lambda x: struct.unpack("<I", struct.pack("<f", x))[0]
CEXP = struct.unpack("<I", struct.pack("<f", 1.4426950408889634 / (128 ** 0.5)))[0]

def gen(TD=3, CS=4, ns=12, NBW=1, JB=2, ksk=4, stamps=0, spin=200000, hst=("h1", "h2", "h3", "h4"),
        sst=("s1", "s2", "s3", "s4"), rot=1, wox=8, psl=16, qsl=4, ysl=0, early=0, esl=16,
        bst="sc1 nt", bld="sc1 nt", ast="sc1", ald="sc1", ab=(), wolate=0, pasl=0, touch=0, woh=0, kp="nt", vp="nt", til=0, gate=3, n2=0, n1=0, rc=0, rnd=0, mixed=0, warm=0, ybk=0, sgate=1, qst="sc1", qld="sc1", yst=None, yld=None, xpre=0):
    tl = 4
    yst = yst or ast; yld = yld or ald
    A = Asm()
    NWP = 8
    NT = 512
    CD = CS
    CSB = CS * 4096
    assert ns * NWP * CS <= NT and (NT - ns * NWP * CS) % CD == 0
    NSK = NBW * ksk
    assert NBW == 1 and not til and (2 * n2 + n1) % CS == 0
    N4 = (NT - ns * NWP * CS - 2 * n2 - n1) // CS + NSK
    NDYN = N4 + n2 + n1
    T2 = NT - 2 * n2 - n1
    T1 = NT - n1
    assert CS == 4 and ns - ksk >= 2 + xpre and ns <= 16
    NP = 2 * NBW
    BT = 16 // NBW
    uid = [0]
    def lab(p):
        uid[0] += 1
        return f"L_{p}_{uid[0]}"

    P = dict(A_x=64, A_k=66, A_v=68, A_wq=70, A_wo=72, B_x=74, B_k=76, B_v=78, B_wq=80, B_wo=82, out=84, dbg=86, ws=88)
    def srd(d, lo, hi, n):
        A(f"s_mov_b32 s{d}, s{lo}")
        A(f"s_and_b32 s{d+1}, s{hi}, 0xffff")
        A(f"s_mov_b32 s{d+2}, {hex(n)}")
        A(f"s_mov_b32 s{d+3}, 0x20000")
    def srdp(d, name, n): srd(d, P[name], P[name] + 1, n)

    def stamp(i):
        if not stamps: return
        if isinstance(i, str):
            lst = hst if i[0] == "h" else sst
            if i not in lst: return
            i = 1 + list(lst).index(i)
        A(f"s_memrealtime s[{90+2*i}:{91+2*i}]")
    def stamp_store(vt):
        if not stamps: return
        A(f"s_memrealtime s[{90+2*(stamps-1)}:{91+2*(stamps-1)}]")
        A("s_waitcnt lgkmcnt(0)")
        A("s_lshl_b32 s32, s2, 3")
        A("s_add_u32 s32, s32, s3")
        A(f"s_mul_i32 s32, s32, {stamps*8}")
        A(f"s_add_u32 s32, s32, {hex(W_STAMP)}")
        for i in range(stamps):
            A(f"v_mov_b32 v{vt+2*i}, s{90+2*i}")
            A(f"v_mov_b32 v{vt+2*i+1}, s{91+2*i}")
        A(f"v_mov_b32 v{vt+2*stamps}, 0")
        A("s_mov_b64 exec, 1")
        for i in range(stamps):
            A(f"buffer_store_dwordx2 v[{vt+2*i}:{vt+2*i+1}], v{vt+2*stamps}, s[24:27], s32 offen offset:{8*i}")
        A("s_mov_b64 exec, -1")

    def chain(op3, op2, dst, regs):
        if len(regs) == 2:
            A(f"{op2} v{dst}, {regs[0]}, {regs[1]}"); return
        A(f"{op3} v{dst}, {regs[0]}, {regs[1]}, {regs[2]}")
        i = 3
        while i < len(regs):
            if i + 1 < len(regs):
                A(f"{op3} v{dst}, v{dst}, {regs[i]}, {regs[i+1]}"); i += 2
            else:
                A(f"{op2} v{dst}, v{dst}, {regs[i]}"); i += 1
    def scores(K, Q, S, n):
        for r in range(4):
            for j in range(n):
                c = "0" if r == 0 else f"v{S+j}"
                A(f"v_dot2_f32_bf16 v{S+j}, v{K+4*j+r}, v{Q+r}, {c}")
        for st in (8, 4, 2, 1):
            for j in range(n):
                A(f"v_add_f32_dpp v{S+j}, v{S+j}, v{S+j} row_ror:{st} row_mask:0xf bank_mask:0xf")
    def round2(regs):
        for r in regs: A(f"v_cvt_pk_bf16_f32 v{r}, 0, v{r}")
        for r in regs: A(f"v_mul_f32 v{r}, {hex(F32(128 ** -0.5))}, v{r}")
        for r in regs: A(f"v_cvt_pk_bf16_f32 v{r}, 0, v{r}")
    def softmax(S, n, M, LS, ACC, AL, NM, PL, PH):
        if rnd: round2([S + j for j in range(n)])
        chain("v_max3_f32", "v_max_f32", AL, [f"v{S+j}" for j in range(n)] + [f"v{M}"])
        A(f"v_sub_f32 v{NM}, v{M}, v{AL}")
        A(f"v_mov_b32 v{M}, v{AL}")
        A(f"v_mul_f32 v{AL}, s7, v{NM}")
        A(f"v_mul_f32 v{NM}, s7, v{M}")
        A(f"v_exp_f32 v{AL}, v{AL}")
        for j in range(n):
            A(f"v_fma_f32 v{S+j}, v{S+j}, s7, -v{NM}")
        for j in range(n):
            A(f"v_exp_f32 v{S+j}, v{S+j}")
        for e in range(8):
            A(f"v_mul_f32 v{ACC+e}, v{ACC+e}, v{AL}")
        A(f"v_fma_f32 v{LS}, v{LS}, v{AL}, v{S}")
        for j in range(1, n):
            A(f"v_add_f32 v{LS}, v{LS}, v{S+j}")
        for j in range(n):
            A(f"v_cvt_pk_bf16_f32 v{PL+j}, v{S+j}, 0")
            A(f"v_cvt_pk_bf16_f32 v{PH+j}, 0, v{S+j}")
    def pv(V, n, ACC, PL, PH):
        for j in range(n):
            for r in range(4):
                A(f"v_dot2_f32_bf16 v{ACC+2*r}, v{V+4*j+r}, v{PL+j}, v{ACC+2*r}")
                A(f"v_dot2_f32_bf16 v{ACC+2*r+1}, v{V+4*j+r}, v{PH+j}, v{ACC+2*r+1}")
    def init_state(M, LS, ACC):
        for e in range(8): A(f"v_mov_b32 v{ACC+e}, 0")
        A(f"v_mov_b32 v{M}, 0xf149f2ca")
        A(f"v_mov_b32 v{LS}, 0")
    def finalize(M, LS, ACC, T, OPK, OLSE):
        A(f"v_mov_b32 v{T+1}, v{M}")
        A(f"v_mov_b32 v{T+2}, v{M}")
        A(f"v_permlane32_swap_b32 v{T+1}, v{T+2}")
        A(f"v_max_f32 v{T+1}, v{T+1}, v{T+2}")
        A(f"v_mov_b32 v{T+2}, v{T+1}")
        A(f"v_permlane16_swap_b32 v{T+1}, v{T+2}")
        A(f"v_max_f32 v{T}, v{T+1}, v{T+2}")
        A(f"v_sub_f32 v{T+1}, v{M}, v{T}")
        A(f"v_mul_f32 v{T+1}, s7, v{T+1}")
        A(f"v_exp_f32 v{T+1}, v{T+1}")
        A(f"v_mul_f32 v{LS}, v{LS}, v{T+1}")
        for e in range(8): A(f"v_mul_f32 v{ACC+e}, v{ACC+e}, v{T+1}")
        A(f"v_mov_b32 v{T+1}, v{LS}")
        A(f"v_mov_b32 v{T+2}, v{LS}")
        for e in range(4): A(f"v_permlane32_swap_b32 v{ACC+e}, v{ACC+e+4}")
        A(f"v_permlane32_swap_b32 v{T+1}, v{T+2}")
        for e in range(4): A(f"v_add_f32 v{ACC+e}, v{ACC+e}, v{ACC+e+4}")
        A(f"v_add_f32 v{T+1}, v{T+1}, v{T+2}")
        A(f"v_mov_b32 v{T+2}, v{T+1}")
        for e in range(2): A(f"v_permlane16_swap_b32 v{ACC+e}, v{ACC+e+2}")
        A(f"v_permlane16_swap_b32 v{T+1}, v{T+2}")
        A(f"v_add_f32 v{T+3}, v{T+1}, v{T+2}")
        for e in range(2): A(f"v_add_f32 v{ACC+e}, v{ACC+e}, v{ACC+e+2}")
        A(f"v_rcp_f32 v{T+1}, v{T+3}")
        A(f"v_log_f32 v{T+2}, v{T+3}")
        A(f"v_mul_f32 v{ACC}, v{ACC}, v{T+1}")
        A(f"v_mul_f32 v{ACC+1}, v{ACC+1}, v{T+1}")
        A(f"v_fma_f32 v{OLSE}, v{T}, s7, v{T+2}")
        A(f"v_cvt_pk_bf16_f32 v{OPK}, v{ACC}, v{ACC+1}")
    def combine(G, n, OPK, OLSE=None):
        T1, T2, T3, T4 = 56, 57, 58, 59
        chain("v_max3_f32", "v_max_f32", T1, [f"v{G+4*i+2}" for i in range(n)])
        for i in range(n): A(f"v_sub_f32 v{G+4*i+2}, v{G+4*i+2}, v{T1}")
        for i in range(n): A(f"v_exp_f32 v{G+4*i+2}, v{G+4*i+2}")
        for i in range(n):
            A(f"v_lshlrev_b32 v{G+4*i+1}, 16, v{G+4*i}")
            A(f"v_and_b32 v{G+4*i+3}, 0xffff0000, v{G+4*i}")
        A(f"v_add_f32 v{T4}, v{G+2}, v{G+6}")
        A(f"v_mul_f32 v{T2}, v{G+2}, v{G+1}")
        A(f"v_mul_f32 v{T3}, v{G+2}, v{G+3}")
        for i in range(2, n): A(f"v_add_f32 v{T4}, v{T4}, v{G+4*i+2}")
        if OLSE is not None: A(f"v_log_f32 v{OLSE}, v{T4}")
        A(f"v_rcp_f32 v{T4}, v{T4}")
        for i in range(1, n):
            A(f"v_fmac_f32 v{T2}, v{G+4*i+2}, v{G+4*i+1}")
            A(f"v_fmac_f32 v{T3}, v{G+4*i+2}, v{G+4*i+3}")
        if OLSE is not None: A(f"v_add_f32 v{OLSE}, v{OLSE}, v{T1}")
        A(f"v_mul_f32 v{T2}, v{T2}, v{T4}")
        A(f"v_mul_f32 v{T3}, v{T3}, v{T4}")
        A(f"v_cvt_pk_bf16_f32 v{OPK}, v{T2}, v{T3}")
    def chk(g, m):
        A(f"v_bitop3_b32 v56, v{g}, v{g+1}, v{g+2} bitop3:0x96")
        A(f"v_xor_b32 v56, v56, v{g+3}")
        A(f"v_cmp_ne_u32 s[{m}:{m+1}], s6, v56")
    def combine2(G, n, addr_v, off):
        T1, T2, DEN, A0 = 56, 57, 58, 36
        if n == 1: A(f"v_mov_b32 v{T1}, v{G+2}")
        else: chain("v_max3_f32", "v_max_f32", T1, [f"v{G+4*u+2}" for u in range(n)])
        A(f"v_mov_b32 v{T2}, v{T1}")
        for u in range(n):
            A(f"v_lshlrev_b32 v{G+4*u+3}, 16, v{G+4*u}")
        A(f"v_permlane32_swap_b32 v{T1}, v{T2}")
        A(f"v_max_f32 v{T1}, v{T1}, v{T2}")
        for u in range(n): A(f"v_sub_f32 v{G+4*u+2}, v{G+4*u+2}, v{T1}")
        for u in range(n): A(f"v_exp_f32 v{G+4*u+2}, v{G+4*u+2}")
        for u in range(n): A(f"v_and_b32 v{G+4*u}, 0xffff0000, v{G+4*u}")
        for u in range(n):
            op = "v_mul_f32" if u == 0 else "v_fmac_f32"
            A(f"{op} v{A0}, v{G+4*u+2}, v{G+4*u+3}")
            A(f"{op} v{A0+1}, v{G+4*u+2}, v{G+4*u}")
            A(f"v_lshlrev_b32 v{G+4*u+3}, 16, v{G+4*u+1}")
            A(f"v_and_b32 v{G+4*u+1}, 0xffff0000, v{G+4*u+1}")
            if u == 0: A(f"v_mov_b32 v{DEN}, v{G+2}")
            else: A(f"v_add_f32 v{DEN}, v{DEN}, v{G+4*u+2}")
        A(f"v_mov_b32 v{DEN+1}, v{DEN}")
        for u in range(n):
            op = "v_mul_f32" if u == 0 else "v_fmac_f32"
            A(f"{op} v{A0+2}, v{G+4*u+2}, v{G+4*u+3}")
            A(f"{op} v{A0+3}, v{G+4*u+2}, v{G+4*u+1}")
        A(f"v_permlane32_swap_b32 v{DEN}, v{DEN+1}")
        A(f"v_add_f32 v{DEN}, v{DEN}, v{DEN+1}")
        A(f"v_permlane32_swap_b32 v{A0}, v{A0+2}")
        A(f"v_permlane32_swap_b32 v{A0+1}, v{A0+3}")
        A(f"v_rcp_f32 v{DEN}, v{DEN}")
        A(f"v_add_f32 v{A0}, v{A0}, v{A0+2}")
        A(f"v_add_f32 v{A0+1}, v{A0+1}, v{A0+3}")
        A(f"v_mul_f32 v{A0}, v{A0}, v{DEN}")
        A(f"v_mul_f32 v{A0+1}, v{A0+1}, v{DEN}")
        A(f"v_cvt_pk_bf16_f32 v{A0}, v{A0}, v{A0+1}")
        A(f"ds_write_b32 v{addr_v}, v{A0} offset:{off}")
    def poll_masked(n, issue1, tagregs, sleep, mbase=64, extra=None, tagreg="s6"):
        top, done = lab("pk"), lab("pkdone")
        A(f"s_mov_b32 s42, {spin}")
        for i in range(n): A(f"s_mov_b64 s[{mbase+2*i}:{mbase+2*i+1}], -1")
        A.label(top)
        for i in range(n):
            A(f"s_mov_b64 exec, s[{mbase+2*i}:{mbase+2*i+1}]")
            issue1(i)
        A("s_mov_b64 exec, -1")
        if extra: extra[0]()
        A("s_waitcnt vmcnt(0) lgkmcnt(0)" if extra else "s_waitcnt vmcnt(0)")
        for i in range(n):
            tr = tagregs(i)
            if isinstance(tr, int):
                chk(tr, mbase + 2 * i)
                if i == 0: A(f"s_mov_b64 s[40:41], s[{mbase}:{mbase+1}]")
                else: A(f"s_or_b64 s[40:41], s[40:41], s[{mbase+2*i}:{mbase+2*i+1}]")
                continue
            A(f"v_cmp_ne_u32 s[{mbase+2*i}:{mbase+2*i+1}], {tagreg}, v{tr[0]}")
            for r in tr[1:]:
                A(f"v_cmp_ne_u32 vcc, {tagreg}, v{r}")
                A(f"s_or_b64 s[{mbase+2*i}:{mbase+2*i+1}], s[{mbase+2*i}:{mbase+2*i+1}], vcc")
            if i == 0: A(f"s_mov_b64 s[40:41], s[{mbase}:{mbase+1}]")
            else: A(f"s_or_b64 s[40:41], s[40:41], s[{mbase+2*i}:{mbase+2*i+1}]")
        A("s_cmp_eq_u64 s[40:41], 0")
        A(f"s_cbranch_scc1 {done}")
        if extra: extra[1]()
        elif sleep: A(f"s_sleep {sleep}")
        A("s_sub_u32 s42, s42, 1")
        A("s_cmp_lg_u32 s42, 0")
        A(f"s_cbranch_scc1 {top}")
        A.label(done)
    def flag_add(addr_v, off=0):
        A("s_mov_b64 exec, 1")
        A(f"ds_add_u32 v{addr_v}, v63 offset:{off}")
        A("s_mov_b64 exec, -1")
    def flag_wait(addr_v, off, target, tmp_v, sleep):
        top, done = lab("fw"), lab("fwdone")
        A(f"s_mov_b32 s42, {spin*16}")
        A.label(top)
        A(f"ds_read_b32 v{tmp_v}, v{addr_v} offset:{off}")
        A("s_waitcnt lgkmcnt(0)")
        A(f"v_readfirstlane_b32 s47, v{tmp_v}")
        A(f"s_cmp_ge_u32 s47, {target}")
        A(f"s_cbranch_scc1 {done}")
        if sleep: A(f"s_sleep {sleep}")
        A("s_sub_u32 s42, s42, 1")
        A("s_cmp_lg_u32 s42, 0")
        A(f"s_cbranch_scc1 {top}")
        A.label(done)
    def mktag():
        A("s_mul_i32 s6, s6, 0x9e3779b1")
        A("s_add_u32 s6, s6, 0x7f4a7c15")

    A.label(NAME)
    A("s_cmp_ge_u32 s2, 256")
    A("s_cbranch_scc1 L_end")
    for i in range(stamps): stamp(i)
    A("s_load_dwordx16 s[64:79], s[0:1], 0")
    A("s_load_dwordx8 s[80:87], s[0:1], 64")
    A("s_load_dwordx2 s[88:89], s[0:1], 96")
    A("v_lshrrev_b32 v1, 6, v0")
    A("v_readfirstlane_b32 s3, v1")
    A("v_and_b32 v1, 63, v0")
    A("s_lshr_b32 s4, s2, 3")
    A("s_and_b32 s5, s2, 7")
    if rot:
        A(f"s_mul_i32 s7, s5, {rot}")
        A("s_add_u32 s4, s4, s7")
        A("s_and_b32 s4, s4, 31")
    A(f"s_mov_b32 s7, {hex(F32(1.4426950408889634) if rnd else CEXP)}")
    A("v_lshlrev_b32 v2, 4, v1")
    A(f"v_mov_b32 v62, {L_FL}")
    A("v_mov_b32 v63, 1")
    A(f"s_and_b32 s62, s5, {8//NBW-1}")
    A(f"s_cmp_eq_u32 s62, {JB}")
    A("s_cselect_b32 s62, 1, 0")
    A("v_mov_b32 v7, 0")
    A("v_and_b32 v6, 15, v1")
    A("v_lshl_add_u32 v6, v6, 2, v62")
    A("ds_write_b32 v6, v7")
    A("s_waitcnt lgkmcnt(0)")
    A("s_barrier")
    A("s_load_dword s6, s[88:89], 0")
    srdp(24, "ws", 0x40000000)
    A("s_cmp_ge_u32 s3, 4")
    A("s_cbranch_scc1 L_stream")

    stamp("h0a")
    A("s_lshr_b32 s33, s5, 2")
    A("s_bfe_u32 s34, s5, 0x10001")
    A("s_and_b32 s35, s5, 1")
    A("s_cmp_eq_u32 s33, 0")
    A(f"s_cselect_b32 s36, s{P['A_wq']}, s{P['B_wq']}")
    A(f"s_cselect_b32 s37, s{P['A_wq']+1}, s{P['B_wq']+1}")
    A(f"s_cselect_b32 s38, s{P['A_x']}, s{P['B_x']}")
    A(f"s_cselect_b32 s39, s{P['A_x']+1}, s{P['B_x']+1}")
    srd(12, 36, 37, 0x800000)
    srd(8, 38, 39, 8192)
    A("v_lshrrev_b32 v3, 3, v1")
    A("v_lshlrev_b32 v3, 13, v3")
    A("v_and_b32 v4, 7, v1")
    A("v_lshl_add_u32 v3, v4, 4, v3")
    A("v_and_b32 v4, 16, v1")
    A("v_lshlrev_b32 v4, 1, v4")
    A("v_xor_b32 v3, v3, v4")
    A("v_xor_b32 v4, 64, v3")
    A("s_lshl_b32 s43, s35, 9")
    A("s_lshl_b32 s44, s3, 7")
    A("s_add_u32 s43, s43, s44")
    A("s_lshl_b32 s43, s43, 13")
    A("s_lshl_b32 s44, s4, 8")
    A("s_add_u32 s43, s43, s44")
    A("s_lshl_b32 s44, s34, 7")
    A("s_add_u32 s43, s43, s44")
    A("s_lshl_b32 s44, s3, 14")
    for u in range(16):
        A("s_mov_b32 m0, s44")
        A(f"buffer_load_dwordx4 v{3+(u&1)}, s[12:15], s43 offen nt lds")
        if u < 15:
            A("s_add_u32 s43, s43, 0x10000")
            A("s_add_u32 s44, s44, 1024")
    XF = 64
    A("s_lshl_b32 s43, s3, 11")
    A("s_lshl_b32 s44, s35, 10")
    A("s_add_u32 s43, s43, s44")
    A("s_mul_i32 s44, s3, 1088")
    A(f"s_add_u32 s44, s44, {L_X}")
    A("s_mov_b32 m0, s44")
    A("buffer_load_dwordx4 v2, s[8:11], s43 offen lds")
    flag_add(62, 36)
    stamp("h0b")
    A("s_or_b32 s43, s5, s3")
    A("s_cmp_lg_u32 s43, 0")
    A("s_cbranch_scc1 L_noinit")
    A("v_lshlrev_b32 v6, 13, v1")
    A("s_lshl_b32 s43, s4, 8")
    A(f"s_add_u32 s43, s43, {hex(W_CNT)}")
    A("s_mov_b64 exec, 15")
    A("buffer_store_dword v7, v6, s[24:27], s43 offen sc1")
    A("s_mov_b64 exec, -1")
    A.label("L_noinit")
    A("s_waitcnt lgkmcnt(0)")
    A("v_and_b32 v11, 3, v1")
    A("v_mul_u32_u24 v11, 1088, v11")
    A("v_lshrrev_b32 v5, 4, v1")
    A("v_lshl_add_u32 v11, v5, 4, v11")
    A(f"v_add_u32 v11, {L_X}, v11")
    srdp(16, "B_k", 0x2000000)
    srdp(20, "B_v", 0x2000000)
    srdp(28, "out", 16384)
    if woh:
        srdp(8, "A_wo", 0x800000)
        srdp(12, "B_wo", 0x800000)
    A("v_lshrrev_b32 v5, 4, v1")
    A("v_lshlrev_b32 v5, 3, v5")
    A("v_bfe_u32 v6, v1, 2, 2")
    A("v_add_u32 v5, v5, v6")
    A("v_and_b32 v6, 3, v1")
    A("v_lshlrev_b32 v6, 3, v6")
    A("v_lshl_add_u32 v8, v5, 7, v6")
    A("v_bfe_u32 v12, v1, 3, 2")
    A("v_xor_b32 v12, s3, v12")
    A("v_lshl_add_u32 v8, v12, 5, v8")
    A(f"v_add_u32 v9, {L_WO}, v8")
    mktag()
    A("v_and_b32 v4, 3, v1")
    A("v_lshlrev_b32 v4, 10, v4")
    A("v_lshrrev_b32 v5, 4, v1")
    A("v_lshl_add_u32 v4, v5, 5, v4")
    A("v_and_b32 v5, 4, v1")
    A("v_lshl_add_u32 v4, v5, 2, v4")
    A("s_lshl_b32 s43, s4, 1")
    A("s_add_u32 s43, s43, s33")
    A("s_lshl_b32 s43, s43, 1")
    A("s_add_u32 s43, s43, s35")
    A("s_lshl_b32 s43, s43, 12")
    A("s_lshl_b32 s44, s34, 9")
    A("s_add_u32 s43, s43, s44")
    A("s_lshl_b32 s44, s3, 7")
    A("s_add_u32 s43, s43, s44")
    A(f"s_add_u32 s43, s43, {hex(W_QP)}")
    for r in (21, 23): A(f"v_mov_b32 v{r}, s6")
    A("s_mov_b32 s56, 0x00ff00ff")
    A("s_mov_b32 s57, 0x00ff00ff")
    A("s_waitcnt vmcnt(0)")
    flag_add(62, 0)
    flag_wait(62, 0, 4, 10, 0)
    stamp("h1")
    WF = 128
    for ks in range(16):
        A(f"ds_read_b64_tr_b16 v[{WF+4*ks}:{WF+4*ks+1}], v8 offset:{ks*4096}")
        A(f"ds_read_b64_tr_b16 v[{WF+4*ks+2}:{WF+4*ks+3}], v8 offset:{ks*4096+512}")
        A(f"ds_read_b128 v[{XF+4*ks}:{XF+4*ks+3}], v11 offset:{ks*64}")
    for ks in range(16):
        A(f"s_waitcnt lgkmcnt({min(15, 3*(15-ks))})")
        d = 12 + 4 * (ks & 1)
        c = "0" if ks < 2 else f"v[{d}:{d+3}]"
        A(f"v_mfma_f32_16x16x32_bf16 v[{d}:{d+3}], v[{WF+4*ks}:{WF+4*ks+3}], v[{XF+4*ks}:{XF+4*ks+3}], {c}")
    for r in range(4): A(f"v_add_f32 v{20+2*r}, v{12+r}, v{16+r}")
    A("v_mov_b32_dpp v20, v24 row_shr:4 row_mask:0xf bank_mask:0x2")
    A("v_mov_b32_dpp v22, v26 row_shr:4 row_mask:0xf bank_mask:0x2")
    A("s_mov_b64 exec, s[56:57]")
    A(f"buffer_store_dwordx4 v[20:23], v4, s[24:27], s43 offen {qst}")
    A("s_mov_b64 exec, -1")
    stamp("h2")
    A("s_lshl_b32 s43, s4, 14")
    A("s_lshl_b32 s44, s3, 10")
    A("s_add_u32 s43, s43, s44")
    A(f"s_add_u32 s43, s43, {hex(W_QP)}")
    A("s_add_u32 s44, s43, 4096")
    A("s_lshl_b32 s45, s3, 8")
    A(f"s_add_u32 s45, s45, {L_QA}")
    A("v_lshl_add_u32 v10, v1, 2, s45")
    poll_masked(2, lambda i: A(f"buffer_load_dwordx4 v[{28+4*i}:{31+4*i}], v2, s[24:27], s{43+i} offen {qld}"),
                lambda i: [29 + 4 * i, 31 + 4 * i], qsl)
    A("v_add_f32 v28, v28, v32")
    A("v_add_f32 v30, v30, v34")
    A("v_cvt_pk_bf16_f32 v28, v28, v30")
    A("ds_write_b32 v10, v28")
    A("s_waitcnt lgkmcnt(0)")
    A("s_barrier")
    stamp("h3")
    if 1 in ab: A("s_branch L_hend")
    A("s_cmp_eq_u32 s62, 0")
    A("s_cbranch_scc1 L_noB")

    lgNP = {2: 1, 4: 2}[NP]
    if NBW == 1: A("s_mov_b32 s58, s4")
    else:
        A("s_lshl_b32 s58, s4, 1")
        A("s_lshr_b32 s59, s5, 2")
        A("s_add_u32 s58, s58, s59")
    A(f"s_lshr_b32 s59, s58, {lgNP}")
    A(f"s_and_b32 s58, s58, {NP-1}")
    A("s_lshl_b32 s60, s59, 21")
    A(f"s_mul_i32 s61, s58, {2048//NP*256}")
    A("s_add_u32 s60, s60, s61")
    A("s_lshl_b32 s61, s3, 12")
    A("s_add_u32 s60, s60, s61")
    A(f"s_add_u32 s60, s60, {6144*256}")
    A("s_and_b32 s48, s59, 3")
    A("s_lshl_b32 s48, s48, 3")
    A("s_lshl_b32 s49, s3, 1")
    A("s_add_u32 s48, s48, s49")
    A("s_lshl_b32 s49, s48, 14")
    A("s_lshr_b32 s61, s59, 2")
    A("s_lshl_b32 s50, s61, 10")
    A("s_add_u32 s49, s49, s50")
    A(f"s_add_u32 s49, s49, {hex(W_QP+8192)}")
    A("s_add_u32 s50, s49, 4096")
    A("s_add_u32 s51, s49, 16384")
    A("s_add_u32 s52, s49, 20480")
    poll_masked(4, lambda i: A(f"buffer_load_dwordx4 v[{28+4*i}:{31+4*i}], v2, s[24:27], s{49+i} offen {qld}"),
                lambda i: [29 + 4 * i, 31 + 4 * i], 16)
    KB = 64
    def bload(par):
        for u in range(4):
            A(f"buffer_load_dwordx4 v[{KB+32*par+4*u}:{KB+32*par+4*u+3}], v2, s[16:19], s60 offen offset:{u*1024} nt")
        for u in range(4):
            A(f"buffer_load_dwordx4 v[{KB+32*par+16+4*u}:{KB+32*par+16+4*u+3}], v2, s[20:23], s60 offen offset:{u*1024} nt")
        A("s_add_u32 s60, s60, 0x4000")
    bload(0); bload(1)
    A("v_add_f32 v28, v28, v32")
    A("v_add_f32 v30, v30, v34")
    A("v_add_f32 v36, v36, v40")
    A("v_add_f32 v38, v38, v42")
    A("v_cvt_pk_bf16_f32 v28, v28, v30")
    A("v_cvt_pk_bf16_f32 v36, v36, v38")
    A("s_lshl_b32 s43, s3, 9")
    A(f"s_add_u32 s43, s43, {L_QB}")
    A("v_lshl_add_u32 v10, v1, 2, s43")
    A("ds_write_b32 v10, v28")
    A("ds_write_b32 v10, v36 offset:256")
    A("s_waitcnt lgkmcnt(0)")
    flag_add(62, 4)
    flag_wait(62, 4, 4, 10, 1)
    A("v_and_b32 v11, 0xf0, v2")
    A(f"v_add_u32 v11, {L_QB}, v11")
    QB = 128
    for hh in range(8):
        A(f"ds_read_b128 v[{QB+4*hh}:{QB+4*hh+3}], v11 offset:{hh*256}")
    SB = 160
    def bs(hh): return dict(M=SB + 10 * hh, LS=SB + 10 * hh + 1, ACC=SB + 10 * hh + 2)
    for hh in range(8):
        st = bs(hh); init_state(st["M"], st["LS"], st["ACC"])
    A(f"s_mov_b32 s45, {BT//2}")
    A("s_waitcnt lgkmcnt(0)")
    A.label("L_battn")
    for par in range(2):
        A("s_waitcnt vmcnt(8)")
        for hh in range(8):
            st = bs(hh)
            o = 20 * (hh & 1)
            S_, AL_, NM_, PL_, PH_ = 12 + o, 16 + o, 17 + o, 20 + o, 24 + o
            scores(KB + 32 * par, QB + 4 * hh, S_, 4)
            softmax(S_, 4, st["M"], st["LS"], st["ACC"], AL_, NM_, PL_, PH_)
            pv(KB + 32 * par + 16, 4, st["ACC"], PL_, PH_)
        if par == 0:
            A("s_cmp_eq_u32 s45, 1")
            A("s_cselect_b32 s60, 0x2000000, s60")
        bload(par)
    A("s_sub_u32 s45, s45, 1")
    A("s_cmp_lg_u32 s45, 0")
    A("s_cbranch_scc1 L_battn")
    A("v_and_b32 v4, 15, v1")
    A("v_lshlrev_b32 v4, 5, v4")
    A("v_lshrrev_b32 v5, 4, v1")
    A("v_lshl_add_u32 v4, v5, 3, v4")
    A("s_lshl_b32 s43, s3, 12")
    A("v_add_u32 v4, s43, v4")
    for hh in range(8):
        st = bs(hh)
        o = 8 * (hh & 1)
        finalize(st["M"], st["LS"], st["ACC"], 12 + o, 17 + o, 16 + o)
        A(f"ds_write_b64 v4, v[{16+o}:{17+o}] offset:{hh*512}")
    A("s_waitcnt lgkmcnt(0)")
    flag_add(62, 12)
    flag_wait(62, 12, 4, 10, 1)
    A("s_waitcnt vmcnt(0)")
    A("s_lshl_b32 s43, s3, 10")
    A("v_lshl_add_u32 v4, v1, 3, s43")
    A("s_lshl_b32 s43, s48, 2")
    A("s_add_u32 s43, s43, s61")
    A(f"s_lshl_b32 s43, s43, {lgNP}")
    A("s_add_u32 s43, s43, s58")
    A("s_lshl_b32 s43, s43, 9")
    A(f"s_add_u32 s43, s43, {hex(W_PB)}")
    A(f"s_add_u32 s44, s43, {4*NP*512}")
    G = 64
    for k in range(2):
        for w_ in range(4):
            A(f"ds_read_b64 v[{G+16*k+4*w_+2}:{G+16*k+4*w_+3}], v4 offset:{w_*4096+k*512}")
    A("v_lshlrev_b32 v5, 3, v1")
    A("s_mov_b32 s46, 0x55555555")
    A("s_mov_b32 s47, 0x55555555")
    A("s_waitcnt lgkmcnt(0)")
    for k in range(2):
        o = 12 + 4 * k
        for w_ in range(4): A(f"v_mov_b32 v{G+16*k+4*w_}, v{G+16*k+4*w_+3}")
        combine(G + 16 * k, 4, o, o + 2)
        A(f"v_mov_b32_dpp v{o+1}, v{o} quad_perm:[1,1,3,3] row_mask:0xf bank_mask:0xf")
        A(f"v_bitop3_b32 v{o+3}, v{o}, v{o+1}, v{o+2} bitop3:0x96")
        A(f"v_xor_b32 v{o+3}, s6, v{o+3}")
        A("s_mov_b64 exec, s[46:47]")
        A(f"buffer_store_dwordx4 v[{o}:{o+3}], v5, s[24:27], s{43+k} offen {bst}")
        A("s_mov_b64 exec, -1")
    stamp("h4")
    A.label("L_noB")
    if 2 in ab: A("s_branch L_hend")

    FR = [128, 160]
    flag_wait(62, 8, 4, 56, 8)
    for T_ in range(2):
        for ks in range(8):
            r = FR[T_] + ks * 4
            off = T_ * 32768 + ks * 4096
            A(f"ds_read_b64_tr_b16 v[{r}:{r+1}], v9 offset:{off}")
            A(f"ds_read_b64_tr_b16 v[{r+2}:{r+3}], v9 offset:{off+512}")
    G = 64
    A("s_mul_i32 s43, s3, 576")
    A(f"s_add_u32 s43, s43, {L_O}")
    A("v_and_b32 v60, 31, v1")
    A("v_lshl_add_u32 v60, v60, 3, s43")
    A("v_lshrrev_b32 v7, 5, v1")
    A("v_lshl_add_u32 v60, v7, 2, v60")
    A("v_and_b32 v6, 3, v1")
    A("v_mul_u32_u24 v6, 576, v6")
    A("v_lshrrev_b32 v7, 4, v1")
    A("v_lshl_add_u32 v6, v7, 4, v6")
    A(f"v_add_u32 v6, {L_O}, v6")
    A("v_and_b32 v8, 3, v1")
    A("v_lshlrev_b32 v8, 7, v8")
    A("v_lshl_add_u32 v8, v7, 4, v8")
    A("v_and_b32 v7, 4, v1")
    A("v_lshl_add_u32 v8, v7, 4, v8")
    A("s_lshl_b32 s52, s4, 3")
    A("s_add_u32 s52, s52, s5")
    A("s_lshl_b32 s61, s52, 7")
    A(f"s_add_u32 s61, s61, {hex(W_QP)}")
    A("s_add_u32 s63, s61, 0x40000")
    A("s_and_b32 s60, s52, 3")
    A("s_lshl_b32 s60, s60, 12")
    A("s_lshr_b32 s44, s52, 2")
    A("s_lshl_b32 s44, s44, 5")
    A("s_add_u32 s60, s60, s44")
    A("s_lshl_b32 s52, s52, 11")
    A("s_lshl_b32 s53, s3, 9")
    A("s_add_u32 s52, s52, s53")
    A(f"s_add_u32 s52, s52, {hex(W_QP)}")
    A("s_xor_b32 s53, s6, 0x5bd1e995")
    for r in (21, 23): A(f"v_mov_b32 v{r}, s53")
    A("v_and_b32 v11, 3, v1")
    A("v_lshlrev_b32 v11, 3, v11")
    A("v_lshl_add_u32 v11, v7, 9, v11")
    A("v_lshrrev_b32 v5, 3, v1")
    A("v_lshlrev_b32 v5, 15, v5")
    A("v_and_b32 v4, 0x70, v2")
    A("v_add_u32 v5, v5, v4")
    A("s_lshl_b32 s43, s3, 2")
    A("v_add_u32 v10, s43, v62")
    A("s_andn2_b32 s45, s4, 1")
    A("s_lshl_b32 s45, s45, 2")
    A("s_add_u32 s45, s45, s3")
    A("s_lshl_b32 s46, s45, 10")
    A(f"s_add_u32 s46, s46, {hex(W_PB)}")
    A("s_add_u32 s48, s46, 4096")
    A("s_lshl_b32 s80, s45, 12")
    A(f"s_add_u32 s80, s80, {hex(W_PA)}")
    A("s_add_u32 s81, s80, 0x4000")
    def gemv(T_, D):
        OFR = 96
        for ks in range(8):
            A(f"ds_read_b128 v[{OFR+4*ks}:{OFR+4*ks+3}], v6 offset:{T_*2304+ks*64}")
        for ks in range(8):
            A(f"s_waitcnt lgkmcnt({7-ks})")
            d = D + 4 * (ks & 1)
            r = FR[T_] + ks * 4
            c = "0" if ks < 2 else f"v[{d}:{d+3}]"
            A(f"v_mfma_f32_16x16x32_bf16 v[{d}:{d+3}], v[{r}:{r+3}], v[{OFR+4*ks}:{OFR+4*ks+3}], {c}")
        for r in range(4): A(f"v_add_f32 v{D+r}, v{D+r}, v{D+4+r}")
    flag_wait(10, 16, 1, 56, esl)
    stamp("h5")
    poll_masked(2, lambda i: A(f"buffer_load_dwordx4 v[{G+4*i}:{G+4*i+3}], v2, s[24:27], s{46+2*i} offen {bld}"),
                lambda i: G + 4 * i, 16)
    for k in range(2): combine2(G + 4 * k, 1, 60, 2304 + 256 * k)
    A("s_waitcnt lgkmcnt(0)")
    flag_add(62, 32)
    flag_wait(62, 32, 4, 56, 1)
    gemv(1, 12)
    A("v_cvt_pk_bf16_f32 v24, v12, v13")
    A("v_cvt_pk_bf16_f32 v26, v14, v15")
    flag_wait(10, 48, 2, 56, 0)
    stamp("h6")
    top, done, nis, np0, np1, nc0, nc1 = (lab(x) for x in ("pa", "padone", "nis", "np0", "np1", "nc0", "nc1"))
    A(f"s_mov_b32 s42, {spin}")
    for i in range(8): A(f"s_mov_b64 s[{64+2*i}:{65+2*i}], -1")
    A("s_mov_b32 s44, 0")
    A("s_mov_b32 s45, 0")
    A.label(top)
    A("s_cmp_eq_u32 s44, 3")
    A(f"s_cbranch_scc1 {nis}")
    for i in range(8):
        A(f"s_mov_b64 exec, s[{64+2*i}:{65+2*i}]")
        A(f"buffer_load_dwordx4 v[{G+4*i}:{G+4*i+3}], v2, s[24:27], s{80+i//4} offen offset:{(i%4)*1024} {ald}")
    A("s_mov_b64 exec, -1")
    A.label(nis)
    for k, np_ in ((0, np0), (1, np1)):
        A(f"s_bitcmp1_b32 s45, {k}")
        A(f"s_cbranch_scc0 {np_}")
        combine2(G + 16 * k, 4, 60, 256 * k)
        A.label(np_)
    A("s_mov_b32 s45, 0")
    A("s_cmp_eq_u32 s44, 3")
    A(f"s_cbranch_scc1 {done}")
    A("s_waitcnt vmcnt(0)")
    for k, nc in ((0, nc0), (1, nc1)):
        A(f"s_bitcmp1_b32 s44, {k}")
        A(f"s_cbranch_scc1 {nc}")
        for i in range(4 * k, 4 * k + 4): chk(G + 4 * i, 64 + 2 * i)
        b0 = 64 + 8 * k
        A(f"s_or_b64 s[40:41], s[{b0}:{b0+1}], s[{b0+2}:{b0+3}]")
        A(f"s_or_b64 vcc, s[{b0+4}:{b0+5}], s[{b0+6}:{b0+7}]")
        A("s_or_b64 s[40:41], s[40:41], vcc")
        A(f"s_cselect_b32 s47, 0, {1<<k}")
        A("s_or_b32 s44, s44, s47")
        A("s_or_b32 s45, s45, s47")
        A.label(nc)
    A("s_sub_u32 s42, s42, 1")
    A("s_cmp_lg_u32 s42, 0")
    A(f"s_cbranch_scc1 {top}")
    A.label(done)
    stamp("h7")
    A("s_waitcnt lgkmcnt(0)")
    A("s_barrier")
    gemv(0, 12)
    A("v_cvt_pk_bf16_f32 v20, v12, v13")
    A("v_cvt_pk_bf16_f32 v22, v14, v15")
    A("v_mov_b32_dpp v20, v24 row_shr:4 row_mask:0xf bank_mask:0x2")
    A("v_mov_b32_dpp v22, v26 row_shr:4 row_mask:0xf bank_mask:0x2")
    A("s_mov_b64 exec, s[56:57]")
    A(f"buffer_store_dwordx4 v[20:23], v8, s[24:27], s52 offen {yst}")
    A("s_mov_b64 exec, -1")
    stamp("h8")
    A("s_cmp_lg_u32 s3, 0")
    A("s_cbranch_scc1 L_hend")
    poll_masked(2, lambda i: A(f"buffer_load_dwordx4 v[{G+4*i}:{G+4*i+3}], v5, s[24:27], s{61+2*i} offen {yld}"),
                lambda i: [G + 4 * i + 1, G + 4 * i + 3], ysl, tagreg="s53")
    stamp("h9")
    U = G + 16
    for i in range(2):
        A(f"v_lshlrev_b32 v{U+4*i}, 16, v{G+4*i}")
        A(f"v_and_b32 v{U+4*i+1}, 0xffff0000, v{G+4*i}")
        A(f"v_lshlrev_b32 v{U+4*i+2}, 16, v{G+4*i+2}")
        A(f"v_and_b32 v{U+4*i+3}, 0xffff0000, v{G+4*i+2}")
    for k in range(4):
        A(f"v_add_f32 v{U+k}, v{U+k}, v{U+4+k}")
    A(f"v_permlane32_swap_b32 v{U}, v{U+2}")
    A(f"v_permlane32_swap_b32 v{U+1}, v{U+3}")
    A(f"v_add_f32 v{U}, v{U}, v{U+2}")
    A(f"v_add_f32 v{U+1}, v{U+1}, v{U+3}")
    A(f"v_add_f32_dpp v{U}, v{U}, v{U} row_ror:8 row_mask:0xf bank_mask:0xf")
    A(f"v_add_f32_dpp v{U+1}, v{U+1}, v{U+1} row_ror:8 row_mask:0xf bank_mask:0xf")
    A(f"v_mov_b32 v{U+2}, v{U}")
    A(f"v_mov_b32 v{U+3}, v{U+1}")
    A(f"v_permlane16_swap_b32 v{U}, v{U+2}")
    A(f"v_permlane16_swap_b32 v{U+1}, v{U+3}")
    A(f"v_add_f32 v{U}, v{U}, v{U+2}")
    A(f"v_add_f32 v{U+1}, v{U+1}, v{U+3}")
    A(f"v_cvt_pk_bf16_f32 v{U+4}, v{U}, v{U+1}")
    A(f"v_mov_b32 v{U+5}, v{U+4}")
    A(f"v_permlane32_swap_b32 v{U+4}, v{U+5}")
    A("s_mov_b64 exec, 0xff")
    A(f"buffer_store_dwordx2 v[{U+4}:{U+5}], v11, s[28:31], s60 offen")
    A("s_mov_b64 exec, -1")
    A("s_cmp_lg_u32 s2, 0")
    A("s_cbranch_scc1 L_hend")
    A("v_mov_b32 v3, 0")
    A("v_mov_b32 v4, s6")
    A("s_mov_b64 exec, 1")
    A("buffer_store_dword v4, v3, s[24:27], 0 offen")
    A("s_mov_b64 exec, -1")
    A.label("L_hend")
    stamp_store(240)
    A("s_endpgm")

    A.label("L_stream")
    srdp(8, "A_k", 0x10000000)
    A("s_sub_u32 s33, s3, 4")
    A("s_lshl_b32 s38, s33, 5")
    A("s_add_u32 s38, s38, s4")
    A("s_lshl_b32 s39, s38, 8")
    A("s_lshl_b32 s38, s38, 21")
    A(f"s_mul_i32 s28, s33, {rc}")
    A("s_add_u32 s29, s28, s5")
    A("s_and_b32 s29, s29, 7")
    A("s_lshl_b32 s29, s29, 14")
    A("s_add_u32 s29, s29, s38")
    A("s_mov_b32 s30, s29")
    for q in range(4): A(f"v_add_u32 v{48+q}, {q*4096}, v2")
    R0 = 64
    def load(q, so, base=None):
        for j in range(4):
            r = (base or R0) + 16 * q + 4 * j
            A(f"buffer_load_dwordx4 v[{r}:{r+3}], v{48+q}, s[8:11], {so} offen offset:{j*1024} nt")
    for q in range(4):
        if q == sgate - 1 + 0 and sgate: flag_wait(62, 36, 4, 10, 0)
        load(q, "s30")
    for x in range(xpre):
        A(f"s_add_u32 s30, s30, {NWP*CSB}")
        for q in range(4): load(q, "s30", 128 + 64 * x)
    A("s_mov_b32 s12, s8")
    A("s_mov_b32 s13, s9")
    A(f"s_mov_b32 s14, s{P['A_v']}")
    A(f"s_and_b32 s15, s{P['A_v']+1}, 0xffff")
    srdp(16, "A_wo", 0x800000)
    srdp(20, "B_wo", 0x800000)
    A(f"s_add_u32 s39, s39, {hex(W_CNT)}")
    A(f"s_add_u32 s52, s{P['ws']}, s39")
    A(f"s_addc_u32 s53, s{P['ws']+1}, 0")
    A(f"s_add_u32 s28, s28, {JB}")
    A(f"s_and_b32 s28, s28, {8//NBW-1}")
    A(f"s_add_u32 s28, s28, {8*(ns-ksk)}")
    A("s_mov_b32 s57, s29")
    A("v_lshrrev_b32 v3, 3, v1")
    A("v_lshlrev_b32 v3, 11, v3")
    A("v_and_b32 v4, 0x70, v2")
    A("v_add_u32 v3, v3, v4")
    A("v_and_b32 v4, 16, v1")
    A("v_lshlrev_b32 v4, 1, v4")
    A("v_xor_b32 v3, v3, v4")
    A("v_xor_b32 v44, 64, v3")
    A("v_and_b32 v4, 0xf0, v2")
    A("s_andn2_b32 s34, s4, 1")
    A("s_lshl_b32 s34, s34, 18")
    A("s_lshl_b32 s35, s33, 17")
    A("s_add_u32 s34, s34, s35")
    A("s_and_b32 s35, s4, 1")
    A("s_lshl_b32 s35, s35, 3")
    A("s_add_u32 s35, s35, s5")
    A("s_lshl_b32 s35, s35, 7")
    A("s_add_u32 s34, s34, s35")
    A("s_lshl_b32 s35, s33, 13")
    A(f"s_add_u32 s35, s35, {L_WO}")
    flag_wait(62, 36, 4, 10, 0)
    for T_ in range(2):
        for u in range(8):
            A(f"s_add_u32 s37, s35, {T_*32768+u*1024}")
            A("s_mov_b32 m0, s37")
            A(f"s_add_u32 s39, s34, {u*16384}")
            A(f"buffer_load_dwordx4 v{44 if u&1 else 3}, s[{16+4*T_}:{19+4*T_}], s39 offen nt lds")
    Q, ACC, M, LS, C, AL, NM, S, T, PL, PH = 8, 12, 20, 21, 22, 23, 24, 28, 32, 34, 35
    init_state(M, LS, ACC)
    mktag()
    A("s_lshl_b32 s43, s33, 8")
    A(f"s_add_u32 s43, s43, {L_QA}")
    A("v_add_u32 v4, s43, v4")
    A(f"v_mov_b32 v7, {L_FL}")
    A("s_lshl_b32 s43, s33, 2")
    A("v_add_u32 v62, s43, v62")
    A("v_and_b32 v5, 15, v1")
    A("v_lshlrev_b32 v5, 5, v5")
    A("v_lshrrev_b32 v6, 5, v1")
    A("v_lshl_add_u32 v5, v6, 4, v5")
    A("s_lshl_b32 s43, s33, 12")
    A(f"s_add_u32 s43, s43, {L_FIFO}")
    A("v_lshl_add_u32 v46, v1, 2, s43")
    A("v_mov_b32 v47, v46")
    A("s_lshl_b32 s43, s4, 2")
    A("s_add_u32 s43, s43, s33")
    A("s_lshl_b32 s43, s43, 3")
    A("s_add_u32 s43, s43, s5")
    A("s_lshl_b32 s43, s43, 9")
    A(f"s_add_u32 s43, s43, {hex(W_PA)}")
    A("s_mov_b32 s72, 0xffff")
    A("s_mov_b32 s73, 0xffff")
    for q in range(4):
        A(f"s_mov_b32 s{64+2*q}, {hex(0x11111111 << q)}")
        A(f"s_mov_b32 s{65+2*q}, {hex(0x11111111 << q)}")
    A("s_cmp_eq_u32 s62, 0")
    A(f"s_cselect_b32 s58, {ns-1}, {ns-1-ksk}")
    A("s_mov_b32 s59, s58")
    A("s_mov_b32 s60, 4")
    A("s_mov_b32 s61, 4")
    A("s_mov_b32 s56, 0")
    A("s_mov_b32 s63, 0x10000000")
    stamp("s1")
    A("s_barrier")
    stamp("s2")
    A(f"ds_read_b128 v[{Q}:{Q+3}], v4")
    def claim():
        A("s_mov_b32 s50, 1")
        A("s_atomic_add s50, s[52:53], 0 glc")
    def issue(q):
        if q == 0 or not (n1 or n2):
            load(q, "s30")
        else:
            A(f"s_cmp_gt_u32 s61, {q}")
            A("s_cselect_b32 s31, s30, s63")
            load(q, "s31")
    def kbody(ex, xb=None):
        A(f"v_mov_b32 v{C}, 0xf149f2ca")
        for q in range(4):
            sk = lab("ks")
            A(f"s_waitcnt vmcnt({min(63, 12+ex-(4*q if xb else 0))})")
            if q and (n1 or n2) and not ex:
                A(f"s_cmp_le_u32 s60, {q}")
                A(f"s_cbranch_scc1 {sk}")
            K = (xb or R0) + 16 * q
            for r in range(4):
                for j in range(4):
                    c = "0" if r == 0 else f"v{S+j}"
                    A(f"v_dot2_f32_bf16 v{S+j}, v{K+4*j+r}, v{Q+r}, {c}")
            if not (q and (n1 or n2) and not ex) and not xb: issue(q)
            A(f"v_add_f32_dpp v{T}, v{S}, v{S} row_ror:8 row_mask:0xf bank_mask:0x3")
            A(f"v_add_f32_dpp v{T+1}, v{S+1}, v{S+1} row_ror:8 row_mask:0xf bank_mask:0x3")
            A(f"v_add_f32_dpp v{T}, v{S+2}, v{S+2} row_ror:8 row_mask:0xf bank_mask:0xc")
            A(f"v_add_f32_dpp v{T+1}, v{S+3}, v{S+3} row_ror:8 row_mask:0xf bank_mask:0xc")
            A(f"v_add_f32_dpp v{S}, v{T}, v{T} row_shl:4 row_mask:0xf bank_mask:0x5")
            A(f"v_add_f32_dpp v{S}, v{T+1}, v{T+1} row_shr:4 row_mask:0xf bank_mask:0xa")
            A(f"v_add_f32_dpp v{S}, v{S}, v{S} quad_perm:[2,3,0,1] row_mask:0xf bank_mask:0xf")
            A(f"v_add_f32_dpp v{S}, v{S}, v{S} quad_perm:[1,0,3,2] row_mask:0xf bank_mask:0xf")
            A(f"v_cndmask_b32 v{C}, v{C}, v{S}, s[{64+2*q}:{65+2*q}]")
            if q and (n1 or n2) and not ex:
                A.label(sk)
                issue(q)
    def vbody():
        if rnd: round2([C])
        A(f"v_max_f32_dpp v{AL}, v{C}, v{C} row_ror:8 row_mask:0xf bank_mask:0xf")
        for st in (4, 2, 1):
            A(f"v_max_f32_dpp v{AL}, v{AL}, v{AL} row_ror:{st} row_mask:0xf bank_mask:0xf")
        A(f"v_max_f32 v{AL}, v{AL}, v{M}")
        A(f"v_sub_f32 v{NM}, v{M}, v{AL}")
        A(f"v_mov_b32 v{M}, v{AL}")
        A(f"v_sub_f32 v{C}, v{C}, v{AL}")
        A(f"v_mul_f32 v{AL}, s7, v{NM}")
        A(f"v_mul_f32 v{C}, s7, v{C}")
        A(f"v_exp_f32 v{AL}, v{AL}")
        A(f"v_exp_f32 v{C}, v{C}")
        for e in range(8): A(f"v_mul_f32 v{ACC+e}, v{ACC+e}, v{AL}")
        A(f"v_cvt_pk_bf16_f32 v{PL}, v{C}, 0")
        A(f"v_cvt_pk_bf16_f32 v{PH}, 0, v{C}")
        A(f"v_fma_f32 v{LS}, v{LS}, v{AL}, v{C}")
        for q in range(4):
            sk = lab("vs")
            A("s_waitcnt vmcnt(12)")
            if q and (n1 or n2):
                A(f"s_cmp_le_u32 s60, {q}")
                A(f"s_cbranch_scc1 {sk}")
            V = R0 + 16 * q
            for j in range(4):
                for r in range(4):
                    A(f"v_dot2c_f32_bf16_dpp v{ACC+2*r}, v{PL}, v{V+4*j+r} row_newbcast:{4*j+q} row_mask:0xf bank_mask:0xf")
                    A(f"v_dot2c_f32_bf16_dpp v{ACC+2*r+1}, v{PH}, v{V+4*j+r} row_newbcast:{4*j+q} row_mask:0xf bank_mask:0xf")
            if q and (n1 or n2): A.label(sk)
            issue(q)
    A(f"s_add_u32 s29, s29, {(1+xpre)*NWP*CSB}")
    A("s_mov_b32 s30, s29")
    A(f"s_sub_u32 s58, s58, {1+xpre}")
    A("s_waitcnt lgkmcnt(0)")
    kbody(16 + 16 * xpre)
    A(f"ds_write_b32 v46, v{C}")
    A("v_add_u32 v46, 256, v46")
    for x in range(xpre):
        kbody(32 + 16 * (xpre - 1 - x), 128 + 64 * x)
        A(f"ds_write_b32 v46, v{C}")
        A("v_add_u32 v46, 256, v46")
    A("s_waitcnt vmcnt(16)")
    flag_add(7, 8)
    A.label("L_topK")
    A("s_cmp_lg_u32 s56, 0")
    A("s_cbranch_scc1 L_dynK")
    A("s_cmp_eq_u32 s58, 0")
    A("s_cbranch_scc1 L_lastK")
    A(f"s_add_u32 s29, s29, {NWP*CSB}")
    A("s_mov_b32 s30, s29")
    A("s_sub_u32 s58, s58, 1")
    A("s_mov_b32 s55, 0")
    A("s_branch L_K")
    A.label("L_lastK")
    stamp("sk")
    A("s_mov_b32 s29, s57")
    A("s_mov_b32 s30, s29")
    A("s_branch L_K2")
    A.label("L_dynK")
    claim()
    A.label("L_K2")
    A("s_mov_b32 s8, s14")
    A("s_mov_b32 s9, s15")
    A("s_mov_b32 s55, 1")
    A.label("L_K")
    kbody(0)
    A("s_cmp_lg_u32 s56, 0")
    A("s_cbranch_scc1 L_dynV")
    A(f"ds_write_b32 v46, v{C}")
    A("v_add_u32 v46, 256, v46")
    A("s_cmp_eq_u32 s55, 0")
    A("s_cbranch_scc1 L_topK")
    A.label("L_topV")
    A(f"ds_read_b32 v{C}, v47")
    A("v_add_u32 v47, 256, v47")
    A("s_cmp_eq_u32 s59, 0")
    A("s_cbranch_scc1 L_dynV")
    A(f"s_add_u32 s29, s29, {NWP*CSB}")
    A("s_mov_b32 s30, s29")
    A("s_sub_u32 s59, s59, 1")
    A("s_waitcnt lgkmcnt(0)")
    A("s_cmp_lg_u32 s59, 0")
    A("s_cbranch_scc1 L_V")
    claim()
    A("s_branch L_V")
    A.label("L_dynV")
    A("s_waitcnt lgkmcnt(0)")
    A("s_mov_b32 s56, 1")
    A(f"s_cmp_ge_u32 s50, {NDYN}")
    A("s_cbranch_scc1 L_exh")
    A(f"s_add_u32 s36, s50, {ns*NWP-NSK}")
    A(f"s_mul_i32 s37, s50, {8//NBW}")
    A("s_add_u32 s37, s37, s28")
    A(f"s_cmp_lt_u32 s50, {NSK}")
    A("s_cselect_b32 s36, s37, s36")
    A("s_lshl_b32 s30, s36, 2")
    A("s_mov_b32 s61, 4")
    if n2:
        A("s_lshl_b32 s37, s50, 1")
        A(f"s_add_u32 s37, s37, {(T2 - 2*N4) & 0xffffffff}")
        A(f"s_cmp_ge_u32 s50, {N4}")
        A("s_cselect_b32 s30, s37, s30")
        A("s_cselect_b32 s61, 2, s61")
    if n1:
        A(f"s_add_u32 s37, s50, {(T1 - N4 - n2) & 0xffffffff}")
        A(f"s_cmp_ge_u32 s50, {N4+n2}")
        A("s_cselect_b32 s30, s37, s30")
        A("s_cselect_b32 s61, 1, s61")
    A("s_lshl_b32 s30, s30, 12")
    A("s_add_u32 s30, s30, s38")
    A("s_mov_b32 s8, s12")
    A("s_mov_b32 s9, s13")
    A("s_mov_b32 s55, 0")
    A(f"s_cmp_lt_u32 s50, {max(0, NDYN-wox)}")
    A("s_cbranch_scc1 L_V")
    flag_add(62, 16)
    A("s_branch L_V")
    A.label("L_exh")
    A("s_mov_b32 s30, s63")
    A("s_mov_b32 s55, 2")
    flag_add(62, 16)
    flag_add(62, 48)
    stamp("s3")
    A.label("L_V")
    vbody()
    A("s_mov_b32 s60, s61")
    A("s_cmp_eq_u32 s55, 1")
    A("s_cbranch_scc1 L_topV")
    A("s_cmp_eq_u32 s55, 0")
    A("s_cbranch_scc1 L_topK")
    stamp("s5")
    for st in (8, 4, 2, 1):
        A(f"v_add_f32_dpp v{LS}, v{LS}, v{LS} row_ror:{st} row_mask:0xf bank_mask:0xf")
    finalize(M, LS, ACC, 24, 40, 42)
    A("v_mov_b32 v41, v40")
    A("v_xor_b32 v43, s6, v42")
    A("v_permlane16_swap_b32 v40, v41")
    A("v_bitop3_b32 v43, v40, v41, v43 bitop3:0x96")
    stamp("s4")
    A("s_mov_b64 exec, s[72:73]")
    A(f"buffer_store_dwordx4 v[40:43], v5, s[24:27], s43 offen {ast}")
    flag_add(62, 48)
    stamp_store(240)
    A.label("L_end")
    A("s_endpgm")

    body = A.render()
    nv = 256 if (stamps or xpre > 1) else 240
    txt = HEADER + f"; @launch grid=(256,1,1) block=(512,1,1) lds={L_TOT}\n"
    txt += '.amdgcn_target "amdgcn-amd-amdhsa--gfx950"\n.text\n'
    txt += f".globl {NAME}\n.p2align 8\n.type {NAME},@function\n"
    txt += body
    txt += '.section .rodata,"a"\n.p2align 6\n'
    txt += f".amdhsa_kernel {NAME}\n"
    txt += f"  .amdhsa_next_free_vgpr {nv}\n  .amdhsa_next_free_sgpr 102\n  .amdhsa_accum_offset {nv}\n"
    txt += "  .amdhsa_group_segment_fixed_size 0\n  .amdhsa_kernarg_size 104\n  .amdhsa_user_sgpr_count 2\n"
    txt += "  .amdhsa_user_sgpr_kernarg_segment_ptr 1\n  .amdhsa_system_sgpr_workgroup_id_x 1\n.end_amdhsa_kernel\n"
    return txt

if __name__ == "__main__":
    import argparse
    ap = argparse.ArgumentParser()
    ap.add_argument("out")
    ap.add_argument("--kw", default="")
    a = ap.parse_args()
    kw = eval("dict(" + a.kw + ")")
    open(a.out, "w").write(gen(**kw))
```

```python
import sys, struct
sys.path.insert(0, "dev")
from asmlib import Asm
from gen import HEADER, NAME

L_W = 0
L_FIFO = 32768
L_WO = 65536
L_QA = 131072
L_QB = L_QA + 1024
L_O = L_QB + 2048
L_FL = L_O + 4608
L_X = L_FL + 64
L_TOT = L_X + 4352
W_CNT = 0x1000
W_QP = 0x10000
W_PA = 0x100000
W_PB = 0x200000
W_Y = 0x400000
W_STAMP = 0x20000000

F32 = lambda x: struct.unpack("<I", struct.pack("<f", x))[0]
CEXP = struct.unpack("<I", struct.pack("<f", 1.4426950408889634 / (128 ** 0.5)))[0]

def gen(TD=3, CS=4, ns=12, NBW=1, JB=2, ksk=4, stamps=0, spin=200000, hst=("h1", "h2", "h3", "h4"),
        sst=("s1", "s2", "s3", "s4"), rot=1, wox=8, psl=16, qsl=4, ysl=0, early=0, esl=16,
        bst="sc1 nt", bld="sc1 nt", ast="sc1", ald="sc1", ab=(), wolate=0, pasl=0, touch=0, woh=0, kp="nt", vp="nt", til=0, gate=3, n2=0, n1=0, rc=0, rnd=0, mixed=0, warm=0, ybk=0, sgate=1, qst="sc1", qld="sc1", yst=None, yld=None, xpre=0, ost="sc1", pt=0, L=6, jbh=1, sprio=0, wofirst=0):
    tl = 4
    yst = yst or ast; yld = yld or ald
    A = Asm()
    NWP = 8
    NT = 512
    CD = CS
    CSB = CS * 4096
    assert ns * NWP * CS <= NT and (NT - ns * NWP * CS) % CD == 0
    NSK = NBW * ksk
    assert n1 == 0 and xpre == 0
    assert NBW == 1 and not til and (2 * n2 + n1) % CS == 0
    N4 = (NT - ns * NWP * CS - 2 * n2 - n1) // CS + NSK
    NDYN = N4 + n2 + n1
    T2 = NT - 2 * n2 - n1
    T1 = NT - n1
    assert CS == 4 and ns - ksk >= 2 + xpre and ns <= 16
    NP = 2 * NBW
    BT = 16 // NBW
    uid = [0]
    def lab(p):
        uid[0] += 1
        return f"L_{p}_{uid[0]}"

    P = dict(A_x=64, A_k=66, A_v=68, A_wq=70, A_wo=72, B_x=74, B_k=76, B_v=78, B_wq=80, B_wo=82, out=84, dbg=86, ws=88)
    def srd(d, lo, hi, n):
        A(f"s_mov_b32 s{d}, s{lo}")
        A(f"s_and_b32 s{d+1}, s{hi}, 0xffff")
        A(f"s_mov_b32 s{d+2}, {hex(n)}")
        A(f"s_mov_b32 s{d+3}, 0x20000")
    def srdp(d, name, n): srd(d, P[name], P[name] + 1, n)

    def stamp(i):
        if not stamps: return
        if isinstance(i, str):
            lst = hst if i[0] == "h" else sst
            if i not in lst: return
            i = 1 + list(lst).index(i)
        A(f"s_memrealtime s[{90+2*i}:{91+2*i}]")
    def stamp_store(vt):
        if not stamps: return
        A(f"s_memrealtime s[{90+2*(stamps-1)}:{91+2*(stamps-1)}]")
        A("s_waitcnt lgkmcnt(0)")
        A("s_lshl_b32 s32, s2, 3")
        A("s_add_u32 s32, s32, s3")
        A(f"s_mul_i32 s32, s32, {stamps*8}")
        A(f"s_add_u32 s32, s32, {hex(W_STAMP)}")
        for i in range(stamps):
            A(f"v_mov_b32 v{vt+2*i}, s{90+2*i}")
            A(f"v_mov_b32 v{vt+2*i+1}, s{91+2*i}")
        A(f"v_mov_b32 v{vt+2*stamps}, 0")
        A("s_mov_b64 exec, 1")
        for i in range(stamps):
            A(f"buffer_store_dwordx2 v[{vt+2*i}:{vt+2*i+1}], v{vt+2*stamps}, s[24:27], s32 offen offset:{8*i}")
        A("s_mov_b64 exec, -1")

    def chain(op3, op2, dst, regs):
        if len(regs) == 2:
            A(f"{op2} v{dst}, {regs[0]}, {regs[1]}"); return
        A(f"{op3} v{dst}, {regs[0]}, {regs[1]}, {regs[2]}")
        i = 3
        while i < len(regs):
            if i + 1 < len(regs):
                A(f"{op3} v{dst}, v{dst}, {regs[i]}, {regs[i+1]}"); i += 2
            else:
                A(f"{op2} v{dst}, v{dst}, {regs[i]}"); i += 1
    def scores(K, Q, S, n):
        for r in range(4):
            for j in range(n):
                c = "0" if r == 0 else f"v{S+j}"
                A(f"v_dot2_f32_bf16 v{S+j}, v{K+4*j+r}, v{Q+r}, {c}")
        for st in (8, 4, 2, 1):
            for j in range(n):
                A(f"v_add_f32_dpp v{S+j}, v{S+j}, v{S+j} row_ror:{st} row_mask:0xf bank_mask:0xf")
    def round2(regs):
        for r in regs: A(f"v_cvt_pk_bf16_f32 v{r}, 0, v{r}")
        for r in regs: A(f"v_mul_f32 v{r}, {hex(F32(128 ** -0.5))}, v{r}")
        for r in regs: A(f"v_cvt_pk_bf16_f32 v{r}, 0, v{r}")
    def softmax(S, n, M, LS, ACC, AL, NM, PL, PH):
        if rnd: round2([S + j for j in range(n)])
        chain("v_max3_f32", "v_max_f32", AL, [f"v{S+j}" for j in range(n)] + [f"v{M}"])
        A(f"v_sub_f32 v{NM}, v{M}, v{AL}")
        A(f"v_mov_b32 v{M}, v{AL}")
        A(f"v_mul_f32 v{AL}, s7, v{NM}")
        A(f"v_mul_f32 v{NM}, s7, v{M}")
        A(f"v_exp_f32 v{AL}, v{AL}")
        for j in range(n):
            A(f"v_fma_f32 v{S+j}, v{S+j}, s7, -v{NM}")
        for j in range(n):
            A(f"v_exp_f32 v{S+j}, v{S+j}")
        for e in range(8):
            A(f"v_mul_f32 v{ACC+e}, v{ACC+e}, v{AL}")
        A(f"v_fma_f32 v{LS}, v{LS}, v{AL}, v{S}")
        for j in range(1, n):
            A(f"v_add_f32 v{LS}, v{LS}, v{S+j}")
        for j in range(n):
            A(f"v_cvt_pk_bf16_f32 v{PL+j}, v{S+j}, 0")
            A(f"v_cvt_pk_bf16_f32 v{PH+j}, 0, v{S+j}")
    def pv(V, n, ACC, PL, PH):
        for j in range(n):
            for r in range(4):
                A(f"v_dot2_f32_bf16 v{ACC+2*r}, v{V+4*j+r}, v{PL+j}, v{ACC+2*r}")
                A(f"v_dot2_f32_bf16 v{ACC+2*r+1}, v{V+4*j+r}, v{PH+j}, v{ACC+2*r+1}")
    def init_state(M, LS, ACC):
        for e in range(8): A(f"v_mov_b32 v{ACC+e}, 0")
        A(f"v_mov_b32 v{M}, 0xf149f2ca")
        A(f"v_mov_b32 v{LS}, 0")
    def finalize(M, LS, ACC, T, OPK, OLSE):
        A(f"v_mov_b32 v{T+1}, v{M}")
        A(f"v_mov_b32 v{T+2}, v{M}")
        A(f"v_permlane32_swap_b32 v{T+1}, v{T+2}")
        A(f"v_max_f32 v{T+1}, v{T+1}, v{T+2}")
        A(f"v_mov_b32 v{T+2}, v{T+1}")
        A(f"v_permlane16_swap_b32 v{T+1}, v{T+2}")
        A(f"v_max_f32 v{T}, v{T+1}, v{T+2}")
        A(f"v_sub_f32 v{T+1}, v{M}, v{T}")
        A(f"v_mul_f32 v{T+1}, s7, v{T+1}")
        A(f"v_exp_f32 v{T+1}, v{T+1}")
        A(f"v_mul_f32 v{LS}, v{LS}, v{T+1}")
        for e in range(8): A(f"v_mul_f32 v{ACC+e}, v{ACC+e}, v{T+1}")
        A(f"v_mov_b32 v{T+1}, v{LS}")
        A(f"v_mov_b32 v{T+2}, v{LS}")
        for e in range(4): A(f"v_permlane32_swap_b32 v{ACC+e}, v{ACC+e+4}")
        A(f"v_permlane32_swap_b32 v{T+1}, v{T+2}")
        for e in range(4): A(f"v_add_f32 v{ACC+e}, v{ACC+e}, v{ACC+e+4}")
        A(f"v_add_f32 v{T+1}, v{T+1}, v{T+2}")
        A(f"v_mov_b32 v{T+2}, v{T+1}")
        for e in range(2): A(f"v_permlane16_swap_b32 v{ACC+e}, v{ACC+e+2}")
        A(f"v_permlane16_swap_b32 v{T+1}, v{T+2}")
        A(f"v_add_f32 v{T+3}, v{T+1}, v{T+2}")
        for e in range(2): A(f"v_add_f32 v{ACC+e}, v{ACC+e}, v{ACC+e+2}")
        A(f"v_rcp_f32 v{T+1}, v{T+3}")
        A(f"v_log_f32 v{T+2}, v{T+3}")
        A(f"v_mul_f32 v{ACC}, v{ACC}, v{T+1}")
        A(f"v_mul_f32 v{ACC+1}, v{ACC+1}, v{T+1}")
        A(f"v_fma_f32 v{OLSE}, v{T}, s7, v{T+2}")
        A(f"v_cvt_pk_bf16_f32 v{OPK}, v{ACC}, v{ACC+1}")
    def combine(G, n, OPK, OLSE=None):
        T1, T2, T3, T4 = 56, 57, 58, 59
        chain("v_max3_f32", "v_max_f32", T1, [f"v{G+4*i+2}" for i in range(n)])
        for i in range(n): A(f"v_sub_f32 v{G+4*i+2}, v{G+4*i+2}, v{T1}")
        for i in range(n): A(f"v_exp_f32 v{G+4*i+2}, v{G+4*i+2}")
        for i in range(n):
            A(f"v_lshlrev_b32 v{G+4*i+1}, 16, v{G+4*i}")
            A(f"v_and_b32 v{G+4*i+3}, 0xffff0000, v{G+4*i}")
        A(f"v_add_f32 v{T4}, v{G+2}, v{G+6}")
        A(f"v_mul_f32 v{T2}, v{G+2}, v{G+1}")
        A(f"v_mul_f32 v{T3}, v{G+2}, v{G+3}")
        for i in range(2, n): A(f"v_add_f32 v{T4}, v{T4}, v{G+4*i+2}")
        if OLSE is not None: A(f"v_log_f32 v{OLSE}, v{T4}")
        A(f"v_rcp_f32 v{T4}, v{T4}")
        for i in range(1, n):
            A(f"v_fmac_f32 v{T2}, v{G+4*i+2}, v{G+4*i+1}")
            A(f"v_fmac_f32 v{T3}, v{G+4*i+2}, v{G+4*i+3}")
        if OLSE is not None: A(f"v_add_f32 v{OLSE}, v{OLSE}, v{T1}")
        A(f"v_mul_f32 v{T2}, v{T2}, v{T4}")
        A(f"v_mul_f32 v{T3}, v{T3}, v{T4}")
        A(f"v_cvt_pk_bf16_f32 v{OPK}, v{T2}, v{T3}")
    def chk(g, m):
        A(f"v_bitop3_b32 v56, v{g}, v{g+1}, v{g+2} bitop3:0x96")
        A(f"v_xor_b32 v56, v56, v{g+3}")
        A(f"v_cmp_ne_u32 s[{m}:{m+1}], s6, v56")
    def combine2(G, n, addr_v, off):
        T1, T2, DEN, A0 = 56, 57, 58, 36
        if n == 1: A(f"v_mov_b32 v{T1}, v{G+2}")
        else: chain("v_max3_f32", "v_max_f32", T1, [f"v{G+4*u+2}" for u in range(n)])
        A(f"v_mov_b32 v{T2}, v{T1}")
        for u in range(n):
            A(f"v_lshlrev_b32 v{G+4*u+3}, 16, v{G+4*u}")
        A(f"v_permlane32_swap_b32 v{T1}, v{T2}")
        A(f"v_max_f32 v{T1}, v{T1}, v{T2}")
        for u in range(n): A(f"v_sub_f32 v{G+4*u+2}, v{G+4*u+2}, v{T1}")
        for u in range(n): A(f"v_exp_f32 v{G+4*u+2}, v{G+4*u+2}")
        for u in range(n): A(f"v_and_b32 v{G+4*u}, 0xffff0000, v{G+4*u}")
        for u in range(n):
            op = "v_mul_f32" if u == 0 else "v_fmac_f32"
            A(f"{op} v{A0}, v{G+4*u+2}, v{G+4*u+3}")
            A(f"{op} v{A0+1}, v{G+4*u+2}, v{G+4*u}")
            A(f"v_lshlrev_b32 v{G+4*u+3}, 16, v{G+4*u+1}")
            A(f"v_and_b32 v{G+4*u+1}, 0xffff0000, v{G+4*u+1}")
            if u == 0: A(f"v_mov_b32 v{DEN}, v{G+2}")
            else: A(f"v_add_f32 v{DEN}, v{DEN}, v{G+4*u+2}")
        A(f"v_mov_b32 v{DEN+1}, v{DEN}")
        for u in range(n):
            op = "v_mul_f32" if u == 0 else "v_fmac_f32"
            A(f"{op} v{A0+2}, v{G+4*u+2}, v{G+4*u+3}")
            A(f"{op} v{A0+3}, v{G+4*u+2}, v{G+4*u+1}")
        A(f"v_permlane32_swap_b32 v{DEN}, v{DEN+1}")
        A(f"v_add_f32 v{DEN}, v{DEN}, v{DEN+1}")
        A(f"v_permlane32_swap_b32 v{A0}, v{A0+2}")
        A(f"v_permlane32_swap_b32 v{A0+1}, v{A0+3}")
        A(f"v_rcp_f32 v{DEN}, v{DEN}")
        A(f"v_add_f32 v{A0}, v{A0}, v{A0+2}")
        A(f"v_add_f32 v{A0+1}, v{A0+1}, v{A0+3}")
        A(f"v_mul_f32 v{A0}, v{A0}, v{DEN}")
        A(f"v_mul_f32 v{A0+1}, v{A0+1}, v{DEN}")
        A(f"v_cvt_pk_bf16_f32 v{A0}, v{A0}, v{A0+1}")
        A(f"ds_write_b32 v{addr_v}, v{A0} offset:{off}")
    def poll_masked(n, issue1, tagregs, sleep, mbase=64, extra=None, tagreg="s6"):
        top, done = lab("pk"), lab("pkdone")
        A(f"s_mov_b32 s42, {spin}")
        for i in range(n): A(f"s_mov_b64 s[{mbase+2*i}:{mbase+2*i+1}], -1")
        A.label(top)
        for i in range(n):
            A(f"s_mov_b64 exec, s[{mbase+2*i}:{mbase+2*i+1}]")
            issue1(i)
        A("s_mov_b64 exec, -1")
        if extra: extra[0]()
        A("s_waitcnt vmcnt(0) lgkmcnt(0)" if extra else "s_waitcnt vmcnt(0)")
        for i in range(n):
            tr = tagregs(i)
            if isinstance(tr, int):
                chk(tr, mbase + 2 * i)
                if i == 0: A(f"s_mov_b64 s[40:41], s[{mbase}:{mbase+1}]")
                else: A(f"s_or_b64 s[40:41], s[40:41], s[{mbase+2*i}:{mbase+2*i+1}]")
                continue
            A(f"v_cmp_ne_u32 s[{mbase+2*i}:{mbase+2*i+1}], {tagreg}, v{tr[0]}")
            for r in tr[1:]:
                A(f"v_cmp_ne_u32 vcc, {tagreg}, v{r}")
                A(f"s_or_b64 s[{mbase+2*i}:{mbase+2*i+1}], s[{mbase+2*i}:{mbase+2*i+1}], vcc")
            if i == 0: A(f"s_mov_b64 s[40:41], s[{mbase}:{mbase+1}]")
            else: A(f"s_or_b64 s[40:41], s[40:41], s[{mbase+2*i}:{mbase+2*i+1}]")
        A("s_cmp_eq_u64 s[40:41], 0")
        A(f"s_cbranch_scc1 {done}")
        if extra: extra[1]()
        elif sleep: A(f"s_sleep {sleep}")
        A("s_sub_u32 s42, s42, 1")
        A("s_cmp_lg_u32 s42, 0")
        A(f"s_cbranch_scc1 {top}")
        A.label(done)
    def flag_add(addr_v, off=0):
        A("s_mov_b64 exec, 1")
        A(f"ds_add_u32 v{addr_v}, v63 offset:{off}")
        A("s_mov_b64 exec, -1")
    def flag_wait(addr_v, off, target, tmp_v, sleep):
        top, done = lab("fw"), lab("fwdone")
        A(f"s_mov_b32 s42, {spin*16}")
        A.label(top)
        A(f"ds_read_b32 v{tmp_v}, v{addr_v} offset:{off}")
        A("s_waitcnt lgkmcnt(0)")
        A(f"v_readfirstlane_b32 s47, v{tmp_v}")
        A(f"s_cmp_ge_u32 s47, {target}")
        A(f"s_cbranch_scc1 {done}")
        if sleep: A(f"s_sleep {sleep}")
        A("s_sub_u32 s42, s42, 1")
        A("s_cmp_lg_u32 s42, 0")
        A(f"s_cbranch_scc1 {top}")
        A.label(done)
    def mktag():
        A("s_mul_i32 s6, s6, 0x9e3779b1")
        A("s_add_u32 s6, s6, 0x7f4a7c15")
        A("s_cmp_eq_u32 s6, 0")
        A("s_cselect_b32 s6, 2, s6")

    A.label(NAME)
    A("s_cmp_ge_u32 s2, 256")
    A("s_cbranch_scc1 L_end")
    for i in range(stamps): stamp(i)
    A("s_load_dwordx16 s[64:79], s[0:1], 0")
    A("s_load_dwordx8 s[80:87], s[0:1], 64")
    A("s_load_dwordx2 s[88:89], s[0:1], 96")
    A("v_lshrrev_b32 v1, 6, v0")
    A("v_readfirstlane_b32 s3, v1")
    A("v_and_b32 v1, 63, v0")
    A("s_lshr_b32 s4, s2, 3")
    A("s_and_b32 s5, s2, 7")
    if rot:
        A(f"s_mul_i32 s7, s5, {rot}")
        A("s_add_u32 s4, s4, s7")
        A("s_and_b32 s4, s4, 31")
    A(f"s_mov_b32 s7, {hex(F32(1.4426950408889634) if rnd else CEXP)}")
    A("v_lshlrev_b32 v2, 4, v1")
    A(f"v_mov_b32 v62, {L_FL}")
    A("v_mov_b32 v63, 1")
    if jbh:
        A("s_lshr_b32 s62, s4, 2")
        A("s_cmp_eq_u32 s62, s5")
    else:
        A(f"s_and_b32 s62, s5, {8//NBW-1}")
        A(f"s_cmp_eq_u32 s62, {JB}")
    A("s_cselect_b32 s62, 1, 0")
    A("v_mov_b32 v7, 0")
    A("v_and_b32 v6, 15, v1")
    A("v_lshl_add_u32 v6, v6, 2, v62")
    A("ds_write_b32 v6, v7")
    A("s_waitcnt lgkmcnt(0)")
    A("s_barrier")
    A("s_load_dword s6, s[88:89], 0")
    srdp(24, "ws", 0x40000000)
    A("s_cmp_ge_u32 s3, 4")
    A("s_cbranch_scc1 L_stream")

    stamp("h0a")
    A("s_lshr_b32 s33, s5, 2")
    A("s_bfe_u32 s34, s5, 0x10001")
    A("s_and_b32 s35, s5, 1")
    A("s_cmp_eq_u32 s33, 0")
    A(f"s_cselect_b32 s36, s{P['A_wq']}, s{P['B_wq']}")
    A(f"s_cselect_b32 s37, s{P['A_wq']+1}, s{P['B_wq']+1}")
    A(f"s_cselect_b32 s38, s{P['A_x']}, s{P['B_x']}")
    A(f"s_cselect_b32 s39, s{P['A_x']+1}, s{P['B_x']+1}")
    srd(12, 36, 37, 0x800000)
    srd(8, 38, 39, 8192)
    A("v_lshrrev_b32 v3, 3, v1")
    A("v_lshlrev_b32 v3, 13, v3")
    A("v_and_b32 v4, 7, v1")
    A("v_lshl_add_u32 v3, v4, 4, v3")
    A("v_and_b32 v4, 16, v1")
    A("v_lshlrev_b32 v4, 1, v4")
    A("v_xor_b32 v3, v3, v4")
    A("v_xor_b32 v4, 64, v3")
    A("s_lshl_b32 s43, s35, 9")
    A("s_lshl_b32 s44, s3, 7")
    A("s_add_u32 s43, s43, s44")
    A("s_lshl_b32 s43, s43, 13")
    A("s_lshl_b32 s44, s4, 8")
    A("s_add_u32 s43, s43, s44")
    A("s_lshl_b32 s44, s34, 7")
    A("s_add_u32 s43, s43, s44")
    A("s_lshl_b32 s44, s3, 14")
    for u in range(16):
        A("s_mov_b32 m0, s44")
        A(f"buffer_load_dwordx4 v{3+(u&1)}, s[12:15], s43 offen nt lds")
        if u < 15:
            A("s_add_u32 s43, s43, 0x10000")
            A("s_add_u32 s44, s44, 1024")
    XF = 64
    A("s_lshl_b32 s43, s3, 11")
    A("s_lshl_b32 s44, s35, 10")
    A("s_add_u32 s43, s43, s44")
    A("s_mul_i32 s44, s3, 1088")
    A(f"s_add_u32 s44, s44, {L_X}")
    A("s_mov_b32 m0, s44")
    A("buffer_load_dwordx4 v2, s[8:11], s43 offen lds")
    flag_add(62, 36)
    stamp("h0b")
    A("s_or_b32 s43, s5, s3")
    A("s_cmp_lg_u32 s43, 0")
    A("s_cbranch_scc1 L_noinit")
    A("v_lshlrev_b32 v6, 13, v1")
    A("s_lshl_b32 s43, s4, 8")
    A(f"s_add_u32 s43, s43, {hex(W_CNT)}")
    A("s_mov_b64 exec, 15")
    A("buffer_store_dword v7, v6, s[24:27], s43 offen sc1")
    A("s_mov_b64 exec, -1")
    A.label("L_noinit")
    A("s_waitcnt lgkmcnt(0)")
    A("v_and_b32 v11, 3, v1")
    A("v_mul_u32_u24 v11, 1088, v11")
    A("v_lshrrev_b32 v5, 4, v1")
    A("v_lshl_add_u32 v11, v5, 4, v11")
    A(f"v_add_u32 v11, {L_X}, v11")
    srdp(16, "B_k", 0x2000000)
    srdp(20, "B_v", 0x2000000)
    srdp(28, "out", 16384)
    if woh:
        srdp(8, "A_wo", 0x800000)
        srdp(12, "B_wo", 0x800000)
    A("v_lshrrev_b32 v5, 4, v1")
    A("v_lshlrev_b32 v5, 3, v5")
    A("v_bfe_u32 v6, v1, 2, 2")
    A("v_add_u32 v5, v5, v6")
    A("v_and_b32 v6, 3, v1")
    A("v_lshlrev_b32 v6, 3, v6")
    A("v_lshl_add_u32 v8, v5, 7, v6")
    A("v_bfe_u32 v12, v1, 3, 2")
    A("v_xor_b32 v12, s3, v12")
    A("v_lshl_add_u32 v8, v12, 5, v8")
    A(f"v_add_u32 v9, {L_WO}, v8")
    mktag()
    A("v_and_b32 v4, 3, v1")
    A("v_lshlrev_b32 v4, 10, v4")
    A("v_lshrrev_b32 v5, 4, v1")
    A("v_lshl_add_u32 v4, v5, 5, v4")
    A("v_and_b32 v5, 4, v1")
    A("v_lshl_add_u32 v4, v5, 2, v4")
    A("s_lshl_b32 s43, s4, 1")
    A("s_add_u32 s43, s43, s33")
    A("s_lshl_b32 s43, s43, 1")
    A("s_add_u32 s43, s43, s35")
    A("s_lshl_b32 s43, s43, 12")
    A("s_lshl_b32 s44, s34, 9")
    A("s_add_u32 s43, s43, s44")
    A("s_lshl_b32 s44, s3, 7")
    A("s_add_u32 s43, s43, s44")
    A(f"s_add_u32 s43, s43, {hex(W_QP)}")
    for r in (21, 23): A(f"v_mov_b32 v{r}, s6")
    A("s_mov_b32 s56, 0x00ff00ff")
    A("s_mov_b32 s57, 0x00ff00ff")
    A("s_waitcnt vmcnt(0)")
    flag_add(62, 0)
    flag_wait(62, 0, 4, 10, 0)
    stamp("h1")
    WF = 128
    for ks in range(16):
        A(f"ds_read_b64_tr_b16 v[{WF+4*ks}:{WF+4*ks+1}], v8 offset:{ks*4096}")
        A(f"ds_read_b64_tr_b16 v[{WF+4*ks+2}:{WF+4*ks+3}], v8 offset:{ks*4096+512}")
        A(f"ds_read_b128 v[{XF+4*ks}:{XF+4*ks+3}], v11 offset:{ks*64}")
    for ks in range(16):
        A(f"s_waitcnt lgkmcnt({min(15, 3*(15-ks))})")
        d = 12 + 4 * (ks & 1)
        c = "0" if ks < 2 else f"v[{d}:{d+3}]"
        A(f"v_mfma_f32_16x16x32_bf16 v[{d}:{d+3}], v[{WF+4*ks}:{WF+4*ks+3}], v[{XF+4*ks}:{XF+4*ks+3}], {c}")
    for r in range(4): A(f"v_add_f32 v{20+2*r}, v{12+r}, v{16+r}")
    A("v_mov_b32_dpp v20, v24 row_shr:4 row_mask:0xf bank_mask:0x2")
    A("v_mov_b32_dpp v22, v26 row_shr:4 row_mask:0xf bank_mask:0x2")
    A("s_mov_b64 exec, s[56:57]")
    A(f"buffer_store_dwordx4 v[20:23], v4, s[24:27], s43 offen {qst}")
    A("s_mov_b64 exec, -1")
    stamp("h2")
    A("s_lshl_b32 s43, s4, 14")
    A("s_lshl_b32 s44, s3, 10")
    A("s_add_u32 s43, s43, s44")
    A(f"s_add_u32 s43, s43, {hex(W_QP)}")
    A("s_add_u32 s44, s43, 4096")
    A("s_lshl_b32 s45, s3, 8")
    A(f"s_add_u32 s45, s45, {L_QA}")
    A("v_lshl_add_u32 v10, v1, 2, s45")
    poll_masked(2, lambda i: A(f"buffer_load_dwordx4 v[{28+4*i}:{31+4*i}], v2, s[24:27], s{43+i} offen {qld}"),
                lambda i: [29 + 4 * i, 31 + 4 * i], qsl)
    A("v_add_f32 v28, v28, v32")
    A("v_add_f32 v30, v30, v34")
    A("v_cvt_pk_bf16_f32 v28, v28, v30")
    A("ds_write_b32 v10, v28")
    A("s_waitcnt lgkmcnt(0)")
    A("s_barrier")
    stamp("h3")
    if 1 in ab: A("s_branch L_hend")
    A("s_cmp_eq_u32 s62, 0")
    A("s_cbranch_scc1 L_noB")

    lgNP = {2: 1, 4: 2}[NP]
    if NBW == 1: A("s_mov_b32 s58, s4")
    else:
        A("s_lshl_b32 s58, s4, 1")
        A("s_lshr_b32 s59, s5, 2")
        A("s_add_u32 s58, s58, s59")
    A(f"s_lshr_b32 s59, s58, {lgNP}")
    A(f"s_and_b32 s58, s58, {NP-1}")
    A("s_lshl_b32 s60, s59, 21")
    A(f"s_mul_i32 s61, s58, {2048//NP*256}")
    A("s_add_u32 s60, s60, s61")
    A("s_lshl_b32 s61, s3, 12")
    A("s_add_u32 s60, s60, s61")
    A(f"s_add_u32 s60, s60, {6144*256}")
    A("s_and_b32 s48, s59, 3")
    A("s_lshl_b32 s48, s48, 3")
    A("s_lshl_b32 s49, s3, 1")
    A("s_add_u32 s48, s48, s49")
    A("s_lshl_b32 s49, s48, 14")
    A("s_lshr_b32 s61, s59, 2")
    A("s_lshl_b32 s50, s61, 10")
    A("s_add_u32 s49, s49, s50")
    A(f"s_add_u32 s49, s49, {hex(W_QP+8192)}")
    A("s_add_u32 s50, s49, 4096")
    A("s_add_u32 s51, s49, 16384")
    A("s_add_u32 s52, s49, 20480")
    poll_masked(4, lambda i: A(f"buffer_load_dwordx4 v[{28+4*i}:{31+4*i}], v2, s[24:27], s{49+i} offen {qld}"),
                lambda i: [29 + 4 * i, 31 + 4 * i], 16)
    KB = 64
    def bload(par):
        for u in range(4):
            A(f"buffer_load_dwordx4 v[{KB+32*par+4*u}:{KB+32*par+4*u+3}], v2, s[16:19], s60 offen offset:{u*1024} nt")
        for u in range(4):
            A(f"buffer_load_dwordx4 v[{KB+32*par+16+4*u}:{KB+32*par+16+4*u+3}], v2, s[20:23], s60 offen offset:{u*1024} nt")
        A("s_add_u32 s60, s60, 0x4000")
    bload(0); bload(1)
    A("v_add_f32 v28, v28, v32")
    A("v_add_f32 v30, v30, v34")
    A("v_add_f32 v36, v36, v40")
    A("v_add_f32 v38, v38, v42")
    A("v_cvt_pk_bf16_f32 v28, v28, v30")
    A("v_cvt_pk_bf16_f32 v36, v36, v38")
    A("s_lshl_b32 s43, s3, 9")
    A(f"s_add_u32 s43, s43, {L_QB}")
    A("v_lshl_add_u32 v10, v1, 2, s43")
    A("ds_write_b32 v10, v28")
    A("ds_write_b32 v10, v36 offset:256")
    A("s_waitcnt lgkmcnt(0)")
    flag_add(62, 4)
    flag_wait(62, 4, 4, 10, 1)
    A("v_and_b32 v11, 0xf0, v2")
    A(f"v_add_u32 v11, {L_QB}, v11")
    QB = 128
    for hh in range(8):
        A(f"ds_read_b128 v[{QB+4*hh}:{QB+4*hh+3}], v11 offset:{hh*256}")
    SB = 160
    def bs(hh): return dict(M=SB + 10 * hh, LS=SB + 10 * hh + 1, ACC=SB + 10 * hh + 2)
    for hh in range(8):
        st = bs(hh); init_state(st["M"], st["LS"], st["ACC"])
    A(f"s_mov_b32 s45, {BT//2}")
    A("s_waitcnt lgkmcnt(0)")
    A.label("L_battn")
    for par in range(2):
        A("s_waitcnt vmcnt(8)")
        for hh in range(8):
            st = bs(hh)
            o = 20 * (hh & 1)
            S_, AL_, NM_, PL_, PH_ = 12 + o, 16 + o, 17 + o, 20 + o, 24 + o
            scores(KB + 32 * par, QB + 4 * hh, S_, 4)
            softmax(S_, 4, st["M"], st["LS"], st["ACC"], AL_, NM_, PL_, PH_)
            pv(KB + 32 * par + 16, 4, st["ACC"], PL_, PH_)
        if par == 0:
            A("s_cmp_eq_u32 s45, 1")
            A("s_cselect_b32 s60, 0x2000000, s60")
        bload(par)
    A("s_sub_u32 s45, s45, 1")
    A("s_cmp_lg_u32 s45, 0")
    A("s_cbranch_scc1 L_battn")
    A("v_and_b32 v4, 15, v1")
    A("v_lshlrev_b32 v4, 5, v4")
    A("v_lshrrev_b32 v5, 4, v1")
    A("v_lshl_add_u32 v4, v5, 3, v4")
    A("s_lshl_b32 s43, s3, 12")
    A("v_add_u32 v4, s43, v4")
    for hh in range(8):
        st = bs(hh)
        o = 8 * (hh & 1)
        finalize(st["M"], st["LS"], st["ACC"], 12 + o, 17 + o, 16 + o)
        A(f"ds_write_b64 v4, v[{16+o}:{17+o}] offset:{hh*512}")
    A("s_waitcnt lgkmcnt(0)")
    flag_add(62, 12)
    flag_wait(62, 12, 4, 10, 1)
    A("s_waitcnt vmcnt(0)")
    A("s_lshl_b32 s43, s3, 10")
    A("v_lshl_add_u32 v4, v1, 3, s43")
    A("s_lshl_b32 s43, s48, 2")
    A("s_add_u32 s43, s43, s61")
    A(f"s_lshl_b32 s43, s43, {lgNP}")
    A("s_add_u32 s43, s43, s58")
    A("s_lshl_b32 s43, s43, 9")
    A(f"s_add_u32 s43, s43, {hex(W_PB)}")
    A(f"s_add_u32 s44, s43, {4*NP*512}")
    G = 64
    for k in range(2):
        for w_ in range(4):
            A(f"ds_read_b64 v[{G+16*k+4*w_+2}:{G+16*k+4*w_+3}], v4 offset:{w_*4096+k*512}")
    A("v_lshlrev_b32 v5, 3, v1")
    A("s_mov_b32 s46, 0x55555555")
    A("s_mov_b32 s47, 0x55555555")
    A("s_waitcnt lgkmcnt(0)")
    for k in range(2):
        o = 12 + 4 * k
        for w_ in range(4): A(f"v_mov_b32 v{G+16*k+4*w_}, v{G+16*k+4*w_+3}")
        combine(G + 16 * k, 4, o, o + 2)
        A(f"v_mov_b32_dpp v{o+1}, v{o} quad_perm:[1,1,3,3] row_mask:0xf bank_mask:0xf")
        A(f"v_bitop3_b32 v{o+3}, v{o}, v{o+1}, v{o+2} bitop3:0x96")
        A(f"v_xor_b32 v{o+3}, s6, v{o+3}")
        A("s_mov_b64 exec, s[46:47]")
        A(f"buffer_store_dwordx4 v[{o}:{o+3}], v5, s[24:27], s{43+k} offen {bst}")
        A("s_mov_b64 exec, -1")
    stamp("h4")
    A.label("L_noB")
    if 2 in ab: A("s_branch L_hend")

    FR = [128, 160]
    flag_wait(62, 8, 4, 56, 8)
    for T_ in range(2):
        for ks in range(8):
            r = FR[T_] + ks * 4
            off = T_ * 32768 + ks * 4096
            A(f"ds_read_b64_tr_b16 v[{r}:{r+1}], v9 offset:{off}")
            A(f"ds_read_b64_tr_b16 v[{r+2}:{r+3}], v9 offset:{off+512}")
    G = 64
    A("s_mul_i32 s43, s3, 576")
    A(f"s_add_u32 s43, s43, {L_O}")
    A("v_and_b32 v60, 31, v1")
    A("v_lshl_add_u32 v60, v60, 3, s43")
    A("v_lshrrev_b32 v7, 5, v1")
    A("v_lshl_add_u32 v60, v7, 2, v60")
    A("v_and_b32 v6, 3, v1")
    A("v_mul_u32_u24 v6, 576, v6")
    A("v_lshrrev_b32 v7, 4, v1")
    A("v_lshl_add_u32 v6, v7, 4, v6")
    A(f"v_add_u32 v6, {L_O}, v6")
    A("v_and_b32 v8, 3, v1")
    A("v_lshlrev_b32 v8, 7, v8")
    A("v_lshl_add_u32 v8, v7, 4, v8")
    A("v_and_b32 v7, 4, v1")
    A("v_lshl_add_u32 v8, v7, 4, v8")
    A("s_lshl_b32 s52, s4, 3")
    A("s_add_u32 s52, s52, s5")
    A("s_lshl_b32 s61, s52, 7")
    A(f"s_add_u32 s61, s61, {hex(W_QP)}")
    A("s_add_u32 s63, s61, 0x40000")
    A("s_and_b32 s60, s52, 3")
    A("s_lshl_b32 s60, s60, 12")
    A("s_lshr_b32 s44, s52, 2")
    A("s_lshl_b32 s44, s44, 5")
    A("s_add_u32 s60, s60, s44")
    A("s_lshl_b32 s52, s52, 11")
    A("s_lshl_b32 s53, s3, 9")
    A("s_add_u32 s52, s52, s53")
    A(f"s_add_u32 s52, s52, {hex(W_QP)}")
    A("s_xor_b32 s53, s6, 0x5bd1e994")
    for r in (21, 23): A(f"v_mov_b32 v{r}, s53")
    A("v_and_b32 v11, 3, v1")
    A("v_lshlrev_b32 v11, 3, v11")
    A("v_lshl_add_u32 v11, v7, 9, v11")
    A("v_lshrrev_b32 v5, 3, v1")
    A("v_lshlrev_b32 v5, 15, v5")
    A("v_and_b32 v4, 0x70, v2")
    A("v_add_u32 v5, v5, v4")
    A("s_lshl_b32 s43, s3, 2")
    A("v_add_u32 v10, s43, v62")
    A("s_andn2_b32 s45, s4, 1")
    A("s_lshl_b32 s45, s45, 2")
    A("s_add_u32 s45, s45, s3")
    A("s_lshl_b32 s46, s45, 10")
    A(f"s_add_u32 s46, s46, {hex(W_PB)}")
    A("s_add_u32 s48, s46, 4096")
    A("s_lshl_b32 s80, s45, 12")
    A(f"s_add_u32 s80, s80, {hex(W_PA)}")
    A("s_add_u32 s81, s80, 0x4000")
    def gemv(T_, D):
        OFR = 96
        for ks in range(8):
            A(f"ds_read_b128 v[{OFR+4*ks}:{OFR+4*ks+3}], v6 offset:{T_*2304+ks*64}")
        for ks in range(8):
            A(f"s_waitcnt lgkmcnt({7-ks})")
            d = D + 4 * (ks & 1)
            r = FR[T_] + ks * 4
            c = "0" if ks < 2 else f"v[{d}:{d+3}]"
            A(f"v_mfma_f32_16x16x32_bf16 v[{d}:{d+3}], v[{r}:{r+3}], v[{OFR+4*ks}:{OFR+4*ks+3}], {c}")
        for r in range(4): A(f"v_add_f32 v{D+r}, v{D+r}, v{D+4+r}")
    flag_wait(10, 16, 1, 56, esl)
    stamp("h5")
    poll_masked(2, lambda i: A(f"buffer_load_dwordx4 v[{G+4*i}:{G+4*i+3}], v2, s[24:27], s{46+2*i} offen {bld}"),
                lambda i: G + 4 * i, 16)
    for k in range(2): combine2(G + 4 * k, 1, 60, 2304 + 256 * k)
    A("s_waitcnt lgkmcnt(0)")
    flag_add(62, 32)
    flag_wait(62, 32, 4, 56, 1)
    gemv(1, 12)
    A("v_cvt_pk_bf16_f32 v24, v12, v13")
    A("v_cvt_pk_bf16_f32 v26, v14, v15")
    flag_wait(10, 48, 2, 56, 0)
    stamp("h6")
    top, done, nis, np0, np1, nc0, nc1 = (lab(x) for x in ("pa", "padone", "nis", "np0", "np1", "nc0", "nc1"))
    A(f"s_mov_b32 s42, {spin}")
    for i in range(8): A(f"s_mov_b64 s[{64+2*i}:{65+2*i}], -1")
    A("s_mov_b32 s44, 0")
    A("s_mov_b32 s45, 0")
    A.label(top)
    A("s_cmp_eq_u32 s44, 3")
    A(f"s_cbranch_scc1 {nis}")
    for i in range(8):
        A(f"s_mov_b64 exec, s[{64+2*i}:{65+2*i}]")
        A(f"buffer_load_dwordx4 v[{G+4*i}:{G+4*i+3}], v2, s[24:27], s{80+i//4} offen offset:{(i%4)*1024} {ald}")
    A("s_mov_b64 exec, -1")
    A.label(nis)
    for k, np_ in ((0, np0), (1, np1)):
        A(f"s_bitcmp1_b32 s45, {k}")
        A(f"s_cbranch_scc0 {np_}")
        combine2(G + 16 * k, 4, 60, 256 * k)
        A.label(np_)
    A("s_mov_b32 s45, 0")
    A("s_cmp_eq_u32 s44, 3")
    A(f"s_cbranch_scc1 {done}")
    A("s_waitcnt vmcnt(0)")
    for k, nc in ((0, nc0), (1, nc1)):
        A(f"s_bitcmp1_b32 s44, {k}")
        A(f"s_cbranch_scc1 {nc}")
        for i in range(4 * k, 4 * k + 4): chk(G + 4 * i, 64 + 2 * i)
        b0 = 64 + 8 * k
        A(f"s_or_b64 s[40:41], s[{b0}:{b0+1}], s[{b0+2}:{b0+3}]")
        A(f"s_or_b64 vcc, s[{b0+4}:{b0+5}], s[{b0+6}:{b0+7}]")
        A("s_or_b64 s[40:41], s[40:41], vcc")
        A(f"s_cselect_b32 s47, 0, {1<<k}")
        A("s_or_b32 s44, s44, s47")
        A("s_or_b32 s45, s45, s47")
        A.label(nc)
    A("s_sub_u32 s42, s42, 1")
    A("s_cmp_lg_u32 s42, 0")
    A(f"s_cbranch_scc1 {top}")
    A.label(done)
    stamp("h7")
    A("s_waitcnt lgkmcnt(0)")
    A("s_barrier")
    gemv(0, 12)
    A("v_cvt_pk_bf16_f32 v20, v12, v13")
    A("v_cvt_pk_bf16_f32 v22, v14, v15")
    A("v_mov_b32_dpp v20, v24 row_shr:4 row_mask:0xf bank_mask:0x2")
    A("v_mov_b32_dpp v22, v26 row_shr:4 row_mask:0xf bank_mask:0x2")
    A("s_mov_b64 exec, s[56:57]")
    A(f"buffer_store_dwordx4 v[20:23], v8, s[24:27], s52 offen {yst}")
    A("s_mov_b64 exec, -1")
    stamp("h8")
    A("s_cmp_lg_u32 s3, 0")
    A("s_cbranch_scc1 L_hend")
    poll_masked(2, lambda i: A(f"buffer_load_dwordx4 v[{G+4*i}:{G+4*i+3}], v5, s[24:27], s{61+2*i} offen {yld}"),
                lambda i: [G + 4 * i + 1, G + 4 * i + 3], ysl, tagreg="s53")
    stamp("h9")
    U = G + 16
    for i in range(2):
        A(f"v_lshlrev_b32 v{U+4*i}, 16, v{G+4*i}")
        A(f"v_and_b32 v{U+4*i+1}, 0xffff0000, v{G+4*i}")
        A(f"v_lshlrev_b32 v{U+4*i+2}, 16, v{G+4*i+2}")
        A(f"v_and_b32 v{U+4*i+3}, 0xffff0000, v{G+4*i+2}")
    for k in range(4):
        A(f"v_add_f32 v{U+k}, v{U+k}, v{U+4+k}")
    A(f"v_permlane32_swap_b32 v{U}, v{U+2}")
    A(f"v_permlane32_swap_b32 v{U+1}, v{U+3}")
    A(f"v_add_f32 v{U}, v{U}, v{U+2}")
    A(f"v_add_f32 v{U+1}, v{U+1}, v{U+3}")
    A(f"v_add_f32_dpp v{U}, v{U}, v{U} row_ror:8 row_mask:0xf bank_mask:0xf")
    A(f"v_add_f32_dpp v{U+1}, v{U+1}, v{U+1} row_ror:8 row_mask:0xf bank_mask:0xf")
    A(f"v_mov_b32 v{U+2}, v{U}")
    A(f"v_mov_b32 v{U+3}, v{U+1}")
    A(f"v_permlane16_swap_b32 v{U}, v{U+2}")
    A(f"v_permlane16_swap_b32 v{U+1}, v{U+3}")
    A(f"v_add_f32 v{U}, v{U}, v{U+2}")
    A(f"v_add_f32 v{U+1}, v{U+1}, v{U+3}")
    A(f"v_cvt_pk_bf16_f32 v{U+4}, v{U}, v{U+1}")
    A(f"v_mov_b32 v{U+5}, v{U+4}")
    A(f"v_permlane32_swap_b32 v{U+4}, v{U+5}")
    A("s_mov_b64 exec, 0xff")
    A(f"buffer_store_dwordx2 v[{U+4}:{U+5}], v11, s[28:31], s60 offen {ost}")
    A("s_mov_b64 exec, -1")
    A("s_cmp_lg_u32 s2, 0")
    A("s_cbranch_scc1 L_hend")
    A("v_mov_b32 v3, 0")
    A("v_mov_b32 v4, s6")
    A("s_mov_b64 exec, 1")
    A(f"buffer_store_dword v4, v3, s[24:27], 0 offen {ost}")
    A("s_mov_b64 exec, -1")
    A.label("L_hend")
    stamp_store(240)
    A("s_endpgm")

    A.label("L_stream")
    srdp(8, "A_k", 0x10000000)
    A("s_sub_u32 s33, s3, 4")
    A("s_lshl_b32 s38, s33, 5")
    A("s_add_u32 s38, s38, s4")
    A("s_lshl_b32 s39, s38, 8")
    A("s_lshl_b32 s38, s38, 21")
    A(f"s_mul_i32 s28, s33, {rc}")
    A("s_add_u32 s29, s28, s5")
    A("s_and_b32 s29, s29, 7")
    A("s_lshl_b32 s29, s29, 14")
    A("s_add_u32 s29, s29, s38")
    A("s_mov_b32 s30, s29")
    for q in range(4): A(f"v_add_u32 v{48+q}, {q*4096}, v2")
    R0 = 64
    def load(q, so, base=None):
        for j in range(4):
            r = (base or R0) + 16 * q + 4 * j
            A(f"buffer_load_dwordx4 v[{r}:{r+3}], v{48+q}, s[8:11], {so} offen offset:{j*1024} nt")
    if pt:
        srdp(76, "A_v", 0x10000000)
        srdp(16, "A_wo", 0x800000)
        srdp(20, "B_wo", 0x800000)
        A("s_lshl_b32 s34, s4, 18")
        A("s_mov_b64 exec, 1")
        A("buffer_load_dword v52, v2, s[8:11], s30 offen nt")
        if pt >= 2:
            A("buffer_load_dword v53, v2, s[16:19], s34 offen nt")
            A("buffer_load_dword v54, v2, s[20:23], s34 offen nt")
        if pt >= 3:
            A("buffer_load_dword v55, v2, s[76:79], s30 offen nt")
        A("s_mov_b64 exec, -1")
    for q in range(4):
        if wofirst: break
        if q == sgate - 1 + 0 and sgate: flag_wait(62, 36, 4, 10, 0)
        load(q, "s30")
    for x in range(xpre):
        A(f"s_add_u32 s30, s30, {NWP*CSB}")
        for q in range(4): load(q, "s30", 128 + 64 * x)
    A("s_mov_b32 s12, s8")
    A("s_mov_b32 s13, s9")
    A(f"s_mov_b32 s14, s{P['A_v']}")
    A(f"s_and_b32 s15, s{P['A_v']+1}, 0xffff")
    srdp(16, "A_wo", 0x800000)
    srdp(20, "B_wo", 0x800000)
    A(f"s_add_u32 s39, s39, {hex(W_CNT)}")
    A(f"s_add_u32 s52, s{P['ws']}, s39")
    A(f"s_addc_u32 s53, s{P['ws']+1}, 0")
    if jbh:
        A("s_lshr_b32 s37, s4, 2")
        A("s_add_u32 s28, s28, s37")
    else:
        A(f"s_add_u32 s28, s28, {JB}")
    A(f"s_and_b32 s28, s28, {8//NBW-1}")
    A(f"s_add_u32 s28, s28, {8*(ns-ksk)}")
    A("s_mov_b32 s57, s29")
    A("v_lshrrev_b32 v3, 3, v1")
    A("v_lshlrev_b32 v3, 11, v3")
    A("v_and_b32 v4, 0x70, v2")
    A("v_add_u32 v3, v3, v4")
    A("v_and_b32 v4, 16, v1")
    A("v_lshlrev_b32 v4, 1, v4")
    A("v_xor_b32 v3, v3, v4")
    A("v_xor_b32 v44, 64, v3")
    A("v_and_b32 v4, 0xf0, v2")
    A("s_andn2_b32 s34, s4, 1")
    A("s_lshl_b32 s34, s34, 18")
    A("s_lshl_b32 s35, s33, 17")
    A("s_add_u32 s34, s34, s35")
    A("s_and_b32 s35, s4, 1")
    A("s_lshl_b32 s35, s35, 3")
    A("s_add_u32 s35, s35, s5")
    A("s_lshl_b32 s35, s35, 7")
    A("s_add_u32 s34, s34, s35")
    A("s_lshl_b32 s35, s33, 13")
    A(f"s_add_u32 s35, s35, {L_WO}")
    flag_wait(62, 36, 4, 10, 0)
    for T_ in range(2):
        for u in range(8):
            A(f"s_add_u32 s37, s35, {T_*32768+u*1024}")
            A("s_mov_b32 m0, s37")
            A(f"s_add_u32 s39, s34, {u*16384}")
            A(f"buffer_load_dwordx4 v{44 if u&1 else 3}, s[{16+4*T_}:{19+4*T_}], s39 offen nt lds")
    if wofirst:
        for q in range(4): load(q, "s30")
    Q, ACC, M, LS, C, AL, NM, S, T, PL, PH = 8, 12, 20, 21, 22, 23, 24, 28, 32, 34, 35
    init_state(M, LS, ACC)
    mktag()
    A("s_lshl_b32 s43, s33, 8")
    A(f"s_add_u32 s43, s43, {L_QA}")
    A("v_add_u32 v4, s43, v4")
    A(f"v_mov_b32 v7, {L_FL}")
    A("s_lshl_b32 s43, s33, 2")
    A("v_add_u32 v62, s43, v62")
    A("v_and_b32 v5, 15, v1")
    A("v_lshlrev_b32 v5, 5, v5")
    A("v_lshrrev_b32 v6, 5, v1")
    A("v_lshl_add_u32 v5, v6, 4, v5")
    A("s_lshl_b32 s43, s33, 12")
    A(f"s_add_u32 s43, s43, {L_FIFO}")
    A("v_lshl_add_u32 v46, v1, 2, s43")
    A("v_mov_b32 v47, v46")
    A("s_lshl_b32 s43, s4, 2")
    A("s_add_u32 s43, s43, s33")
    A("s_lshl_b32 s43, s43, 3")
    A("s_add_u32 s43, s43, s5")
    A("s_lshl_b32 s43, s43, 9")
    A(f"s_add_u32 s43, s43, {hex(W_PA)}")
    A("s_mov_b32 s72, 0xffff")
    A("s_mov_b32 s73, 0xffff")
    for q in range(4):
        A(f"s_mov_b32 s{64+2*q}, {hex(0x11111111 << q)}")
        A(f"s_mov_b32 s{65+2*q}, {hex(0x11111111 << q)}")
    A("s_cmp_eq_u32 s62, 0")
    A(f"s_cselect_b32 s58, {ns-1}, {ns-1-ksk}")
    A("s_mov_b32 s59, s58")
    A("s_mov_b32 s56, 0")
    A("s_mov_b32 s63, 0x10000000")
    A("s_mov_b32 s76, s8")
    A("s_mov_b32 s77, s9")
    A("s_mov_b32 s78, 0x10000000")
    A("s_mov_b32 s79, 0x20000")
    stamp("s1")
    A("s_barrier")
    stamp("s2")
    if sprio: A(f"s_setprio {sprio}")
    A(f"ds_read_b128 v[{Q}:{Q+3}], v4")
    def claim():
        A("s_mov_b32 s50, 1")
        A("s_atomic_add s50, s[52:53], 0 glc")
    def issue(q):
        sd, so = ("s[8:11]", "s30") if q < 2 else ("s[76:79]", "s31")
        for j in range(4):
            r = R0 + 16 * q + 4 * j
            A(f"buffer_load_dwordx4 v[{r}:{r+3}], v{48+q}, {sd}, {so} offen offset:{j*1024} nt")
    def setbase(a, b):
        A(f"s_mov_b32 s8, s{12+2*a}"); A(f"s_mov_b32 s9, s{13+2*a}")
        A(f"s_mov_b32 s76, s{12+2*b}"); A(f"s_mov_b32 s77, s{13+2*b}")
    def kq(q, ex):
        A(f"s_waitcnt vmcnt({12+ex})")
        K = R0 + 16 * q
        for r in range(4):
            for j in range(4):
                c = "0" if r == 0 else f"v{S+j}"
                A(f"v_dot2_f32_bf16 v{S+j}, v{K+4*j+r}, v{Q+r}, {c}")
        issue(q)
        A(f"v_add_f32_dpp v{T}, v{S}, v{S} row_ror:8 row_mask:0xf bank_mask:0x3")
        A(f"v_add_f32_dpp v{T+1}, v{S+1}, v{S+1} row_ror:8 row_mask:0xf bank_mask:0x3")
        A(f"v_add_f32_dpp v{T}, v{S+2}, v{S+2} row_ror:8 row_mask:0xf bank_mask:0xc")
        A(f"v_add_f32_dpp v{T+1}, v{S+3}, v{S+3} row_ror:8 row_mask:0xf bank_mask:0xc")
        A(f"v_add_f32_dpp v{S}, v{T}, v{T} row_shl:4 row_mask:0xf bank_mask:0x5")
        A(f"v_add_f32_dpp v{S}, v{T+1}, v{T+1} row_shr:4 row_mask:0xf bank_mask:0xa")
        A(f"v_add_f32_dpp v{S}, v{S}, v{S} quad_perm:[2,3,0,1] row_mask:0xf bank_mask:0xf")
        A(f"v_add_f32_dpp v{S}, v{S}, v{S} quad_perm:[1,0,3,2] row_mask:0xf bank_mask:0xf")
        A(f"v_cndmask_b32 v{C}, v{C}, v{S}, s[{64+2*q}:{65+2*q}]")
    def smx():
        if rnd: round2([C])
        A(f"v_max_f32_dpp v{AL}, v{C}, v{C} row_ror:8 row_mask:0xf bank_mask:0xf")
        for st in (4, 2, 1):
            A(f"v_max_f32_dpp v{AL}, v{AL}, v{AL} row_ror:{st} row_mask:0xf bank_mask:0xf")
        A(f"v_max_f32 v{AL}, v{AL}, v{M}")
        A(f"v_sub_f32 v{NM}, v{M}, v{AL}")
        A(f"v_mov_b32 v{M}, v{AL}")
        A(f"v_sub_f32 v{C}, v{C}, v{AL}")
        A(f"v_mul_f32 v{AL}, s7, v{NM}")
        A(f"v_mul_f32 v{C}, s7, v{C}")
        A(f"v_exp_f32 v{AL}, v{AL}")
        A(f"v_exp_f32 v{C}, v{C}")
        for e in range(8): A(f"v_mul_f32 v{ACC+e}, v{ACC+e}, v{AL}")
        A(f"v_cvt_pk_bf16_f32 v{PL}, v{C}, 0")
        A(f"v_cvt_pk_bf16_f32 v{PH}, 0, v{C}")
        A(f"v_fma_f32 v{LS}, v{LS}, v{AL}, v{C}")
    def vq(q, ln):
        A("s_waitcnt vmcnt(12)")
        V = R0 + 16 * q
        for j in range(4):
            for r in range(4):
                A(f"v_dot2c_f32_bf16_dpp v{ACC+2*r}, v{PL}, v{V+4*j+r} row_newbcast:{4*j+ln} row_mask:0xf bank_mask:0xf")
                A(f"v_dot2c_f32_bf16_dpp v{ACC+2*r+1}, v{PH}, v{V+4*j+r} row_newbcast:{4*j+ln} row_mask:0xf bank_mask:0xf")
        issue(q)
    def nextdyn(after):
        exh, two, fl = lab("exh"), lab("two"), lab("fl")
        A("s_waitcnt lgkmcnt(0)")
        A("s_mov_b32 s56, 1")
        A(f"s_cmp_ge_u32 s50, {NDYN}")
        A(f"s_cbranch_scc1 {exh}")
        A("s_mov_b32 s51, s50")
        if n2:
            A(f"s_cmp_ge_u32 s50, {N4}")
            A(f"s_cbranch_scc1 {two}")
        A(f"s_add_u32 s36, s50, {ns*NWP-NSK}")
        A("s_lshl_b32 s37, s50, 3")
        A("s_add_u32 s37, s37, s28")
        A(f"s_cmp_lt_u32 s50, {NSK}")
        A("s_cselect_b32 s36, s37, s36")
        A("s_lshl_b32 s30, s36, 14")
        A("s_add_u32 s30, s30, s38")
        A("s_mov_b32 s31, s30")
        setbase(0, 0)
        A("s_mov_b32 s55, 0")
        if n2:
            A(f"s_branch {fl}")
            A.label(two)
            A("s_lshl_b32 s30, s50, 13")
            A(f"s_add_u32 s30, s30, {((T2 - 2*N4) * 4096) & 0xffffffff}")
            A("s_add_u32 s30, s30, s38")
            A("s_sub_u32 s31, s30, 8192")
            setbase(0, 1)
            A("s_mov_b32 s55, 3")
            claim()
            A.label(fl)
        A(f"s_cmp_lt_u32 s51, {max(0, NDYN-wox)}")
        A(f"s_cbranch_scc1 {after}")
        flag_add(62, 16)
        A(f"s_branch {after}")
        A.label(exh)
        A("s_mov_b32 s30, s63")
        A("s_mov_b32 s31, s63")
        A("s_mov_b32 s55, 2")
        flag_add(62, 16)
        flag_add(62, 48)
        stamp("s3")
    def adv():
        A(f"s_add_u32 s29, s29, {NWP*CSB}")
        A("s_mov_b32 s30, s29")
        A("s_mov_b32 s31, s29")
    CN = 25
    n0 = 16 - L
    assert 2 <= L <= 8
    def ld(n):
        q, j = n >> 2, n & 3
        sd, so = ("s[8:11]", "s30") if q < 2 else ("s[76:79]", "s31")
        A(f"buffer_load_dwordx4 v[{R0+4*n}:{R0+4*n+3}], v{48+q}, {sd}, {so} offen offset:{j*1024} nt")
    def kred(q):
        A(f"v_add_f32_dpp v{T}, v{S}, v{S} row_ror:8 row_mask:0xf bank_mask:0x3")
        A(f"v_add_f32_dpp v{T+1}, v{S+1}, v{S+1} row_ror:8 row_mask:0xf bank_mask:0x3")
        A(f"v_add_f32_dpp v{T}, v{S+2}, v{S+2} row_ror:8 row_mask:0xf bank_mask:0xc")
        A(f"v_add_f32_dpp v{T+1}, v{S+3}, v{S+3} row_ror:8 row_mask:0xf bank_mask:0xc")
        A(f"v_add_f32_dpp v{S}, v{T}, v{T} row_shl:4 row_mask:0xf bank_mask:0x5")
        A(f"v_add_f32_dpp v{S}, v{T+1}, v{T+1} row_shr:4 row_mask:0xf bank_mask:0xa")
        A(f"v_add_f32_dpp v{S}, v{S}, v{S} quad_perm:[2,3,0,1] row_mask:0xf bank_mask:0xf")
        A(f"v_add_f32_dpp v{S}, v{S}, v{S} quad_perm:[1,0,3,2] row_mask:0xf bank_mask:0xf")
        A(f"v_cndmask_b32 v{C}, v{C}, v{S}, s[{64+2*q}:{65+2*q}]")
    def k1(n):
        j = n & 3
        for r in range(4):
            c = "0" if r == 0 else f"v{S+j}"
            A(f"v_dot2_f32_bf16 v{S+j}, v{R0+4*n+r}, v{Q+r}, {c}")
        if j == 3: kred(n >> 2)
    def v1(n):
        q, j = n >> 2, n & 3
        for r in range(4):
            A(f"v_dot2c_f32_bf16_dpp v{ACC+2*r}, v{PL}, v{R0+4*n+r} row_newbcast:{4*j+q} row_mask:0xf bank_mask:0xf")
            A(f"v_dot2c_f32_bf16_dpp v{ACC+2*r+1}, v{PH}, v{R0+4*n+r} row_newbcast:{4*j+q} row_mask:0xf bank_mask:0xf")
    def fifo_pre():
        A(f"ds_read_b32 v{CN}, v47")
        A("v_add_u32 v47, 256, v47")
        A("s_waitcnt lgkmcnt(0)")
    def decK():
        dyn, last, k2, go = lab("dk"), lab("lk"), lab("k2"), lab("gk")
        A("s_cmp_lg_u32 s56, 0")
        A(f"s_cbranch_scc1 {dyn}")
        A("s_cmp_eq_u32 s58, 0")
        A(f"s_cbranch_scc1 {last}")
        adv()
        A("s_sub_u32 s58, s58, 1")
        A(f"s_branch {go}")
        A.label(last)
        stamp("sk")
        A("s_mov_b32 s29, s57")
        A("s_mov_b32 s30, s29")
        A("s_mov_b32 s31, s29")
        fifo_pre()
        A(f"s_branch {k2}")
        A.label(dyn)
        claim()
        A.label(k2)
        setbase(1, 1)
        A("s_mov_b32 s55, 1")
        A.label(go)
    def decV():
        dyn, go = lab("dv"), lab("gv")
        A("s_cmp_eq_u32 s59, 0")
        A(f"s_cbranch_scc1 {dyn}")
        adv()
        A("s_sub_u32 s59, s59, 1")
        fifo_pre()
        A("s_cmp_lg_u32 s59, 0")
        A(f"s_cbranch_scc1 {go}")
        claim()
        A(f"s_branch {go}")
        A.label(dyn)
        nextdyn(go)
        A.label(go)
    A("s_mov_b32 s55, 0")
    A("s_waitcnt lgkmcnt(0)")
    for n in range(16):
        if n == n0:
            adv()
            A("s_sub_u32 s58, s58, 1")
        A(f"s_waitcnt vmcnt({(15-n)+(0 if wofirst else 16)+max(0,n-n0)})")
        if n >= n0: ld(n - n0)
        k1(n)
    A(f"ds_write_b32 v46, v{C}")
    A("v_add_u32 v46, 256, v46")
    A(f"s_waitcnt vmcnt({L})")
    flag_add(7, 8)
    A.label("L_K")
    for n in range(16):
        if n == n0: decK()
        A(f"s_waitcnt vmcnt({L-1})")
        ld((n + L) & 15)
        k1(n)
    A("s_cmp_lg_u32 s56, 0")
    A("s_cbranch_scc1 L_V")
    A(f"ds_write_b32 v46, v{C}")
    A("v_add_u32 v46, 256, v46")
    A("s_cmp_eq_u32 s55, 0")
    A("s_cbranch_scc1 L_K")
    A.label("L_topV")
    A(f"v_mov_b32 v{C}, v{CN}")
    A.label("L_V")
    A("s_nop 1")
    smx()
    for n in range(16):
        if n == n0: decV()
        A(f"s_waitcnt vmcnt({L-1})")
        ld((n + L) & 15)
        v1(n)
    A("s_cmp_eq_u32 s55, 1")
    A("s_cbranch_scc1 L_topV")
    A("s_cmp_eq_u32 s55, 0")
    A("s_cbranch_scc1 L_K")
    if n2:
        A("s_cmp_eq_u32 s55, 2")
        A("s_cbranch_scc1 L_fin")
        for n in range(L, 16): ld(n)
        A.label("L_top2")
        nextdyn("L_2")
        A.label("L_2")
        A(f"v_mov_b32 v{C}, 0xf149f2ca")
        kq(0, 0); kq(1, 0)
        smx()
        vq(2, 0); vq(3, 1)
        A("s_cmp_eq_u32 s55, 3")
        A("s_cbranch_scc1 L_top2")
        A.label("L_fin")
    stamp("s5")
    for st in (8, 4, 2, 1):
        A(f"v_add_f32_dpp v{LS}, v{LS}, v{LS} row_ror:{st} row_mask:0xf bank_mask:0xf")
    finalize(M, LS, ACC, 24, 40, 42)
    A("v_mov_b32 v41, v40")
    A("v_xor_b32 v43, s6, v42")
    A("v_permlane16_swap_b32 v40, v41")
    A("v_bitop3_b32 v43, v40, v41, v43 bitop3:0x96")
    stamp("s4")
    A("s_mov_b64 exec, s[72:73]")
    A(f"buffer_store_dwordx4 v[40:43], v5, s[24:27], s43 offen {ast}")
    flag_add(62, 48)
    stamp_store(240)
    A.label("L_end")
    A("s_endpgm")

    body = A.render()
    nv = 256 if (stamps or xpre > 1) else 240
    txt = HEADER + f"; @launch grid=(256,1,1) block=(512,1,1) lds={L_TOT}\n"
    txt += '.amdgcn_target "amdgcn-amd-amdhsa--gfx950"\n.text\n'
    txt += f".globl {NAME}\n.p2align 8\n.type {NAME},@function\n"
    txt += body
    txt += '.section .rodata,"a"\n.p2align 6\n'
    txt += f".amdhsa_kernel {NAME}\n"
    txt += f"  .amdhsa_next_free_vgpr {nv}\n  .amdhsa_next_free_sgpr 102\n  .amdhsa_accum_offset {nv}\n"
    txt += "  .amdhsa_group_segment_fixed_size 0\n  .amdhsa_kernarg_size 104\n  .amdhsa_user_sgpr_count 2\n"
    txt += "  .amdhsa_user_sgpr_kernarg_segment_ptr 1\n  .amdhsa_system_sgpr_workgroup_id_x 1\n.end_amdhsa_kernel\n"
    return txt

if __name__ == "__main__":
    import argparse
    ap = argparse.ArgumentParser()
    ap.add_argument("out")
    ap.add_argument("--kw", default="")
    a = ap.parse_args()
    kw = eval("dict(" + a.kw + ")")
    open(a.out, "w").write(gen(**kw))
```

```python
import sys, struct
sys.path.insert(0, "dev")
from asmlib import Asm
from gen import HEADER, NAME

L_W = 0
L_FIFO = 32768
L_WO = 65536
L_QA = 131072
L_QB = L_QA + 1024
L_O = L_QB + 2048
L_FL = L_O + 4608
L_X = L_FL + 64
L_TOT = L_X + 4352
W_CNT = 0x1000
W_QP = 0x10000
W_PA = 0x100000
W_PB = 0x200000
W_OB2 = 0x100000
W_STAMP = 0x20000000

F32 = lambda x: struct.unpack("<I", struct.pack("<f", x))[0]
CEXP = struct.unpack("<I", struct.pack("<f", 1.4426950408889634 / (128 ** 0.5)))[0]

def gen(TD=3, CS=4, ns=12, NBW=1, JB=2, ksk=4, stamps=0, spin=200000, hst=("h1", "h2", "h3", "h4"),
        sst=("s1", "s2", "s3", "s4"), rot=1, wox=8, psl=16, qsl=4, ysl=0, early=0, esl=16,
        bst="sc1 nt", bld="sc1 nt", ast="sc1", ald="sc1", ab=(), wolate=0, pasl=0, touch=0, woh=0, kp="nt", vp="nt", til=0, gate=3, n2=0, n1=0, rc=0, rnd=0, mixed=0, warm=0, ybk=0, sgate=1, qst="sc1", qld="sc1", yst=None, yld=None, xpre=0, ost="sc1", pt=0, L=6, jbh=1, sprio=0, wofirst=0, thr=0, pre0=16, nd=1, ti=1, gb=1, w1=127, w1n=2, l1sl=64, ak=None, av=None):
    tl = 4
    ksk = 0
    yst = yst or ast; yld = yld or ald
    A = Asm()
    NWP = 8
    NT = 512
    CD = CS
    CSB = CS * 4096
    assert ns * NWP * CS <= NT and (NT - ns * NWP * CS) % CD == 0
    NSK = NBW * ksk
    assert n1 == 0 and xpre == 0
    assert NBW == 1 and not til and (2 * n2 + n1) % CS == 0
    T2 = ns * NWP * CS
    NDYN = 2 * NSK + (NT - T2) // 2
    assert CS == 4 and ns - ksk >= 2 + nd and ns <= 16 and nd >= 1
    NP = 2 * NBW
    BT = 16 // NBW
    uid = [0]
    def lab(p):
        uid[0] += 1
        return f"L_{p}_{uid[0]}"

    P = dict(A_x=64, A_k=66, A_v=68, A_wq=70, A_wo=72, B_x=74, B_k=76, B_v=78, B_wq=80, B_wo=82, out=84, dbg=86, ws=88)
    def srd(d, lo, hi, n):
        A(f"s_mov_b32 s{d}, s{lo}")
        A(f"s_and_b32 s{d+1}, s{hi}, 0xffff")
        A(f"s_mov_b32 s{d+2}, {hex(n)}")
        A(f"s_mov_b32 s{d+3}, 0x20000")
    def srdp(d, name, n): srd(d, P[name], P[name] + 1, n)

    def stamp(i):
        if not stamps: return
        if isinstance(i, str):
            lst = hst if i[0] == "h" else sst
            if i not in lst: return
            i = 1 + list(lst).index(i)
        A(f"s_memrealtime s[{90+2*i}:{91+2*i}]")
    def stamp_store(vt):
        if not stamps: return
        A(f"s_memrealtime s[{90+2*(stamps-1)}:{91+2*(stamps-1)}]")
        A("s_waitcnt lgkmcnt(0)")
        A("s_lshl_b32 s32, s2, 3")
        A("s_add_u32 s32, s32, s3")
        A(f"s_mul_i32 s32, s32, {stamps*8}")
        A(f"s_add_u32 s32, s32, {hex(W_STAMP)}")
        for i in range(stamps):
            A(f"v_mov_b32 v{vt+2*i}, s{90+2*i}")
            A(f"v_mov_b32 v{vt+2*i+1}, s{91+2*i}")
        A(f"v_mov_b32 v{vt+2*stamps}, 0")
        A("s_mov_b64 exec, 1")
        for i in range(stamps):
            A(f"buffer_store_dwordx2 v[{vt+2*i}:{vt+2*i+1}], v{vt+2*stamps}, s[24:27], s32 offen offset:{8*i}")
        A("s_mov_b64 exec, -1")

    def chain(op3, op2, dst, regs):
        if len(regs) == 2:
            A(f"{op2} v{dst}, {regs[0]}, {regs[1]}"); return
        A(f"{op3} v{dst}, {regs[0]}, {regs[1]}, {regs[2]}")
        i = 3
        while i < len(regs):
            if i + 1 < len(regs):
                A(f"{op3} v{dst}, v{dst}, {regs[i]}, {regs[i+1]}"); i += 2
            else:
                A(f"{op2} v{dst}, v{dst}, {regs[i]}"); i += 1
    def scores(K, Q, S, n):
        for r in range(4):
            for j in range(n):
                c = "0" if r == 0 else f"v{S+j}"
                A(f"v_dot2_f32_bf16 v{S+j}, v{K+4*j+r}, v{Q+r}, {c}")
        for st in (8, 4, 2, 1):
            for j in range(n):
                A(f"v_add_f32_dpp v{S+j}, v{S+j}, v{S+j} row_ror:{st} row_mask:0xf bank_mask:0xf")
    def round2(regs):
        for r in regs: A(f"v_cvt_pk_bf16_f32 v{r}, 0, v{r}")
        for r in regs: A(f"v_mul_f32 v{r}, {hex(F32(128 ** -0.5))}, v{r}")
        for r in regs: A(f"v_cvt_pk_bf16_f32 v{r}, 0, v{r}")
    def softmax(S, n, M, LS, ACC, AL, NM, PL, PH):
        if rnd: round2([S + j for j in range(n)])
        chain("v_max3_f32", "v_max_f32", AL, [f"v{S+j}" for j in range(n)] + [f"v{M}"])
        A(f"v_sub_f32 v{NM}, v{M}, v{AL}")
        A(f"v_mov_b32 v{M}, v{AL}")
        A(f"v_mul_f32 v{AL}, s7, v{NM}")
        A(f"v_mul_f32 v{NM}, s7, v{M}")
        A(f"v_exp_f32 v{AL}, v{AL}")
        for j in range(n):
            A(f"v_fma_f32 v{S+j}, v{S+j}, s7, -v{NM}")
        for j in range(n):
            A(f"v_exp_f32 v{S+j}, v{S+j}")
        for e in range(8):
            A(f"v_mul_f32 v{ACC+e}, v{ACC+e}, v{AL}")
        A(f"v_fma_f32 v{LS}, v{LS}, v{AL}, v{S}")
        for j in range(1, n):
            A(f"v_add_f32 v{LS}, v{LS}, v{S+j}")
        for j in range(n):
            A(f"v_cvt_pk_bf16_f32 v{PL+j}, v{S+j}, 0")
            A(f"v_cvt_pk_bf16_f32 v{PH+j}, 0, v{S+j}")
    def pv(V, n, ACC, PL, PH):
        for j in range(n):
            for r in range(4):
                A(f"v_dot2_f32_bf16 v{ACC+2*r}, v{V+4*j+r}, v{PL+j}, v{ACC+2*r}")
                A(f"v_dot2_f32_bf16 v{ACC+2*r+1}, v{V+4*j+r}, v{PH+j}, v{ACC+2*r+1}")
    def init_state(M, LS, ACC):
        for e in range(8): A(f"v_mov_b32 v{ACC+e}, 0")
        A(f"v_mov_b32 v{M}, 0xf149f2ca")
        A(f"v_mov_b32 v{LS}, 0")
    def finalize(M, LS, ACC, T, OPK, OLSE):
        A(f"v_mov_b32 v{T+1}, v{M}")
        A(f"v_mov_b32 v{T+2}, v{M}")
        A(f"v_permlane32_swap_b32 v{T+1}, v{T+2}")
        A(f"v_max_f32 v{T+1}, v{T+1}, v{T+2}")
        A(f"v_mov_b32 v{T+2}, v{T+1}")
        A(f"v_permlane16_swap_b32 v{T+1}, v{T+2}")
        A(f"v_max_f32 v{T}, v{T+1}, v{T+2}")
        A(f"v_sub_f32 v{T+1}, v{M}, v{T}")
        A(f"v_mul_f32 v{T+1}, s7, v{T+1}")
        A(f"v_exp_f32 v{T+1}, v{T+1}")
        A(f"v_mul_f32 v{LS}, v{LS}, v{T+1}")
        for e in range(8): A(f"v_mul_f32 v{ACC+e}, v{ACC+e}, v{T+1}")
        A(f"v_mov_b32 v{T+1}, v{LS}")
        A(f"v_mov_b32 v{T+2}, v{LS}")
        for e in range(4): A(f"v_permlane32_swap_b32 v{ACC+e}, v{ACC+e+4}")
        A(f"v_permlane32_swap_b32 v{T+1}, v{T+2}")
        for e in range(4): A(f"v_add_f32 v{ACC+e}, v{ACC+e}, v{ACC+e+4}")
        A(f"v_add_f32 v{T+1}, v{T+1}, v{T+2}")
        A(f"v_mov_b32 v{T+2}, v{T+1}")
        for e in range(2): A(f"v_permlane16_swap_b32 v{ACC+e}, v{ACC+e+2}")
        A(f"v_permlane16_swap_b32 v{T+1}, v{T+2}")
        A(f"v_add_f32 v{T+3}, v{T+1}, v{T+2}")
        for e in range(2): A(f"v_add_f32 v{ACC+e}, v{ACC+e}, v{ACC+e+2}")
        A(f"v_rcp_f32 v{T+1}, v{T+3}")
        A(f"v_log_f32 v{T+2}, v{T+3}")
        A(f"v_mul_f32 v{ACC}, v{ACC}, v{T+1}")
        A(f"v_mul_f32 v{ACC+1}, v{ACC+1}, v{T+1}")
        A(f"v_fma_f32 v{OLSE}, v{T}, s7, v{T+2}")
        A(f"v_cvt_pk_bf16_f32 v{OPK}, v{ACC}, v{ACC+1}")
    def combine(G, n, OPK, OLSE=None):
        T1, T2, T3, T4 = 56, 57, 58, 59
        chain("v_max3_f32", "v_max_f32", T1, [f"v{G+4*i+2}" for i in range(n)])
        for i in range(n): A(f"v_sub_f32 v{G+4*i+2}, v{G+4*i+2}, v{T1}")
        for i in range(n): A(f"v_exp_f32 v{G+4*i+2}, v{G+4*i+2}")
        for i in range(n):
            A(f"v_lshlrev_b32 v{G+4*i+1}, 16, v{G+4*i}")
            A(f"v_and_b32 v{G+4*i+3}, 0xffff0000, v{G+4*i}")
        A(f"v_add_f32 v{T4}, v{G+2}, v{G+6}")
        A(f"v_mul_f32 v{T2}, v{G+2}, v{G+1}")
        A(f"v_mul_f32 v{T3}, v{G+2}, v{G+3}")
        for i in range(2, n): A(f"v_add_f32 v{T4}, v{T4}, v{G+4*i+2}")
        if OLSE is not None: A(f"v_log_f32 v{OLSE}, v{T4}")
        A(f"v_rcp_f32 v{T4}, v{T4}")
        for i in range(1, n):
            A(f"v_fmac_f32 v{T2}, v{G+4*i+2}, v{G+4*i+1}")
            A(f"v_fmac_f32 v{T3}, v{G+4*i+2}, v{G+4*i+3}")
        if OLSE is not None: A(f"v_add_f32 v{OLSE}, v{OLSE}, v{T1}")
        A(f"v_mul_f32 v{T2}, v{T2}, v{T4}")
        A(f"v_mul_f32 v{T3}, v{T3}, v{T4}")
        A(f"v_cvt_pk_bf16_f32 v{OPK}, v{T2}, v{T3}")
    def chk(g, m, tg="s6"):
        A(f"v_bitop3_b32 v56, v{g}, v{g+1}, v{g+2} bitop3:0x96")
        A(f"v_xor_b32 v56, v56, v{g+3}")
        A(f"v_cmp_ne_u32 s[{m}:{m+1}], {tg}, v56")
    def combine2(G, n, addr_v, off):
        T1, T2, DEN, A0 = 56, 57, 58, 36
        if n == 1: A(f"v_mov_b32 v{T1}, v{G+2}")
        else: chain("v_max3_f32", "v_max_f32", T1, [f"v{G+4*u+2}" for u in range(n)])
        A(f"v_mov_b32 v{T2}, v{T1}")
        for u in range(n):
            A(f"v_lshlrev_b32 v{G+4*u+3}, 16, v{G+4*u}")
        A(f"v_permlane32_swap_b32 v{T1}, v{T2}")
        A(f"v_max_f32 v{T1}, v{T1}, v{T2}")
        for u in range(n): A(f"v_sub_f32 v{G+4*u+2}, v{G+4*u+2}, v{T1}")
        for u in range(n): A(f"v_exp_f32 v{G+4*u+2}, v{G+4*u+2}")
        for u in range(n): A(f"v_and_b32 v{G+4*u}, 0xffff0000, v{G+4*u}")
        for u in range(n):
            op = "v_mul_f32" if u == 0 else "v_fmac_f32"
            A(f"{op} v{A0}, v{G+4*u+2}, v{G+4*u+3}")
            A(f"{op} v{A0+1}, v{G+4*u+2}, v{G+4*u}")
            A(f"v_lshlrev_b32 v{G+4*u+3}, 16, v{G+4*u+1}")
            A(f"v_and_b32 v{G+4*u+1}, 0xffff0000, v{G+4*u+1}")
            if u == 0: A(f"v_mov_b32 v{DEN}, v{G+2}")
            else: A(f"v_add_f32 v{DEN}, v{DEN}, v{G+4*u+2}")
        A(f"v_mov_b32 v{DEN+1}, v{DEN}")
        for u in range(n):
            op = "v_mul_f32" if u == 0 else "v_fmac_f32"
            A(f"{op} v{A0+2}, v{G+4*u+2}, v{G+4*u+3}")
            A(f"{op} v{A0+3}, v{G+4*u+2}, v{G+4*u+1}")
        A(f"v_permlane32_swap_b32 v{DEN}, v{DEN+1}")
        A(f"v_add_f32 v{DEN}, v{DEN}, v{DEN+1}")
        A(f"v_permlane32_swap_b32 v{A0}, v{A0+2}")
        A(f"v_permlane32_swap_b32 v{A0+1}, v{A0+3}")
        A(f"v_rcp_f32 v{DEN}, v{DEN}")
        A(f"v_add_f32 v{A0}, v{A0}, v{A0+2}")
        A(f"v_add_f32 v{A0+1}, v{A0+1}, v{A0+3}")
        A(f"v_mul_f32 v{A0}, v{A0}, v{DEN}")
        A(f"v_mul_f32 v{A0+1}, v{A0+1}, v{DEN}")
        A(f"v_cvt_pk_bf16_f32 v{A0}, v{A0}, v{A0+1}")
        A(f"ds_write_b32 v{addr_v}, v{A0} offset:{off}")
    def poll_masked(n, issue1, tagregs, sleep, mbase=64, extra=None, tagreg="s6"):
        top, done = lab("pk"), lab("pkdone")
        A(f"s_mov_b32 s42, {spin}")
        for i in range(n): A(f"s_mov_b64 s[{mbase+2*i}:{mbase+2*i+1}], -1")
        A.label(top)
        for i in range(n):
            A(f"s_mov_b64 exec, s[{mbase+2*i}:{mbase+2*i+1}]")
            issue1(i)
        A("s_mov_b64 exec, -1")
        if extra: extra[0]()
        A("s_waitcnt vmcnt(0) lgkmcnt(0)" if extra else "s_waitcnt vmcnt(0)")
        for i in range(n):
            tr = tagregs(i)
            if isinstance(tr, int):
                chk(tr, mbase + 2 * i)
                if i == 0: A(f"s_mov_b64 s[40:41], s[{mbase}:{mbase+1}]")
                else: A(f"s_or_b64 s[40:41], s[40:41], s[{mbase+2*i}:{mbase+2*i+1}]")
                continue
            A(f"v_cmp_ne_u32 s[{mbase+2*i}:{mbase+2*i+1}], {tagreg}, v{tr[0]}")
            for r in tr[1:]:
                A(f"v_cmp_ne_u32 vcc, {tagreg}, v{r}")
                A(f"s_or_b64 s[{mbase+2*i}:{mbase+2*i+1}], s[{mbase+2*i}:{mbase+2*i+1}], vcc")
            if i == 0: A(f"s_mov_b64 s[40:41], s[{mbase}:{mbase+1}]")
            else: A(f"s_or_b64 s[40:41], s[40:41], s[{mbase+2*i}:{mbase+2*i+1}]")
        A("s_cmp_eq_u64 s[40:41], 0")
        A(f"s_cbranch_scc1 {done}")
        if extra: extra[1]()
        elif sleep: A(f"s_sleep {sleep}")
        A("s_sub_u32 s42, s42, 1")
        A("s_cmp_lg_u32 s42, 0")
        A(f"s_cbranch_scc1 {top}")
        A.label(done)
    def flag_add(addr_v, off=0):
        A("s_mov_b64 exec, 1")
        A(f"ds_add_u32 v{addr_v}, v63 offset:{off}")
        A("s_mov_b64 exec, -1")
    def flag_wait(addr_v, off, target, tmp_v, sleep):
        top, done = lab("fw"), lab("fwdone")
        A(f"s_mov_b32 s42, {spin*16}")
        A.label(top)
        A(f"ds_read_b32 v{tmp_v}, v{addr_v} offset:{off}")
        A("s_waitcnt lgkmcnt(0)")
        A(f"v_readfirstlane_b32 s47, v{tmp_v}")
        A(f"s_cmp_ge_u32 s47, {target}")
        A(f"s_cbranch_scc1 {done}")
        if sleep: A(f"s_sleep {sleep}")
        A("s_sub_u32 s42, s42, 1")
        A("s_cmp_lg_u32 s42, 0")
        A(f"s_cbranch_scc1 {top}")
        A.label(done)
    def mktag():
        A("s_mul_i32 s6, s6, 0x9e3779b1")
        A("s_add_u32 s6, s6, 0x7f4a7c15")
        A("s_cmp_eq_u32 s6, 0")
        A("s_cselect_b32 s6, 2, s6")

    A.label(NAME)
    A("s_cmp_ge_u32 s2, 256")
    A("s_cbranch_scc1 L_end")
    for i in range(stamps): stamp(i)
    A("s_load_dwordx16 s[64:79], s[0:1], 0")
    A("s_load_dwordx8 s[80:87], s[0:1], 64")
    A("s_load_dwordx2 s[88:89], s[0:1], 96")
    A("v_lshrrev_b32 v1, 6, v0")
    A("v_readfirstlane_b32 s3, v1")
    A("v_and_b32 v1, 63, v0")
    A("s_lshr_b32 s4, s2, 3")
    A("s_and_b32 s5, s2, 7")
    if rot:
        A(f"s_mul_i32 s7, s5, {rot}")
        A("s_add_u32 s4, s4, s7")
        A("s_and_b32 s4, s4, 31")
    A(f"s_mov_b32 s7, {hex(F32(1.4426950408889634) if rnd else CEXP)}")
    A("v_lshlrev_b32 v2, 4, v1")
    A(f"v_mov_b32 v62, {L_FL}")
    A("v_mov_b32 v63, 1")
    A("v_mov_b32 v7, 0")
    A("v_and_b32 v6, 15, v1")
    A("v_lshl_add_u32 v6, v6, 2, v62")
    A("ds_write_b32 v6, v7")
    A("s_waitcnt lgkmcnt(0)")
    A("s_barrier")
    A("s_load_dword s6, s[88:89], 0")
    srdp(24, "ws", 0x40000000)
    A("s_cmp_ge_u32 s3, 4")
    A("s_cbranch_scc1 L_stream")

    stamp("h0a")
    A("s_lshr_b32 s33, s5, 2")
    A("s_bfe_u32 s34, s5, 0x10001")
    A("s_and_b32 s35, s5, 1")
    A("s_cmp_eq_u32 s33, 0")
    A(f"s_cselect_b32 s36, s{P['A_wq']}, s{P['B_wq']}")
    A(f"s_cselect_b32 s37, s{P['A_wq']+1}, s{P['B_wq']+1}")
    A(f"s_cselect_b32 s38, s{P['A_x']}, s{P['B_x']}")
    A(f"s_cselect_b32 s39, s{P['A_x']+1}, s{P['B_x']+1}")
    srd(12, 36, 37, 0x800000)
    srd(8, 38, 39, 8192)
    A("v_lshrrev_b32 v3, 3, v1")
    A("v_lshlrev_b32 v3, 13, v3")
    A("v_and_b32 v4, 7, v1")
    A("v_lshl_add_u32 v3, v4, 4, v3")
    A("v_and_b32 v4, 16, v1")
    A("v_lshlrev_b32 v4, 1, v4")
    A("v_xor_b32 v3, v3, v4")
    A("v_xor_b32 v4, 64, v3")
    A("s_lshl_b32 s43, s35, 9")
    A("s_lshl_b32 s44, s3, 7")
    A("s_add_u32 s43, s43, s44")
    A("s_lshl_b32 s43, s43, 13")
    A("s_lshl_b32 s44, s4, 8")
    A("s_add_u32 s43, s43, s44")
    A("s_lshl_b32 s44, s34, 7")
    A("s_add_u32 s43, s43, s44")
    A("s_lshl_b32 s44, s3, 14")
    for u in range(16):
        A("s_mov_b32 m0, s44")
        A(f"buffer_load_dwordx4 v{3+(u&1)}, s[12:15], s43 offen nt lds")
        if u < 15:
            A("s_add_u32 s43, s43, 0x10000")
            A("s_add_u32 s44, s44, 1024")
    XF = 64
    A("s_lshl_b32 s43, s3, 11")
    A("s_lshl_b32 s44, s35, 10")
    A("s_add_u32 s43, s43, s44")
    A("s_mul_i32 s44, s3, 1088")
    A(f"s_add_u32 s44, s44, {L_X}")
    A("s_mov_b32 m0, s44")
    A("buffer_load_dwordx4 v2, s[8:11], s43 offen lds")
    if not gb: flag_add(62, 36)
    A("s_or_b32 s43, s5, s3")
    A("s_cmp_lg_u32 s43, 0")
    A("s_cbranch_scc1 L_noinit")
    A("v_lshlrev_b32 v6, 13, v1")
    A("s_lshl_b32 s43, s4, 8")
    A(f"s_add_u32 s43, s43, {hex(W_CNT)}")
    A("s_mov_b64 exec, 15")
    A("buffer_store_dword v7, v6, s[24:27], s43 offen sc1")
    A("s_mov_b64 exec, -1")
    A.label("L_noinit")
    srdp(16, "B_k", 0x2000000)
    srdp(20, "B_v", 0x2000000)
    A("s_lshr_b32 s59, s2, 4")
    A("s_and_b32 s58, s2, 15")
    A("s_lshl_b32 s60, s59, 21")
    A("s_lshl_b32 s61, s58, 15")
    A("s_add_u32 s60, s60, s61")
    A("s_lshl_b32 s61, s3, 13")
    A("s_add_u32 s60, s60, s61")
    A(f"s_add_u32 s60, s60, {6144*256}")
    A("s_add_u32 s61, s60, 4096")
    KB, VB = 192, 224
    for base, sd in ((KB, "s[16:19]"), (VB, "s[20:23]")):
        for u in range(8):
            A(f"buffer_load_dwordx4 v[{base+4*u}:{base+4*u+3}], v2, {sd}, s{60+u//4} offen offset:{(u%4)*1024} nt")
    if gb: flag_add(62, 36)
    stamp("h0b")
    A("s_waitcnt lgkmcnt(0)")
    A("v_and_b32 v11, 3, v1")
    A("v_mul_u32_u24 v11, 1088, v11")
    A("v_lshrrev_b32 v5, 4, v1")
    A("v_lshl_add_u32 v11, v5, 4, v11")
    A(f"v_add_u32 v11, {L_X}, v11")
    srdp(28, "out", 16384)
    if woh:
        srdp(8, "A_wo", 0x800000)
        srdp(12, "B_wo", 0x800000)
    A("v_lshrrev_b32 v5, 4, v1")
    A("v_lshlrev_b32 v5, 3, v5")
    A("v_bfe_u32 v6, v1, 2, 2")
    A("v_add_u32 v5, v5, v6")
    A("v_and_b32 v6, 3, v1")
    A("v_lshlrev_b32 v6, 3, v6")
    A("v_lshl_add_u32 v8, v5, 7, v6")
    A("v_bfe_u32 v12, v1, 3, 2")
    A("v_xor_b32 v12, s3, v12")
    A("v_lshl_add_u32 v8, v12, 5, v8")
    A(f"v_add_u32 v9, {L_WO}, v8")
    mktag()
    A("v_and_b32 v4, 3, v1")
    A("v_lshlrev_b32 v4, 10, v4")
    A("v_lshrrev_b32 v5, 4, v1")
    A("v_lshl_add_u32 v4, v5, 5, v4")
    A("v_and_b32 v5, 4, v1")
    A("v_lshl_add_u32 v4, v5, 2, v4")
    A("s_lshl_b32 s43, s4, 1")
    A("s_add_u32 s43, s43, s33")
    A("s_lshl_b32 s43, s43, 1")
    A("s_add_u32 s43, s43, s35")
    A("s_lshl_b32 s43, s43, 12")
    A("s_lshl_b32 s44, s34, 9")
    A("s_add_u32 s43, s43, s44")
    A("s_lshl_b32 s44, s3, 7")
    A("s_add_u32 s43, s43, s44")
    A(f"s_add_u32 s43, s43, {hex(W_QP)}")
    for r in (21, 23): A(f"v_mov_b32 v{r}, s6")
    A("s_mov_b32 s56, 0x00ff00ff")
    A("s_mov_b32 s57, 0x00ff00ff")
    A("s_waitcnt vmcnt(16)")
    flag_add(62, 0)
    flag_wait(62, 0, 4, 10, 0)
    stamp("h1")
    WF = 128
    for ks in range(16):
        A(f"ds_read_b64_tr_b16 v[{WF+4*ks}:{WF+4*ks+1}], v8 offset:{ks*4096}")
        A(f"ds_read_b64_tr_b16 v[{WF+4*ks+2}:{WF+4*ks+3}], v8 offset:{ks*4096+512}")
        A(f"ds_read_b128 v[{XF+4*ks}:{XF+4*ks+3}], v11 offset:{ks*64}")
    for ks in range(16):
        A(f"s_waitcnt lgkmcnt({min(15, 3*(15-ks))})")
        d = 12 + 4 * (ks & 1)
        c = "0" if ks < 2 else f"v[{d}:{d+3}]"
        A(f"v_mfma_f32_16x16x32_bf16 v[{d}:{d+3}], v[{WF+4*ks}:{WF+4*ks+3}], v[{XF+4*ks}:{XF+4*ks+3}], {c}")
    for r in range(4): A(f"v_add_f32 v{20+2*r}, v{12+r}, v{16+r}")
    A("v_mov_b32_dpp v20, v24 row_shr:4 row_mask:0xf bank_mask:0x2")
    A("v_mov_b32_dpp v22, v26 row_shr:4 row_mask:0xf bank_mask:0x2")
    A("s_mov_b64 exec, s[56:57]")
    A(f"buffer_store_dwordx4 v[20:23], v4, s[24:27], s43 offen {qst}")
    A("s_mov_b64 exec, -1")
    stamp("h2")
    A("s_lshl_b32 s43, s4, 14")
    A("s_lshl_b32 s44, s3, 10")
    A("s_add_u32 s43, s43, s44")
    A(f"s_add_u32 s43, s43, {hex(W_QP)}")
    A("s_add_u32 s44, s43, 4096")
    A("s_lshl_b32 s45, s3, 8")
    A(f"s_add_u32 s45, s45, {L_QA}")
    A("v_lshl_add_u32 v10, v1, 2, s45")
    poll_masked(2, lambda i: A(f"buffer_load_dwordx4 v[{28+4*i}:{31+4*i}], v2, s[24:27], s{43+i} offen {qld}"),
                lambda i: [29 + 4 * i, 31 + 4 * i], qsl)
    A("v_add_f32 v28, v28, v32")
    A("v_add_f32 v30, v30, v34")
    A("v_cvt_pk_bf16_f32 v28, v28, v30")
    A("ds_write_b32 v10, v28")
    A("s_waitcnt lgkmcnt(0)")
    A("s_barrier")
    stamp("h3")
    if 1 in ab: A("s_branch L_hend")
    A("s_and_b32 s48, s59, 3")
    A("s_lshl_b32 s48, s48, 3")
    A("s_lshl_b32 s49, s3, 1")
    A("s_add_u32 s48, s48, s49")
    A("s_lshl_b32 s49, s48, 14")
    A("s_lshr_b32 s61, s59, 2")
    A("s_lshl_b32 s50, s61, 10")
    A("s_add_u32 s49, s49, s50")
    A(f"s_add_u32 s49, s49, {hex(W_QP+8192)}")
    A("s_add_u32 s50, s49, 4096")
    A("s_add_u32 s51, s49, 16384")
    A("s_add_u32 s52, s49, 20480")
    poll_masked(4, lambda i: A(f"buffer_load_dwordx4 v[{28+4*i}:{31+4*i}], v2, s[24:27], s{49+i} offen {qld}"),
                lambda i: [29 + 4 * i, 31 + 4 * i], 16)
    A("v_add_f32 v28, v28, v32")
    A("v_add_f32 v30, v30, v34")
    A("v_add_f32 v36, v36, v40")
    A("v_add_f32 v38, v38, v42")
    A("v_cvt_pk_bf16_f32 v28, v28, v30")
    A("v_cvt_pk_bf16_f32 v36, v36, v38")
    A("s_lshl_b32 s43, s3, 9")
    A(f"s_add_u32 s43, s43, {L_QB}")
    A("v_lshl_add_u32 v10, v1, 2, s43")
    A("ds_write_b32 v10, v28")
    A("ds_write_b32 v10, v36 offset:256")
    A("s_waitcnt lgkmcnt(0)")
    flag_add(62, 4)
    flag_wait(62, 4, 4, 10, 1)
    A("v_and_b32 v11, 0xf0, v2")
    A(f"v_add_u32 v11, {L_QB}, v11")
    A("v_and_b32 v4, 15, v1")
    A("v_lshlrev_b32 v4, 5, v4")
    A("v_lshrrev_b32 v5, 4, v1")
    A("v_lshl_add_u32 v4, v5, 3, v4")
    A("s_lshl_b32 s43, s3, 12")
    A("v_add_u32 v4, s43, v4")
    A("s_mov_b32 s45, 8")
    A.label("L_battn")
    A("ds_read_b128 v[64:67], v11")
    A("v_add_u32 v11, 256, v11")
    init_state(68, 69, 72)
    A("s_waitcnt lgkmcnt(0)")
    scores(KB, 64, 80, 8)
    softmax(80, 8, 68, 69, 72, 70, 71, 88, 96)
    pv(VB, 8, 72, 88, 96)
    finalize(68, 69, 72, 12, 17, 16)
    A("ds_write_b64 v4, v[16:17]")
    A("v_add_u32 v4, 512, v4")
    A("s_sub_u32 s45, s45, 1")
    A("s_cmp_lg_u32 s45, 0")
    A("s_cbranch_scc1 L_battn")
    A("s_waitcnt lgkmcnt(0)")
    flag_add(62, 12)
    flag_wait(62, 12, 4, 10, 1)
    A("s_lshl_b32 s43, s3, 10")
    A("v_lshl_add_u32 v4, v1, 3, s43")
    A("s_lshl_b32 s43, s48, 2")
    A("s_add_u32 s43, s43, s61")
    A("s_lshl_b32 s43, s43, 13")
    A("s_lshl_b32 s44, s58, 8")
    A("s_add_u32 s43, s43, s44")
    A(f"s_add_u32 s43, s43, {hex(W_PB)}")
    A("s_add_u32 s44, s43, 0x8000")
    G = 64
    for k in range(2):
        for w_ in range(4):
            A(f"ds_read_b64 v[{G+16*k+4*w_+2}:{G+16*k+4*w_+3}], v4 offset:{w_*4096+k*512}")
    A("v_and_b32 v5, 31, v1")
    A("v_lshlrev_b32 v5, 3, v5")
    A("v_lshrrev_b32 v6, 5, v1")
    A("v_lshl_add_u32 v5, v6, 12, v5")
    A("s_mov_b32 s46, 0x55555555")
    A("s_mov_b32 s47, 0x55555555")
    A("s_waitcnt lgkmcnt(0)")
    for k in range(2):
        o = 12 + 4 * k
        for w_ in range(4): A(f"v_mov_b32 v{G+16*k+4*w_}, v{G+16*k+4*w_+3}")
        combine(G + 16 * k, 4, o, o + 2)
        A(f"v_mov_b32_dpp v{o+1}, v{o} quad_perm:[1,1,3,3] row_mask:0xf bank_mask:0xf")
        A(f"v_bitop3_b32 v{o+3}, v{o}, v{o+1}, v{o+2} bitop3:0x96")
        A(f"v_xor_b32 v{o+3}, s6, v{o+3}")
        A("s_mov_b64 exec, s[46:47]")
        A(f"buffer_store_dwordx4 v[{o}:{o+3}], v5, s[24:27], s{43+k} offen {bst}")
        A("s_mov_b64 exec, -1")
    stamp("h4")
    A("s_cmp_lg_u32 s3, 3")
    A("s_cbranch_scc1 L_nol1")
    A("s_lshl_b32 s45, s4, 3")
    A("s_add_u32 s45, s45, s5")
    A("s_lshl_b32 s46, s45, 12")
    A(f"s_add_u32 s46, s46, {hex(W_PB)}")
    for i in range(w1n): A(f"s_sleep {w1}")
    poll_masked(4, lambda i: A(f"buffer_load_dwordx4 v[{G+4*i}:{G+4*i+3}], v2, s[24:27], s46 offen offset:{i*1024} {bld}"),
                lambda i: G + 4 * i, l1sl)
    flag_add(62, 40)
    U1, U2, DEN, A0 = 56, 57, 58, 36
    chain("v_max3_f32", "v_max_f32", U1, [f"v{G+4*u+2}" for u in range(4)])
    for sw in ("v_permlane32_swap_b32", "v_permlane16_swap_b32"):
        A(f"v_mov_b32 v{U2}, v{U1}")
        A(f"{sw} v{U1}, v{U2}")
        A(f"v_max_f32 v{U1}, v{U1}, v{U2}")
    for u in range(4): A(f"v_sub_f32 v{G+4*u+2}, v{G+4*u+2}, v{U1}")
    for u in range(4): A(f"v_exp_f32 v{G+4*u+2}, v{G+4*u+2}")
    for u in range(4):
        op = "v_mul_f32" if u == 0 else "v_fmac_f32"
        for k in range(2):
            A(f"v_lshlrev_b32 v{G+4*u+3}, 16, v{G+4*u+k}")
            A(f"v_and_b32 v{G+4*u+k}, 0xffff0000, v{G+4*u+k}")
            A(f"{op} v{A0+2*k}, v{G+4*u+2}, v{G+4*u+3}")
            A(f"{op} v{A0+2*k+1}, v{G+4*u+2}, v{G+4*u+k}")
        if u == 0: A(f"v_mov_b32 v{DEN}, v{G+2}")
        else: A(f"v_add_f32 v{DEN}, v{DEN}, v{G+4*u+2}")
    for r in (DEN, A0, A0 + 1, A0 + 2, A0 + 3):
        for sw in ("v_permlane32_swap_b32", "v_permlane16_swap_b32"):
            A(f"v_mov_b32 v{U2}, v{r}")
            A(f"{sw} v{r}, v{U2}")
            A(f"v_add_f32 v{r}, v{r}, v{U2}")
    A(f"v_rcp_f32 v{DEN}, v{DEN}")
    for k in range(4): A(f"v_mul_f32 v{A0+k}, v{A0+k}, v{DEN}")
    A(f"v_cvt_pk_bf16_f32 v12, v{A0}, v{A0+1}")
    A(f"v_cvt_pk_bf16_f32 v14, v{A0+2}, v{A0+3}")
    A("v_mov_b32 v13, s6")
    A("v_mov_b32 v15, s6")
    A("s_lshr_b32 s43, s4, 1")
    A("s_lshl_b32 s43, s43, 12")
    A("s_lshr_b32 s44, s5, 1")
    A("s_lshl_b32 s44, s44, 10")
    A("s_add_u32 s43, s43, s44")
    A("s_and_b32 s44, s4, 1")
    A("s_lshl_b32 s44, s44, 9")
    A("s_add_u32 s43, s43, s44")
    A("s_and_b32 s44, s5, 1")
    A("s_lshl_b32 s44, s44, 8")
    A("s_add_u32 s43, s43, s44")
    A(f"s_add_u32 s43, s43, {hex(W_OB2)}")
    A("s_mov_b64 exec, 0xffff")
    A(f"buffer_store_dwordx4 v[12:15], v2, s[24:27], s43 offen {bst}")
    A("s_mov_b64 exec, -1")
    A.label("L_nol1")
    if 2 in ab: A("s_branch L_hend")

    FR = [128, 160]
    flag_wait(62, 8, 4, 56, 8)
    for T_ in range(2):
        for ks in range(8):
            r = FR[T_] + ks * 4
            off = T_ * 32768 + ks * 4096
            A(f"ds_read_b64_tr_b16 v[{r}:{r+1}], v9 offset:{off}")
            A(f"ds_read_b64_tr_b16 v[{r+2}:{r+3}], v9 offset:{off+512}")
    G = 64
    A("s_mul_i32 s43, s3, 576")
    A(f"s_add_u32 s43, s43, {L_O}")
    A("v_and_b32 v60, 31, v1")
    A("v_lshl_add_u32 v60, v60, 3, s43")
    A("v_lshrrev_b32 v7, 5, v1")
    A("v_lshl_add_u32 v60, v7, 2, v60")
    A("v_and_b32 v6, 3, v1")
    A("v_mul_u32_u24 v6, 576, v6")
    A("v_lshrrev_b32 v7, 4, v1")
    A("v_lshl_add_u32 v6, v7, 4, v6")
    A(f"v_add_u32 v6, {L_O}, v6")
    A("v_and_b32 v8, 3, v1")
    A("v_lshlrev_b32 v8, 7, v8")
    A("v_lshl_add_u32 v8, v7, 4, v8")
    A("v_and_b32 v7, 4, v1")
    A("v_lshl_add_u32 v8, v7, 4, v8")
    A("s_lshl_b32 s52, s4, 3")
    A("s_add_u32 s52, s52, s5")
    A("s_lshl_b32 s61, s52, 7")
    A(f"s_add_u32 s61, s61, {hex(W_QP)}")
    A("s_add_u32 s63, s61, 0x40000")
    A("s_and_b32 s60, s52, 3")
    A("s_lshl_b32 s60, s60, 12")
    A("s_lshr_b32 s44, s52, 2")
    A("s_lshl_b32 s44, s44, 5")
    A("s_add_u32 s60, s60, s44")
    A("s_lshl_b32 s52, s52, 11")
    A("s_lshl_b32 s53, s3, 9")
    A("s_add_u32 s52, s52, s53")
    A(f"s_add_u32 s52, s52, {hex(W_QP)}")
    A("s_xor_b32 s53, s6, 0x5bd1e994")
    for r in (21, 23): A(f"v_mov_b32 v{r}, s53")
    A("v_and_b32 v11, 3, v1")
    A("v_lshlrev_b32 v11, 3, v11")
    A("v_lshl_add_u32 v11, v7, 9, v11")
    A("v_lshrrev_b32 v5, 3, v1")
    A("v_lshlrev_b32 v5, 15, v5")
    A("v_and_b32 v4, 0x70, v2")
    A("v_add_u32 v5, v5, v4")
    A("s_lshl_b32 s43, s3, 2")
    A("v_add_u32 v10, s43, v62")
    A("s_lshr_b32 s45, s4, 1")
    A("s_lshl_b32 s46, s45, 12")
    A("s_lshl_b32 s44, s3, 10")
    A("s_add_u32 s46, s46, s44")
    A(f"s_add_u32 s46, s46, {hex(W_OB2)}")
    A("s_lshl_b32 s80, s45, 16")
    A("s_lshl_b32 s44, s3, 9")
    A("s_add_u32 s80, s80, s44")
    A(f"s_add_u32 s80, s80, {hex(W_PB)}")
    for i in range(1, 8): A(f"s_add_u32 s{80+i}, s80, {i*8192}")
    A("v_and_b32 v3, 31, v1")
    A("v_lshlrev_b32 v3, 4, v3")
    A("v_lshrrev_b32 v4, 5, v1")
    A("v_lshl_add_u32 v3, v4, 12, v3")
    A("s_mul_i32 s43, s3, 576")
    A(f"s_add_u32 s43, s43, {L_O+2304}")
    A("v_lshl_add_u32 v4, v1, 3, s43")
    A("s_xor_b32 s54, s6, 0x2545f490")
    def gemv(T_, D):
        OFR = 96
        for ks in range(8):
            A(f"ds_read_b128 v[{OFR+4*ks}:{OFR+4*ks+3}], v6 offset:{T_*2304+ks*64}")
        for ks in range(8):
            A(f"s_waitcnt lgkmcnt({7-ks})")
            d = D + 4 * (ks & 1)
            r = FR[T_] + ks * 4
            c = "0" if ks < 2 else f"v[{d}:{d+3}]"
            A(f"v_mfma_f32_16x16x32_bf16 v[{d}:{d+3}], v[{r}:{r+3}], v[{OFR+4*ks}:{OFR+4*ks+3}], {c}")
        for r in range(4): A(f"v_add_f32 v{D+r}, v{D+r}, v{D+4+r}")
    flag_wait(10, 16, 1, 56, esl)
    stamp("h5")
    poll_masked(1, lambda i: A(f"buffer_load_dwordx4 v[{G}:{G+3}], v2, s[24:27], s46 offen {bld}"),
                lambda i: [G + 1, G + 3], 16)
    A(f"v_mov_b32 v{G+1}, v{G+2}")
    A(f"ds_write_b64 v4, v[{G}:{G+1}]")
    A("s_waitcnt lgkmcnt(0)")
    flag_add(62, 32)
    flag_wait(62, 32, 4, 56, 1)
    gemv(1, 12)
    A("v_cvt_pk_bf16_f32 v24, v12, v13")
    A("v_cvt_pk_bf16_f32 v26, v14, v15")
    flag_wait(10, 48, 2, 56, 0)
    stamp("h6")
    top, done, nis, np0, np1, nc0, nc1 = (lab(x) for x in ("pa", "padone", "nis", "np0", "np1", "nc0", "nc1"))
    A(f"s_mov_b32 s42, {spin}")
    for i in range(8): A(f"s_mov_b64 s[{64+2*i}:{65+2*i}], -1")
    A("s_mov_b32 s44, 0")
    A("s_mov_b32 s45, 0")
    A.label(top)
    A("s_cmp_eq_u32 s44, 3")
    A(f"s_cbranch_scc1 {nis}")
    for i in range(8):
        A(f"s_mov_b64 exec, s[{64+2*i}:{65+2*i}]")
        A(f"buffer_load_dwordx4 v[{G+4*i}:{G+4*i+3}], v3, s[24:27], s{80+i} offen {ald}")
    A("s_mov_b64 exec, -1")
    A.label(nis)
    for k, np_ in ((0, np0), (1, np1)):
        A(f"s_bitcmp1_b32 s45, {k}")
        A(f"s_cbranch_scc0 {np_}")
        combine2(G + 16 * k, 4, 60, 256 * k)
        A.label(np_)
    A("s_mov_b32 s45, 0")
    A("s_cmp_eq_u32 s44, 3")
    A(f"s_cbranch_scc1 {done}")
    A("s_waitcnt vmcnt(0)")
    for k, nc in ((0, nc0), (1, nc1)):
        A(f"s_bitcmp1_b32 s44, {k}")
        A(f"s_cbranch_scc1 {nc}")
        for i in range(4 * k, 4 * k + 4): chk(G + 4 * i, 64 + 2 * i, "s54")
        b0 = 64 + 8 * k
        A(f"s_or_b64 s[40:41], s[{b0}:{b0+1}], s[{b0+2}:{b0+3}]")
        A(f"s_or_b64 vcc, s[{b0+4}:{b0+5}], s[{b0+6}:{b0+7}]")
        A("s_or_b64 s[40:41], s[40:41], vcc")
        A(f"s_cselect_b32 s47, 0, {1<<k}")
        A("s_or_b32 s44, s44, s47")
        A("s_or_b32 s45, s45, s47")
        A.label(nc)
    A("s_sub_u32 s42, s42, 1")
    A("s_cmp_lg_u32 s42, 0")
    A(f"s_cbranch_scc1 {top}")
    A.label(done)
    stamp("h7")
    A("s_waitcnt lgkmcnt(0)")
    A("s_barrier")
    gemv(0, 12)
    A("v_cvt_pk_bf16_f32 v20, v12, v13")
    A("v_cvt_pk_bf16_f32 v22, v14, v15")
    A("v_mov_b32_dpp v20, v24 row_shr:4 row_mask:0xf bank_mask:0x2")
    A("v_mov_b32_dpp v22, v26 row_shr:4 row_mask:0xf bank_mask:0x2")
    A("s_mov_b64 exec, s[56:57]")
    A(f"buffer_store_dwordx4 v[20:23], v8, s[24:27], s52 offen {yst}")
    A("s_mov_b64 exec, -1")
    stamp("h8")
    A("s_cmp_lg_u32 s3, 0")
    A("s_cbranch_scc1 L_hend")
    poll_masked(2, lambda i: A(f"buffer_load_dwordx4 v[{G+4*i}:{G+4*i+3}], v5, s[24:27], s{61+2*i} offen {yld}"),
                lambda i: [G + 4 * i + 1, G + 4 * i + 3], ysl, tagreg="s53")
    stamp("h9")
    U = G + 16
    for i in range(2):
        A(f"v_lshlrev_b32 v{U+4*i}, 16, v{G+4*i}")
        A(f"v_and_b32 v{U+4*i+1}, 0xffff0000, v{G+4*i}")
        A(f"v_lshlrev_b32 v{U+4*i+2}, 16, v{G+4*i+2}")
        A(f"v_and_b32 v{U+4*i+3}, 0xffff0000, v{G+4*i+2}")
    for k in range(4):
        A(f"v_add_f32 v{U+k}, v{U+k}, v{U+4+k}")
    A(f"v_permlane32_swap_b32 v{U}, v{U+2}")
    A(f"v_permlane32_swap_b32 v{U+1}, v{U+3}")
    A(f"v_add_f32 v{U}, v{U}, v{U+2}")
    A(f"v_add_f32 v{U+1}, v{U+1}, v{U+3}")
    A(f"v_add_f32_dpp v{U}, v{U}, v{U} row_ror:8 row_mask:0xf bank_mask:0xf")
    A(f"v_add_f32_dpp v{U+1}, v{U+1}, v{U+1} row_ror:8 row_mask:0xf bank_mask:0xf")
    A(f"v_mov_b32 v{U+2}, v{U}")
    A(f"v_mov_b32 v{U+3}, v{U+1}")
    A(f"v_permlane16_swap_b32 v{U}, v{U+2}")
    A(f"v_permlane16_swap_b32 v{U+1}, v{U+3}")
    A(f"v_add_f32 v{U}, v{U}, v{U+2}")
    A(f"v_add_f32 v{U+1}, v{U+1}, v{U+3}")
    A(f"v_cvt_pk_bf16_f32 v{U+4}, v{U}, v{U+1}")
    A(f"v_mov_b32 v{U+5}, v{U+4}")
    A(f"v_permlane32_swap_b32 v{U+4}, v{U+5}")
    A("s_mov_b64 exec, 0xff")
    A(f"buffer_store_dwordx2 v[{U+4}:{U+5}], v11, s[28:31], s60 offen {ost}")
    A("s_mov_b64 exec, -1")
    A("s_cmp_lg_u32 s2, 0")
    A("s_cbranch_scc1 L_hend")
    A("v_mov_b32 v3, 0")
    A("v_mov_b32 v4, s6")
    A("s_mov_b64 exec, 1")
    A(f"buffer_store_dword v4, v3, s[24:27], 0 offen {ost}")
    A("s_mov_b64 exec, -1")
    A.label("L_hend")
    stamp_store(240)
    A("s_endpgm")

    A.label("L_stream")
    srdp(8, "A_k", 0x10000000)
    A("s_sub_u32 s33, s3, 4")
    A("s_lshl_b32 s38, s33, 5")
    A("s_add_u32 s38, s38, s4")
    A("s_lshl_b32 s39, s38, 8")
    A("s_lshl_b32 s38, s38, 21")
    A(f"s_mul_i32 s28, s33, {rc}")
    A("s_add_u32 s29, s28, s5")
    A("s_and_b32 s29, s29, 7")
    A(f"s_lshl_b32 s29, s29, {12 if ti else 14}")
    A("s_add_u32 s29, s29, s38")
    A("s_mov_b32 s30, s29")
    for q in range(4): A(f"v_add_u32 v{48+q}, {q*(32768 if ti else 4096)}, v2")
    R0 = 64
    def load(q, so, base=None):
        for j in range(4):
            r = (base or R0) + 16 * q + 4 * j
            A(f"buffer_load_dwordx4 v[{r}:{r+3}], v{48+q}, s[8:11], {so} offen offset:{j*1024} nt")
    if pt:
        srdp(76, "A_v", 0x10000000)
        srdp(16, "A_wo", 0x800000)
        srdp(20, "B_wo", 0x800000)
        A("s_lshl_b32 s34, s4, 18")
        A("s_mov_b64 exec, 1")
        A("buffer_load_dword v52, v2, s[8:11], s30 offen nt")
        if pt >= 2:
            A("buffer_load_dword v53, v2, s[16:19], s34 offen nt")
            A("buffer_load_dword v54, v2, s[20:23], s34 offen nt")
        if pt >= 3:
            A("buffer_load_dword v55, v2, s[76:79], s30 offen nt")
        A("s_mov_b64 exec, -1")
    for q in range(4):
        if wofirst: break
        if q == sgate - 1 + 0 and sgate: flag_wait(62, 36, 4, 10, 0)
        load(q, "s30")
    for x in range(xpre):
        A(f"s_add_u32 s30, s30, {NWP*CSB}")
        for q in range(4): load(q, "s30", 128 + 64 * x)
    A("s_mov_b32 s12, s8")
    A("s_mov_b32 s13, s9")
    A(f"s_mov_b32 s14, s{P['A_v']}")
    A(f"s_and_b32 s15, s{P['A_v']+1}, 0xffff")
    srdp(16, "A_wo", 0x800000)
    srdp(20, "B_wo", 0x800000)
    A(f"s_add_u32 s39, s39, {hex(W_CNT)}")
    A(f"s_add_u32 s52, s{P['ws']}, s39")
    A(f"s_addc_u32 s53, s{P['ws']+1}, 0")
    if jbh:
        A("s_lshr_b32 s37, s4, 2")
        A("s_add_u32 s28, s28, s37")
    else:
        A(f"s_add_u32 s28, s28, {JB}")
    A(f"s_and_b32 s28, s28, {8//NBW-1}")
    A(f"s_add_u32 s28, s28, {8*(ns-ksk)}")
    A("s_mov_b32 s57, s29")
    A("v_lshrrev_b32 v3, 3, v1")
    A("v_lshlrev_b32 v3, 11, v3")
    A("v_and_b32 v4, 0x70, v2")
    A("v_add_u32 v3, v3, v4")
    A("v_and_b32 v4, 16, v1")
    A("v_lshlrev_b32 v4, 1, v4")
    A("v_xor_b32 v3, v3, v4")
    A("v_xor_b32 v44, 64, v3")
    A("v_and_b32 v4, 0xf0, v2")
    A("s_andn2_b32 s34, s4, 1")
    A("s_lshl_b32 s34, s34, 18")
    A("s_lshl_b32 s35, s33, 17")
    A("s_add_u32 s34, s34, s35")
    A("s_and_b32 s35, s4, 1")
    A("s_lshl_b32 s35, s35, 3")
    A("s_add_u32 s35, s35, s5")
    A("s_lshl_b32 s35, s35, 7")
    A("s_add_u32 s34, s34, s35")
    A("s_lshl_b32 s35, s33, 13")
    A(f"s_add_u32 s35, s35, {L_WO}")
    flag_wait(62, 36, 4, 10, 0)
    for T_ in range(2):
        for u in range(8):
            A(f"s_add_u32 s37, s35, {T_*32768+u*1024}")
            A("s_mov_b32 m0, s37")
            A(f"s_add_u32 s39, s34, {u*16384}")
            if thr and T_ * 8 + u >= thr: A(f"s_waitcnt vmcnt({thr-1})")
            A(f"buffer_load_dwordx4 v{44 if u&1 else 3}, s[{16+4*T_}:{19+4*T_}], s39 offen nt lds")
    if wofirst:
        for n in range(pre0):
            if thr: A(f"s_waitcnt vmcnt({thr-1})")
            A(f"buffer_load_dwordx4 v[{R0+4*n}:{R0+4*n+3}], v{48+(n>>2)}, s[8:11], s30 offen offset:{(n&3)*1024} nt")
        A("s_mov_b32 s31, s30")
    Q, ACC, M, LS, C, AL, NM, S, T, PL, PH = 8, 12, 20, 21, 22, 23, 24, 28, 32, 34, 35
    init_state(M, LS, ACC)
    mktag()
    A("s_lshl_b32 s43, s33, 8")
    A(f"s_add_u32 s43, s43, {L_QA}")
    A("v_add_u32 v4, s43, v4")
    A(f"v_mov_b32 v7, {L_FL}")
    A("s_lshl_b32 s43, s33, 2")
    A("v_add_u32 v62, s43, v62")
    A("v_and_b32 v5, 15, v1")
    A("v_lshlrev_b32 v5, 5, v5")
    A("v_lshrrev_b32 v6, 5, v1")
    A("v_lshl_add_u32 v5, v6, 4, v5")
    A("s_lshl_b32 s43, s33, 12")
    A(f"s_add_u32 s43, s43, {L_FIFO}")
    A("v_lshl_add_u32 v46, v1, 2, s43")
    A("v_mov_b32 v47, v46")
    A("s_lshl_b32 s43, s4, 3")
    A("s_add_u32 s43, s43, s5")
    A("s_lshl_b32 s43, s43, 12")
    A("s_lshl_b32 s44, s33, 9")
    A("s_add_u32 s43, s43, s44")
    A(f"s_add_u32 s43, s43, {hex(W_PB)}")
    A("s_xor_b32 s6, s6, 0x2545f490")
    A("s_mov_b32 s72, 0xffff")
    A("s_mov_b32 s73, 0xffff")
    for q in range(4):
        A(f"s_mov_b32 s{64+2*q}, {hex(0x11111111 << q)}")
        A(f"s_mov_b32 s{65+2*q}, {hex(0x11111111 << q)}")
    A(f"s_mov_b32 s58, {ns-1}")
    A("s_mov_b32 s59, s58")
    A("s_mov_b32 s56, 0")
    A("s_mov_b32 s63, 0x10000000")
    A("s_mov_b32 s76, s8")
    A("s_mov_b32 s77, s9")
    A("s_mov_b32 s78, 0x10000000")
    A("s_mov_b32 s79, 0x20000")
    stamp("s1")
    A("s_barrier")
    stamp("s2")
    if sprio: A(f"s_setprio {sprio}")
    A(f"ds_read_b128 v[{Q}:{Q+3}], v4")
    def claim():
        A("s_mov_b32 s50, 1")
        A("s_atomic_add s50, s[52:53], 0 glc")
    def issue(q):
        sd, so = ("s[8:11]", "s30") if q < 2 else ("s[76:79]", "s31")
        for j in range(4):
            r = R0 + 16 * q + 4 * j
            A(f"buffer_load_dwordx4 v[{r}:{r+3}], v{48+q}, {sd}, {so} offen offset:{j*1024} nt")
    def setbase(a, b):
        A(f"s_mov_b32 s8, s{12+2*a}"); A(f"s_mov_b32 s9, s{13+2*a}")
        A(f"s_mov_b32 s76, s{12+2*b}"); A(f"s_mov_b32 s77, s{13+2*b}")
    def kq(q, ex, iss=True):
        A(f"s_waitcnt vmcnt({12+ex})")
        K = R0 + 16 * q
        for r in range(4):
            for j in range(4):
                c = "0" if r == 0 else f"v{S+j}"
                A(f"v_dot2_f32_bf16 v{S+j}, v{K+4*j+r}, v{Q+r}, {c}")
        if iss: issue(q)
        A(f"v_add_f32_dpp v{T}, v{S}, v{S} row_ror:8 row_mask:0xf bank_mask:0x3")
        A(f"v_add_f32_dpp v{T+1}, v{S+1}, v{S+1} row_ror:8 row_mask:0xf bank_mask:0x3")
        A(f"v_add_f32_dpp v{T}, v{S+2}, v{S+2} row_ror:8 row_mask:0xf bank_mask:0xc")
        A(f"v_add_f32_dpp v{T+1}, v{S+3}, v{S+3} row_ror:8 row_mask:0xf bank_mask:0xc")
        A(f"v_add_f32_dpp v{S}, v{T}, v{T} row_shl:4 row_mask:0xf bank_mask:0x5")
        A(f"v_add_f32_dpp v{S}, v{T+1}, v{T+1} row_shr:4 row_mask:0xf bank_mask:0xa")
        A(f"v_add_f32_dpp v{S}, v{S}, v{S} quad_perm:[2,3,0,1] row_mask:0xf bank_mask:0xf")
        A(f"v_add_f32_dpp v{S}, v{S}, v{S} quad_perm:[1,0,3,2] row_mask:0xf bank_mask:0xf")
        A(f"v_cndmask_b32 v{C}, v{C}, v{S}, s[{64+2*q}:{65+2*q}]")
    def smx():
        if rnd: round2([C])
        A(f"v_max_f32_dpp v{AL}, v{C}, v{C} row_ror:8 row_mask:0xf bank_mask:0xf")
        for st in (4, 2, 1):
            A(f"v_max_f32_dpp v{AL}, v{AL}, v{AL} row_ror:{st} row_mask:0xf bank_mask:0xf")
        A(f"v_max_f32 v{AL}, v{AL}, v{M}")
        A(f"v_sub_f32 v{NM}, v{M}, v{AL}")
        A(f"v_mov_b32 v{M}, v{AL}")
        A(f"v_sub_f32 v{C}, v{C}, v{AL}")
        A(f"v_mul_f32 v{AL}, s7, v{NM}")
        A(f"v_mul_f32 v{C}, s7, v{C}")
        A(f"v_exp_f32 v{AL}, v{AL}")
        A(f"v_exp_f32 v{C}, v{C}")
        for e in range(8): A(f"v_mul_f32 v{ACC+e}, v{ACC+e}, v{AL}")
        A(f"v_cvt_pk_bf16_f32 v{PL}, v{C}, 0")
        A(f"v_cvt_pk_bf16_f32 v{PH}, 0, v{C}")
        A(f"v_fma_f32 v{LS}, v{LS}, v{AL}, v{C}")
    def vq(q, ln, ex=0, iss=True):
        A(f"s_waitcnt vmcnt({12+ex})")
        V = R0 + 16 * q
        for j in range(4):
            for r in range(4):
                A(f"v_dot2c_f32_bf16_dpp v{ACC+2*r}, v{PL}, v{V+4*j+r} row_newbcast:{4*j+ln} row_mask:0xf bank_mask:0xf")
                A(f"v_dot2c_f32_bf16_dpp v{ACC+2*r+1}, v{PH}, v{V+4*j+r} row_newbcast:{4*j+ln} row_mask:0xf bank_mask:0xf")
        if iss: issue(q)
    def nextdyn(after):
        exh = lab("exh")
        A("s_waitcnt lgkmcnt(0)")
        A("s_add_u32 s56, s56, 1")
        A(f"s_cmp_gt_u32 s56, {NDYN}")
        A(f"s_cbranch_scc1 {exh}")
        A(f"s_cmp_ge_u32 s50, {NDYN}")
        A(f"s_cbranch_scc1 {exh}")
        A("s_lshr_b32 s37, s50, 1")
        A("s_lshl_b32 s37, s37, 3")
        A("s_add_u32 s37, s37, s28")
        A("s_lshl_b32 s37, s37, 1")
        A("s_and_b32 s36, s50, 1")
        A("s_add_u32 s37, s37, s36")
        A(f"s_add_u32 s36, s50, {T2//2 - 2*NSK}")
        A(f"s_cmp_lt_u32 s50, {2*NSK}")
        A("s_cselect_b32 s36, s37, s36")
        if ti:
            A("s_lshr_b32 s30, s36, 4")
            A("s_lshl_b32 s30, s30, 17")
            A("s_bfe_u32 s37, s36, 0x30001")
            A("s_lshl_b32 s37, s37, 12")
            A("s_add_u32 s30, s30, s37")
            A("s_and_b32 s37, s36, 1")
            A("s_lshl_b32 s37, s37, 16")
            A("s_add_u32 s30, s30, s37")
        else:
            A("s_lshl_b32 s30, s36, 13")
        A("s_add_u32 s30, s30, s38")
        A(f"s_sub_u32 s31, s30, {65536 if ti else 8192}")
        setbase(0, 1)
        A("s_mov_b32 s55, 3")
        A(f"s_cmp_lt_u32 s50, {max(0, NDYN-wox)}")
        A(f"s_cbranch_scc1 {after}")
        flag_add(62, 16)
        A(f"s_branch {after}")
        A.label(exh)
        A("s_mov_b32 s30, s63")
        A("s_mov_b32 s31, s63")
        A("s_mov_b32 s55, 2")
        flag_add(62, 16)
        flag_add(62, 48)
        stamp("s3")
    def adv():
        A(f"s_add_u32 s29, s29, {NWP*CSB}")
        A("s_mov_b32 s30, s29")
        A("s_mov_b32 s31, s29")
    CN = 25
    n0 = 16 - L
    assert 2 <= L <= 8
    def ld(n):
        q, j = n >> 2, n & 3
        sd, so = ("s[8:11]", "s30") if q < 2 else ("s[76:79]", "s31")
        A(f"buffer_load_dwordx4 v[{R0+4*n}:{R0+4*n+3}], v{48+q}, {sd}, {so} offen offset:{j*1024} nt")
    def kred(q):
        A(f"v_add_f32_dpp v{T}, v{S}, v{S} row_ror:8 row_mask:0xf bank_mask:0x3")
        A(f"v_add_f32_dpp v{T+1}, v{S+1}, v{S+1} row_ror:8 row_mask:0xf bank_mask:0x3")
        A(f"v_add_f32_dpp v{T}, v{S+2}, v{S+2} row_ror:8 row_mask:0xf bank_mask:0xc")
        A(f"v_add_f32_dpp v{T+1}, v{S+3}, v{S+3} row_ror:8 row_mask:0xf bank_mask:0xc")
        A(f"v_add_f32_dpp v{S}, v{T}, v{T} row_shl:4 row_mask:0xf bank_mask:0x5")
        A(f"v_add_f32_dpp v{S}, v{T+1}, v{T+1} row_shr:4 row_mask:0xf bank_mask:0xa")
        A(f"v_add_f32_dpp v{S}, v{S}, v{S} quad_perm:[2,3,0,1] row_mask:0xf bank_mask:0xf")
        A(f"v_add_f32_dpp v{S}, v{S}, v{S} quad_perm:[1,0,3,2] row_mask:0xf bank_mask:0xf")
        A(f"v_cndmask_b32 v{C}, v{C}, v{S}, s[{64+2*q}:{65+2*q}]")
    def k1(n):
        j = n & 3
        for r in range(4):
            c = "0" if r == 0 else f"v{S+j}"
            A(f"v_dot2_f32_bf16 v{S+j}, v{R0+4*n+r}, v{Q+r}, {c}")
        if j == 3: kred(n >> 2)
    def v1(n):
        q, j = n >> 2, n & 3
        for r in range(4):
            A(f"v_dot2c_f32_bf16_dpp v{ACC+2*r}, v{PL}, v{R0+4*n+r} row_newbcast:{4*j+q} row_mask:0xf bank_mask:0xf")
            A(f"v_dot2c_f32_bf16_dpp v{ACC+2*r+1}, v{PH}, v{R0+4*n+r} row_newbcast:{4*j+q} row_mask:0xf bank_mask:0xf")
    def fifo_pre():
        A(f"ds_read_b32 v{CN}, v47")
        A("v_add_u32 v47, 256, v47")
        A("s_waitcnt lgkmcnt(0)")
    def decK():
        last, go = lab("lk"), lab("gk")
        A("s_cmp_eq_u32 s58, 0")
        A(f"s_cbranch_scc1 {last}")
        adv()
        A("s_sub_u32 s58, s58, 1")
        A(f"s_branch {go}")
        A.label(last)
        stamp("sk")
        A("s_mov_b32 s29, s57")
        A("s_mov_b32 s30, s29")
        A("s_mov_b32 s31, s29")
        fifo_pre()
        setbase(1, 1)
        A("s_mov_b32 s55, 1")
        A.label(go)
    ak_ = [int(c) for c in ak] if ak else [L] * 16
    av_ = [int(c) for c in av] if av else [L] * 16
    assert wofirst and pre0 == L and ak_[15] == L and av_[15] == L
    def body(a, cons, dec):
        nxt = L
        done_dec = False
        for n in range(16):
            tgt = n + a[n]
            assert tgt >= nxt - 1 and a[n] <= 8
            if tgt >= 16 and not done_dec:
                assert nxt >= 16 or True
                pre = [i for i in range(nxt, 16)]
                if not pre: dec()
                A(f"s_waitcnt vmcnt({nxt-1-n})")
                for i in pre: ld(i)
                nxt = 16
                if pre: dec()
                done_dec = True
                for i in range(nxt, tgt + 1): ld(i & 15)
                nxt = tgt + 1
            else:
                A(f"s_waitcnt vmcnt({nxt-1-n})")
                for i in range(nxt, tgt + 1): ld(i & 15)
                nxt = max(nxt, tgt + 1)
            cons(n)
        assert nxt == 16 + L
    A("s_mov_b32 s55, 0")
    A(f"s_waitcnt vmcnt({L}) lgkmcnt(0)")
    flag_add(7, 8)
    A.label("L_K")
    body(ak_, k1, decK)
    A(f"ds_write_b32 v46, v{C}")
    A("v_add_u32 v46, 256, v46")
    A("s_cmp_eq_u32 s55, 0")
    A("s_cbranch_scc1 L_K")
    A.label("L_V")
    A(f"v_mov_b32 v{C}, v{CN}")
    smx()
    def decV():
        adv()
        A("s_sub_u32 s59, s59, 1")
        A(f"ds_read_b32 v{CN}, v47")
        A("v_add_u32 v47, 256, v47")
    body(av_, v1, decV)
    A("s_waitcnt lgkmcnt(0)")
    A(f"s_cmp_ge_u32 s59, {nd}")
    A("s_cbranch_scc1 L_V")
    for n in range(L, 16): ld(n)
    flag_wait(7, 40, 1, 36, 1)
    A.label("L_VD")
    A("s_cmp_lg_u32 s59, 0")
    A("s_cbranch_scc1 L_VD1")
    claim()
    A.label("L_VD1")
    A(f"v_mov_b32 v{C}, v{CN}")
    smx()
    vq(0, 0, 0, False); vq(1, 1, -4, False)
    A("s_cmp_eq_u32 s59, 0")
    A("s_cbranch_scc1 L_VD2")
    adv()
    A("s_sub_u32 s59, s59, 1")
    fifo_pre()
    A("s_branch L_VD3")
    A.label("L_VD2")
    nextdyn("L_VD3")
    A.label("L_VD3")
    issue(0); issue(1)
    vq(2, 2); vq(3, 3)
    A("s_cmp_eq_u32 s55, 1")
    A("s_cbranch_scc1 L_VD")
    A("s_cmp_eq_u32 s55, 2")
    A("s_cbranch_scc1 L_fin")
    A.label("L_top2")
    claim()
    A(f"v_mov_b32 v{C}, 0xf149f2ca")
    kq(0, 0, False); kq(1, -4, False)
    smx()
    nextdyn("L_2")
    A.label("L_2")
    issue(0); issue(1)
    vq(2, 0); vq(3, 1)
    A("s_cmp_eq_u32 s55, 3")
    A("s_cbranch_scc1 L_top2")
    A.label("L_fin")
    stamp("s5")
    for st in (8, 4, 2, 1):
        A(f"v_add_f32_dpp v{LS}, v{LS}, v{LS} row_ror:{st} row_mask:0xf bank_mask:0xf")
    finalize(M, LS, ACC, 24, 40, 42)
    A("v_mov_b32 v41, v40")
    A("v_xor_b32 v43, s6, v42")
    A("v_permlane16_swap_b32 v40, v41")
    A("v_bitop3_b32 v43, v40, v41, v43 bitop3:0x96")
    stamp("s4")
    A("s_mov_b64 exec, s[72:73]")
    A(f"buffer_store_dwordx4 v[40:43], v5, s[24:27], s43 offen {ast}")
    flag_add(62, 48)
    stamp_store(240)
    A.label("L_end")
    A("s_endpgm")

    body = A.render()
    nv = 256
    txt = HEADER + f"; @launch grid=(256,1,1) block=(512,1,1) lds={L_TOT}\n"
    txt += '.amdgcn_target "amdgcn-amd-amdhsa--gfx950"\n.text\n'
    txt += f".globl {NAME}\n.p2align 8\n.type {NAME},@function\n"
    txt += body
    txt += '.section .rodata,"a"\n.p2align 6\n'
    txt += f".amdhsa_kernel {NAME}\n"
    txt += f"  .amdhsa_next_free_vgpr {nv}\n  .amdhsa_next_free_sgpr 102\n  .amdhsa_accum_offset {nv}\n"
    txt += "  .amdhsa_group_segment_fixed_size 0\n  .amdhsa_kernarg_size 104\n  .amdhsa_user_sgpr_count 2\n"
    txt += "  .amdhsa_user_sgpr_kernarg_segment_ptr 1\n  .amdhsa_system_sgpr_workgroup_id_x 1\n.end_amdhsa_kernel\n"
    return txt

if __name__ == "__main__":
    import argparse
    ap = argparse.ArgumentParser()
    ap.add_argument("out")
    ap.add_argument("--kw", default="")
    a = ap.parse_args()
    kw = eval("dict(" + a.kw + ")")
    open(a.out, "w").write(gen(**kw))
```

```python
import sys, struct
sys.path.insert(0, "dev")
from asmlib import Asm
from gen import HEADER, NAME

L_W = 0
L_FIFO = 32768
L_WO = 65536
L_QA = 131072
L_QB = L_QA + 1024
L_O = L_QB + 2048
L_FL = L_O + 4608
L_X = L_FL + 64
L_TOT = L_X + 4352
W_CNT = 0x1000
W_QP = 0x10000
W_PA = 0x100000
W_PB = 0x200000
W_OB2 = 0x100000
W_STAMP = 0x20000000

F32 = lambda x: struct.unpack("<I", struct.pack("<f", x))[0]
CEXP = struct.unpack("<I", struct.pack("<f", 1.4426950408889634 / (128 ** 0.5)))[0]

def gen(TD=3, CS=4, ns=12, NBW=1, JB=2, ksk=4, stamps=0, spin=200000, hst=("h1", "h2", "h3", "h4"),
        sst=("s1", "s2", "s3", "s4"), rot=1, wox=8, psl=16, qsl=4, ysl=0, early=0, esl=16,
        bst="sc1 nt", bld="sc1 nt", ast="sc1", ald="sc1", ab=(), wolate=0, pasl=0, touch=0, woh=0, kp="nt", vp="nt", til=0, gate=3, n2=0, n1=0, rc=0, rnd=0, mixed=0, warm=0, ybk=0, sgate=1, qst="sc1", qld="sc1", yst=None, yld=None, xpre=0, ost="sc1", pt=0, L=6, jbh=1, sprio=0, wofirst=0, thr=0, pre0=16, nd=1, ti=1, gb=1, w1=127, w1n=2, l1sl=64, ak=None, av=None, rhs=None, pbk=0, pbt=64, pd=0, emid=1):
    tl = 4
    ksk = 0
    yst = yst or ast; yld = yld or ald
    A = Asm()
    NWP = 8
    NT = 512
    CD = CS
    CSB = CS * 4096
    assert ns * NWP * CS <= NT and (NT - ns * NWP * CS) % CD == 0
    NSK = NBW * ksk
    assert n1 == 0 and xpre == 0
    assert NBW == 1 and not til and (2 * n2 + n1) % CS == 0
    T2 = ns * NWP * CS
    NDYN = 2 * NSK + (NT - T2) // 2
    assert CS == 4 and ns - ksk >= 2 + nd and ns <= 16 and nd >= 1
    NP = 2 * NBW
    BT = 16 // NBW
    uid = [0]
    def lab(p):
        uid[0] += 1
        return f"L_{p}_{uid[0]}"

    P = dict(A_x=64, A_k=66, A_v=68, A_wq=70, A_wo=72, B_x=74, B_k=76, B_v=78, B_wq=80, B_wo=82, out=84, dbg=86, ws=88)
    def srd(d, lo, hi, n):
        A(f"s_mov_b32 s{d}, s{lo}")
        A(f"s_and_b32 s{d+1}, s{hi}, 0xffff")
        A(f"s_mov_b32 s{d+2}, {hex(n)}")
        A(f"s_mov_b32 s{d+3}, 0x20000")
    def srdp(d, name, n): srd(d, P[name], P[name] + 1, n)

    def stamp(i):
        if not stamps: return
        if isinstance(i, str):
            lst = hst if i[0] == "h" else sst
            if i not in lst: return
            i = 1 + list(lst).index(i)
        A(f"s_memrealtime s[{90+2*i}:{91+2*i}]")
    def stamp_store(vt):
        if not stamps: return
        A(f"s_memrealtime s[{90+2*(stamps-1)}:{91+2*(stamps-1)}]")
        A("s_waitcnt lgkmcnt(0)")
        A("s_lshl_b32 s32, s2, 3")
        A("s_add_u32 s32, s32, s3")
        A(f"s_mul_i32 s32, s32, {stamps*8}")
        A(f"s_add_u32 s32, s32, {hex(W_STAMP)}")
        for i in range(stamps):
            A(f"v_mov_b32 v{vt+2*i}, s{90+2*i}")
            A(f"v_mov_b32 v{vt+2*i+1}, s{91+2*i}")
        A(f"v_mov_b32 v{vt+2*stamps}, 0")
        A("s_mov_b64 exec, 1")
        for i in range(stamps):
            A(f"buffer_store_dwordx2 v[{vt+2*i}:{vt+2*i+1}], v{vt+2*stamps}, s[24:27], s32 offen offset:{8*i}")
        A("s_mov_b64 exec, -1")

    def chain(op3, op2, dst, regs):
        if len(regs) == 2:
            A(f"{op2} v{dst}, {regs[0]}, {regs[1]}"); return
        A(f"{op3} v{dst}, {regs[0]}, {regs[1]}, {regs[2]}")
        i = 3
        while i < len(regs):
            if i + 1 < len(regs):
                A(f"{op3} v{dst}, v{dst}, {regs[i]}, {regs[i+1]}"); i += 2
            else:
                A(f"{op2} v{dst}, v{dst}, {regs[i]}"); i += 1
    def scores(K, Q, S, n):
        for r in range(4):
            for j in range(n):
                c = "0" if r == 0 else f"v{S+j}"
                A(f"v_dot2_f32_bf16 v{S+j}, v{K+4*j+r}, v{Q+r}, {c}")
        for st in (8, 4, 2, 1):
            for j in range(n):
                A(f"v_add_f32_dpp v{S+j}, v{S+j}, v{S+j} row_ror:{st} row_mask:0xf bank_mask:0xf")
    def round2(regs):
        for r in regs: A(f"v_cvt_pk_bf16_f32 v{r}, 0, v{r}")
        for r in regs: A(f"v_mul_f32 v{r}, {hex(F32(128 ** -0.5))}, v{r}")
        for r in regs: A(f"v_cvt_pk_bf16_f32 v{r}, 0, v{r}")
    def softmax(S, n, M, LS, ACC, AL, NM, PL, PH):
        if rnd: round2([S + j for j in range(n)])
        chain("v_max3_f32", "v_max_f32", AL, [f"v{S+j}" for j in range(n)] + [f"v{M}"])
        A(f"v_sub_f32 v{NM}, v{M}, v{AL}")
        A(f"v_mov_b32 v{M}, v{AL}")
        A(f"v_mul_f32 v{AL}, s7, v{NM}")
        A(f"v_mul_f32 v{NM}, s7, v{M}")
        A(f"v_exp_f32 v{AL}, v{AL}")
        for j in range(n):
            A(f"v_fma_f32 v{S+j}, v{S+j}, s7, -v{NM}")
        for j in range(n):
            A(f"v_exp_f32 v{S+j}, v{S+j}")
        for e in range(8):
            A(f"v_mul_f32 v{ACC+e}, v{ACC+e}, v{AL}")
        A(f"v_fma_f32 v{LS}, v{LS}, v{AL}, v{S}")
        for j in range(1, n):
            A(f"v_add_f32 v{LS}, v{LS}, v{S+j}")
        for j in range(n):
            A(f"v_cvt_pk_bf16_f32 v{PL+j}, v{S+j}, 0")
            A(f"v_cvt_pk_bf16_f32 v{PH+j}, 0, v{S+j}")
    def pv(V, n, ACC, PL, PH):
        for j in range(n):
            for r in range(4):
                A(f"v_dot2_f32_bf16 v{ACC+2*r}, v{V+4*j+r}, v{PL+j}, v{ACC+2*r}")
                A(f"v_dot2_f32_bf16 v{ACC+2*r+1}, v{V+4*j+r}, v{PH+j}, v{ACC+2*r+1}")
    def init_state(M, LS, ACC):
        for e in range(8): A(f"v_mov_b32 v{ACC+e}, 0")
        A(f"v_mov_b32 v{M}, 0xf149f2ca")
        A(f"v_mov_b32 v{LS}, 0")
    def finalize(M, LS, ACC, T, OPK, OLSE):
        A(f"v_mov_b32 v{T+1}, v{M}")
        A(f"v_mov_b32 v{T+2}, v{M}")
        A(f"v_permlane32_swap_b32 v{T+1}, v{T+2}")
        A(f"v_max_f32 v{T+1}, v{T+1}, v{T+2}")
        A(f"v_mov_b32 v{T+2}, v{T+1}")
        A(f"v_permlane16_swap_b32 v{T+1}, v{T+2}")
        A(f"v_max_f32 v{T}, v{T+1}, v{T+2}")
        A(f"v_sub_f32 v{T+1}, v{M}, v{T}")
        A(f"v_mul_f32 v{T+1}, s7, v{T+1}")
        A(f"v_exp_f32 v{T+1}, v{T+1}")
        A(f"v_mul_f32 v{LS}, v{LS}, v{T+1}")
        for e in range(8): A(f"v_mul_f32 v{ACC+e}, v{ACC+e}, v{T+1}")
        A(f"v_mov_b32 v{T+1}, v{LS}")
        A(f"v_mov_b32 v{T+2}, v{LS}")
        for e in range(4): A(f"v_permlane32_swap_b32 v{ACC+e}, v{ACC+e+4}")
        A(f"v_permlane32_swap_b32 v{T+1}, v{T+2}")
        for e in range(4): A(f"v_add_f32 v{ACC+e}, v{ACC+e}, v{ACC+e+4}")
        A(f"v_add_f32 v{T+1}, v{T+1}, v{T+2}")
        A(f"v_mov_b32 v{T+2}, v{T+1}")
        for e in range(2): A(f"v_permlane16_swap_b32 v{ACC+e}, v{ACC+e+2}")
        A(f"v_permlane16_swap_b32 v{T+1}, v{T+2}")
        A(f"v_add_f32 v{T+3}, v{T+1}, v{T+2}")
        for e in range(2): A(f"v_add_f32 v{ACC+e}, v{ACC+e}, v{ACC+e+2}")
        A(f"v_rcp_f32 v{T+1}, v{T+3}")
        A(f"v_log_f32 v{T+2}, v{T+3}")
        A(f"v_mul_f32 v{ACC}, v{ACC}, v{T+1}")
        A(f"v_mul_f32 v{ACC+1}, v{ACC+1}, v{T+1}")
        A(f"v_fma_f32 v{OLSE}, v{T}, s7, v{T+2}")
        A(f"v_cvt_pk_bf16_f32 v{OPK}, v{ACC}, v{ACC+1}")
    def combine(G, n, OPK, OLSE=None):
        T1, T2, T3, T4 = 56, 57, 58, 59
        chain("v_max3_f32", "v_max_f32", T1, [f"v{G+4*i+2}" for i in range(n)])
        for i in range(n): A(f"v_sub_f32 v{G+4*i+2}, v{G+4*i+2}, v{T1}")
        for i in range(n): A(f"v_exp_f32 v{G+4*i+2}, v{G+4*i+2}")
        for i in range(n):
            A(f"v_lshlrev_b32 v{G+4*i+1}, 16, v{G+4*i}")
            A(f"v_and_b32 v{G+4*i+3}, 0xffff0000, v{G+4*i}")
        A(f"v_add_f32 v{T4}, v{G+2}, v{G+6}")
        A(f"v_mul_f32 v{T2}, v{G+2}, v{G+1}")
        A(f"v_mul_f32 v{T3}, v{G+2}, v{G+3}")
        for i in range(2, n): A(f"v_add_f32 v{T4}, v{T4}, v{G+4*i+2}")
        if OLSE is not None: A(f"v_log_f32 v{OLSE}, v{T4}")
        A(f"v_rcp_f32 v{T4}, v{T4}")
        for i in range(1, n):
            A(f"v_fmac_f32 v{T2}, v{G+4*i+2}, v{G+4*i+1}")
            A(f"v_fmac_f32 v{T3}, v{G+4*i+2}, v{G+4*i+3}")
        if OLSE is not None: A(f"v_add_f32 v{OLSE}, v{OLSE}, v{T1}")
        A(f"v_mul_f32 v{T2}, v{T2}, v{T4}")
        A(f"v_mul_f32 v{T3}, v{T3}, v{T4}")
        A(f"v_cvt_pk_bf16_f32 v{OPK}, v{T2}, v{T3}")
    def chk(g, m, tg="s6"):
        A(f"v_bitop3_b32 v56, v{g}, v{g+1}, v{g+2} bitop3:0x96")
        A(f"v_xor_b32 v56, v56, v{g+3}")
        A(f"v_cmp_ne_u32 s[{m}:{m+1}], {tg}, v56")
    def combine2(G, n, addr_v, off):
        T1, T2, DEN, A0 = 56, 57, 58, 36
        if n == 1: A(f"v_mov_b32 v{T1}, v{G+2}")
        else: chain("v_max3_f32", "v_max_f32", T1, [f"v{G+4*u+2}" for u in range(n)])
        A(f"v_mov_b32 v{T2}, v{T1}")
        for u in range(n):
            A(f"v_lshlrev_b32 v{G+4*u+3}, 16, v{G+4*u}")
        A(f"v_permlane32_swap_b32 v{T1}, v{T2}")
        A(f"v_max_f32 v{T1}, v{T1}, v{T2}")
        for u in range(n): A(f"v_sub_f32 v{G+4*u+2}, v{G+4*u+2}, v{T1}")
        for u in range(n): A(f"v_exp_f32 v{G+4*u+2}, v{G+4*u+2}")
        for u in range(n): A(f"v_and_b32 v{G+4*u}, 0xffff0000, v{G+4*u}")
        for u in range(n):
            op = "v_mul_f32" if u == 0 else "v_fmac_f32"
            A(f"{op} v{A0}, v{G+4*u+2}, v{G+4*u+3}")
            A(f"{op} v{A0+1}, v{G+4*u+2}, v{G+4*u}")
            A(f"v_lshlrev_b32 v{G+4*u+3}, 16, v{G+4*u+1}")
            A(f"v_and_b32 v{G+4*u+1}, 0xffff0000, v{G+4*u+1}")
            if u == 0: A(f"v_mov_b32 v{DEN}, v{G+2}")
            else: A(f"v_add_f32 v{DEN}, v{DEN}, v{G+4*u+2}")
        A(f"v_mov_b32 v{DEN+1}, v{DEN}")
        for u in range(n):
            op = "v_mul_f32" if u == 0 else "v_fmac_f32"
            A(f"{op} v{A0+2}, v{G+4*u+2}, v{G+4*u+3}")
            A(f"{op} v{A0+3}, v{G+4*u+2}, v{G+4*u+1}")
        A(f"v_permlane32_swap_b32 v{DEN}, v{DEN+1}")
        A(f"v_add_f32 v{DEN}, v{DEN}, v{DEN+1}")
        A(f"v_permlane32_swap_b32 v{A0}, v{A0+2}")
        A(f"v_permlane32_swap_b32 v{A0+1}, v{A0+3}")
        A(f"v_rcp_f32 v{DEN}, v{DEN}")
        A(f"v_add_f32 v{A0}, v{A0}, v{A0+2}")
        A(f"v_add_f32 v{A0+1}, v{A0+1}, v{A0+3}")
        A(f"v_mul_f32 v{A0}, v{A0}, v{DEN}")
        A(f"v_mul_f32 v{A0+1}, v{A0+1}, v{DEN}")
        A(f"v_cvt_pk_bf16_f32 v{A0}, v{A0}, v{A0+1}")
        A(f"ds_write_b32 v{addr_v}, v{A0} offset:{off}")
    def poll_masked(n, issue1, tagregs, sleep, mbase=64, extra=None, tagreg="s6"):
        top, done = lab("pk"), lab("pkdone")
        A(f"s_mov_b32 s42, {spin}")
        for i in range(n): A(f"s_mov_b64 s[{mbase+2*i}:{mbase+2*i+1}], -1")
        A.label(top)
        for i in range(n):
            A(f"s_mov_b64 exec, s[{mbase+2*i}:{mbase+2*i+1}]")
            issue1(i)
        A("s_mov_b64 exec, -1")
        if extra: extra[0]()
        A("s_waitcnt vmcnt(0) lgkmcnt(0)" if extra else "s_waitcnt vmcnt(0)")
        for i in range(n):
            tr = tagregs(i)
            if isinstance(tr, int):
                chk(tr, mbase + 2 * i)
                if i == 0: A(f"s_mov_b64 s[40:41], s[{mbase}:{mbase+1}]")
                else: A(f"s_or_b64 s[40:41], s[40:41], s[{mbase+2*i}:{mbase+2*i+1}]")
                continue
            A(f"v_cmp_ne_u32 s[{mbase+2*i}:{mbase+2*i+1}], {tagreg}, v{tr[0]}")
            for r in tr[1:]:
                A(f"v_cmp_ne_u32 vcc, {tagreg}, v{r}")
                A(f"s_or_b64 s[{mbase+2*i}:{mbase+2*i+1}], s[{mbase+2*i}:{mbase+2*i+1}], vcc")
            if i == 0: A(f"s_mov_b64 s[40:41], s[{mbase}:{mbase+1}]")
            else: A(f"s_or_b64 s[40:41], s[40:41], s[{mbase+2*i}:{mbase+2*i+1}]")
        A("s_cmp_eq_u64 s[40:41], 0")
        A(f"s_cbranch_scc1 {done}")
        if extra: extra[1]()
        elif sleep: A(f"s_sleep {sleep}")
        A("s_sub_u32 s42, s42, 1")
        A("s_cmp_lg_u32 s42, 0")
        A(f"s_cbranch_scc1 {top}")
        A.label(done)
    def flag_add(addr_v, off=0):
        A("s_mov_b64 exec, 1")
        A(f"ds_add_u32 v{addr_v}, v63 offset:{off}")
        A("s_mov_b64 exec, -1")
    def flag_wait(addr_v, off, target, tmp_v, sleep):
        top, done = lab("fw"), lab("fwdone")
        A(f"s_mov_b32 s42, {spin*16}")
        A.label(top)
        A(f"ds_read_b32 v{tmp_v}, v{addr_v} offset:{off}")
        A("s_waitcnt lgkmcnt(0)")
        A(f"v_readfirstlane_b32 s47, v{tmp_v}")
        A(f"s_cmp_ge_u32 s47, {target}")
        A(f"s_cbranch_scc1 {done}")
        if sleep: A(f"s_sleep {sleep}")
        A("s_sub_u32 s42, s42, 1")
        A("s_cmp_lg_u32 s42, 0")
        A(f"s_cbranch_scc1 {top}")
        A.label(done)
    def mktag():
        A("s_mul_i32 s6, s6, 0x9e3779b1")
        A("s_add_u32 s6, s6, 0x7f4a7c15")
        A("s_cmp_eq_u32 s6, 0")
        A("s_cselect_b32 s6, 2, s6")

    A.label(NAME)
    A("s_cmp_ge_u32 s2, 256")
    A("s_cbranch_scc1 L_end")
    for i in range(stamps): stamp(i)
    A("s_load_dwordx16 s[64:79], s[0:1], 0")
    A("s_load_dwordx8 s[80:87], s[0:1], 64")
    A("s_load_dwordx2 s[88:89], s[0:1], 96")
    A("v_lshrrev_b32 v1, 6, v0")
    A("v_readfirstlane_b32 s3, v1")
    A("v_and_b32 v1, 63, v0")
    A("s_lshr_b32 s4, s2, 3")
    A("s_and_b32 s5, s2, 7")
    if rot:
        A(f"s_mul_i32 s7, s5, {rot}")
        A("s_add_u32 s4, s4, s7")
        A("s_and_b32 s4, s4, 31")
    A(f"s_mov_b32 s7, {hex(F32(1.4426950408889634) if rnd else CEXP)}")
    A("v_lshlrev_b32 v2, 4, v1")
    A(f"v_mov_b32 v62, {L_FL}")
    A("v_mov_b32 v63, 1")
    A("v_mov_b32 v7, 0")
    A("v_and_b32 v6, 15, v1")
    A("v_lshl_add_u32 v6, v6, 2, v62")
    A("ds_write_b32 v6, v7")
    A("s_waitcnt lgkmcnt(0)")
    A("s_barrier")
    A("s_load_dword s6, s[88:89], 0")
    srdp(24, "ws", 0x40000000)
    A("s_cmp_ge_u32 s3, 4")
    A("s_cbranch_scc1 L_stream")

    stamp("h0a")
    A("s_lshr_b32 s33, s5, 2")
    A("s_bfe_u32 s34, s5, 0x10001")
    A("s_and_b32 s35, s5, 1")
    A("s_cmp_eq_u32 s33, 0")
    A(f"s_cselect_b32 s36, s{P['A_wq']}, s{P['B_wq']}")
    A(f"s_cselect_b32 s37, s{P['A_wq']+1}, s{P['B_wq']+1}")
    A(f"s_cselect_b32 s38, s{P['A_x']}, s{P['B_x']}")
    A(f"s_cselect_b32 s39, s{P['A_x']+1}, s{P['B_x']+1}")
    srd(12, 36, 37, 0x800000)
    srd(8, 38, 39, 8192)
    A("v_lshrrev_b32 v3, 3, v1")
    A("v_lshlrev_b32 v3, 13, v3")
    A("v_and_b32 v4, 7, v1")
    A("v_lshl_add_u32 v3, v4, 4, v3")
    A("v_and_b32 v4, 16, v1")
    A("v_lshlrev_b32 v4, 1, v4")
    A("v_xor_b32 v3, v3, v4")
    A("v_xor_b32 v4, 64, v3")
    A("s_lshl_b32 s43, s35, 9")
    A("s_lshl_b32 s44, s3, 7")
    A("s_add_u32 s43, s43, s44")
    A("s_lshl_b32 s43, s43, 13")
    A("s_lshl_b32 s44, s4, 8")
    A("s_add_u32 s43, s43, s44")
    A("s_lshl_b32 s44, s34, 7")
    A("s_add_u32 s43, s43, s44")
    A("s_lshl_b32 s44, s3, 14")
    for u in range(16):
        A("s_mov_b32 m0, s44")
        A(f"buffer_load_dwordx4 v{3+(u&1)}, s[12:15], s43 offen nt lds")
        if u < 15:
            A("s_add_u32 s43, s43, 0x10000")
            A("s_add_u32 s44, s44, 1024")
    XF = 64
    A("s_lshl_b32 s43, s3, 11")
    A("s_lshl_b32 s44, s35, 10")
    A("s_add_u32 s43, s43, s44")
    A("s_mul_i32 s44, s3, 1088")
    A(f"s_add_u32 s44, s44, {L_X}")
    A("s_mov_b32 m0, s44")
    A("buffer_load_dwordx4 v2, s[8:11], s43 offen lds")
    if not gb: flag_add(62, 36)
    A("s_or_b32 s43, s5, s3")
    A("s_cmp_lg_u32 s43, 0")
    A("s_cbranch_scc1 L_noinit")
    A("v_lshlrev_b32 v6, 13, v1")
    A("s_lshl_b32 s43, s4, 8")
    A(f"s_add_u32 s43, s43, {hex(W_CNT)}")
    A("s_mov_b64 exec, 15")
    A("buffer_store_dword v7, v6, s[24:27], s43 offen sc1")
    A("s_mov_b64 exec, -1")
    A.label("L_noinit")
    srdp(16, "B_k", 0x2000000)
    srdp(20, "B_v", 0x2000000)
    A("s_lshr_b32 s59, s2, 4")
    A("s_and_b32 s58, s2, 15")
    A("s_lshl_b32 s60, s59, 21")
    A("s_lshl_b32 s61, s58, 15")
    A("s_add_u32 s60, s60, s61")
    A("s_lshl_b32 s61, s3, 13")
    A("s_add_u32 s60, s60, s61")
    A(f"s_add_u32 s60, s60, {6144*256}")
    A("s_add_u32 s61, s60, 4096")
    KB, VB = 192, 224
    for base, sd in ((KB, "s[16:19]"), (VB, "s[20:23]")):
        for u in range(8):
            A(f"buffer_load_dwordx4 v[{base+4*u}:{base+4*u+3}], v2, {sd}, s{60+u//4} offen offset:{(u%4)*1024} nt")
    if gb: flag_add(62, 36)
    stamp("h0b")
    A("s_waitcnt lgkmcnt(0)")
    A("v_and_b32 v11, 3, v1")
    A("v_mul_u32_u24 v11, 1088, v11")
    A("v_lshrrev_b32 v5, 4, v1")
    A("v_lshl_add_u32 v11, v5, 4, v11")
    A(f"v_add_u32 v11, {L_X}, v11")
    srdp(28, "out", 16384)
    if woh:
        srdp(8, "A_wo", 0x800000)
        srdp(12, "B_wo", 0x800000)
    A("v_lshrrev_b32 v5, 4, v1")
    A("v_lshlrev_b32 v5, 3, v5")
    A("v_bfe_u32 v6, v1, 2, 2")
    A("v_add_u32 v5, v5, v6")
    A("v_and_b32 v6, 3, v1")
    A("v_lshlrev_b32 v6, 3, v6")
    A("v_lshl_add_u32 v8, v5, 7, v6")
    A("v_bfe_u32 v12, v1, 3, 2")
    A("v_xor_b32 v12, s3, v12")
    A("v_lshl_add_u32 v8, v12, 5, v8")
    A(f"v_add_u32 v9, {L_WO}, v8")
    mktag()
    A("v_and_b32 v4, 3, v1")
    A("v_lshlrev_b32 v4, 10, v4")
    A("v_lshrrev_b32 v5, 4, v1")
    A("v_lshl_add_u32 v4, v5, 5, v4")
    A("v_and_b32 v5, 4, v1")
    A("v_lshl_add_u32 v4, v5, 2, v4")
    A("s_lshl_b32 s43, s4, 1")
    A("s_add_u32 s43, s43, s33")
    A("s_lshl_b32 s43, s43, 1")
    A("s_add_u32 s43, s43, s35")
    A("s_lshl_b32 s43, s43, 12")
    A("s_lshl_b32 s44, s34, 9")
    A("s_add_u32 s43, s43, s44")
    A("s_lshl_b32 s44, s3, 7")
    A("s_add_u32 s43, s43, s44")
    A(f"s_add_u32 s43, s43, {hex(W_QP)}")
    for r in (21, 23): A(f"v_mov_b32 v{r}, s6")
    A("s_mov_b32 s56, 0x00ff00ff")
    A("s_mov_b32 s57, 0x00ff00ff")
    A("s_waitcnt vmcnt(16)")
    flag_add(62, 0)
    flag_wait(62, 0, 4, 10, 0)
    stamp("h1")
    WF = 128
    for ks in range(16):
        A(f"ds_read_b64_tr_b16 v[{WF+4*ks}:{WF+4*ks+1}], v8 offset:{ks*4096}")
        A(f"ds_read_b64_tr_b16 v[{WF+4*ks+2}:{WF+4*ks+3}], v8 offset:{ks*4096+512}")
        A(f"ds_read_b128 v[{XF+4*ks}:{XF+4*ks+3}], v11 offset:{ks*64}")
    for ks in range(16):
        A(f"s_waitcnt lgkmcnt({min(15, 3*(15-ks))})")
        d = 12 + 4 * (ks & 1)
        c = "0" if ks < 2 else f"v[{d}:{d+3}]"
        A(f"v_mfma_f32_16x16x32_bf16 v[{d}:{d+3}], v[{WF+4*ks}:{WF+4*ks+3}], v[{XF+4*ks}:{XF+4*ks+3}], {c}")
    for r in range(4): A(f"v_add_f32 v{20+2*r}, v{12+r}, v{16+r}")
    A("v_mov_b32_dpp v20, v24 row_shr:4 row_mask:0xf bank_mask:0x2")
    A("v_mov_b32_dpp v22, v26 row_shr:4 row_mask:0xf bank_mask:0x2")
    A("s_mov_b64 exec, s[56:57]")
    A(f"buffer_store_dwordx4 v[20:23], v4, s[24:27], s43 offen {qst}")
    A("s_mov_b64 exec, -1")
    stamp("h2")
    A("s_lshl_b32 s43, s4, 14")
    A("s_lshl_b32 s44, s3, 10")
    A("s_add_u32 s43, s43, s44")
    A(f"s_add_u32 s43, s43, {hex(W_QP)}")
    A("s_add_u32 s44, s43, 4096")
    A("s_lshl_b32 s45, s3, 8")
    A(f"s_add_u32 s45, s45, {L_QA}")
    A("v_lshl_add_u32 v10, v1, 2, s45")
    poll_masked(2, lambda i: A(f"buffer_load_dwordx4 v[{28+4*i}:{31+4*i}], v2, s[24:27], s{43+i} offen {qld}"),
                lambda i: [29 + 4 * i, 31 + 4 * i], qsl)
    A("v_add_f32 v28, v28, v32")
    A("v_add_f32 v30, v30, v34")
    A("v_cvt_pk_bf16_f32 v28, v28, v30")
    A("ds_write_b32 v10, v28")
    A("s_waitcnt lgkmcnt(0)")
    A("s_barrier")
    stamp("h3")
    if 1 in ab: A("s_branch L_hend")
    A("s_and_b32 s48, s59, 3")
    A("s_lshl_b32 s48, s48, 3")
    A("s_lshl_b32 s49, s3, 1")
    A("s_add_u32 s48, s48, s49")
    A("s_lshl_b32 s49, s48, 14")
    A("s_lshr_b32 s61, s59, 2")
    A("s_lshl_b32 s50, s61, 10")
    A("s_add_u32 s49, s49, s50")
    A(f"s_add_u32 s49, s49, {hex(W_QP+8192)}")
    A("s_add_u32 s50, s49, 4096")
    A("s_add_u32 s51, s49, 16384")
    A("s_add_u32 s52, s49, 20480")
    poll_masked(4, lambda i: A(f"buffer_load_dwordx4 v[{28+4*i}:{31+4*i}], v2, s[24:27], s{49+i} offen {qld}"),
                lambda i: [29 + 4 * i, 31 + 4 * i], 16)
    A("v_add_f32 v28, v28, v32")
    A("v_add_f32 v30, v30, v34")
    A("v_add_f32 v36, v36, v40")
    A("v_add_f32 v38, v38, v42")
    A("v_cvt_pk_bf16_f32 v28, v28, v30")
    A("v_cvt_pk_bf16_f32 v36, v36, v38")
    A("s_lshl_b32 s43, s3, 9")
    A(f"s_add_u32 s43, s43, {L_QB}")
    A("v_lshl_add_u32 v10, v1, 2, s43")
    A("ds_write_b32 v10, v28")
    A("ds_write_b32 v10, v36 offset:256")
    A("s_waitcnt lgkmcnt(0)")
    if 3 in ab: A("s_branch L_hend")
    flag_add(62, 4)
    flag_wait(62, 4, 4, 10, 1)
    A("v_and_b32 v11, 0xf0, v2")
    A(f"v_add_u32 v11, {L_QB}, v11")
    A("v_and_b32 v4, 15, v1")
    A("v_lshlrev_b32 v4, 5, v4")
    A("v_lshrrev_b32 v5, 4, v1")
    A("v_lshl_add_u32 v4, v5, 3, v4")
    A("s_lshl_b32 s43, s3, 12")
    A("v_add_u32 v4, s43, v4")
    A("s_mov_b32 s45, 8")
    A.label("L_battn")
    A("ds_read_b128 v[64:67], v11")
    A("v_add_u32 v11, 256, v11")
    init_state(68, 69, 72)
    A("s_waitcnt lgkmcnt(0)")
    scores(KB, 64, 80, 8)
    softmax(80, 8, 68, 69, 72, 70, 71, 88, 96)
    pv(VB, 8, 72, 88, 96)
    finalize(68, 69, 72, 12, 17, 16)
    A("ds_write_b64 v4, v[16:17]")
    A("v_add_u32 v4, 512, v4")
    A("s_sub_u32 s45, s45, 1")
    A("s_cmp_lg_u32 s45, 0")
    A("s_cbranch_scc1 L_battn")
    A("s_waitcnt lgkmcnt(0)")
    flag_add(62, 12)
    flag_wait(62, 12, 4, 10, 1)
    A("s_lshl_b32 s43, s3, 10")
    A("v_lshl_add_u32 v4, v1, 3, s43")
    A("s_lshl_b32 s43, s48, 2")
    A("s_add_u32 s43, s43, s61")
    A("s_lshl_b32 s43, s43, 13")
    A("s_lshl_b32 s44, s58, 8")
    A("s_add_u32 s43, s43, s44")
    A(f"s_add_u32 s43, s43, {hex(W_PB)}")
    A("s_add_u32 s44, s43, 0x8000")
    G = 64
    for k in range(2):
        for w_ in range(4):
            A(f"ds_read_b64 v[{G+16*k+4*w_+2}:{G+16*k+4*w_+3}], v4 offset:{w_*4096+k*512}")
    A("v_and_b32 v5, 31, v1")
    A("v_lshlrev_b32 v5, 3, v5")
    A("v_lshrrev_b32 v6, 5, v1")
    A("v_lshl_add_u32 v5, v6, 12, v5")
    A("s_mov_b32 s46, 0x55555555")
    A("s_mov_b32 s47, 0x55555555")
    A("s_waitcnt lgkmcnt(0)")
    for k in range(2):
        o = 12 + 4 * k
        for w_ in range(4): A(f"v_mov_b32 v{G+16*k+4*w_}, v{G+16*k+4*w_+3}")
        combine(G + 16 * k, 4, o, o + 2)
        A(f"v_mov_b32_dpp v{o+1}, v{o} quad_perm:[1,1,3,3] row_mask:0xf bank_mask:0xf")
        A(f"v_bitop3_b32 v{o+3}, v{o}, v{o+1}, v{o+2} bitop3:0x96")
        A(f"v_xor_b32 v{o+3}, s6, v{o+3}")
        A("s_mov_b64 exec, s[46:47]")
        A(f"buffer_store_dwordx4 v[{o}:{o+3}], v5, s[24:27], s{43+k} offen {bst}")
        A("s_mov_b64 exec, -1")
    stamp("h4")
    if 4 in ab: A("s_branch L_hend")
    A("s_cmp_lg_u32 s3, 3")
    A("s_cbranch_scc1 L_nol1")
    A("s_lshl_b32 s45, s4, 3")
    A("s_add_u32 s45, s45, s5")
    A("s_lshl_b32 s46, s45, 12")
    A(f"s_add_u32 s46, s46, {hex(W_PB)}")
    for i in range(w1n): A(f"s_sleep {w1}")
    poll_masked(4, lambda i: A(f"buffer_load_dwordx4 v[{G+4*i}:{G+4*i+3}], v2, s[24:27], s46 offen offset:{i*1024} {bld}"),
                lambda i: G + 4 * i, l1sl)
    flag_add(62, 40)
    U1, U2, DEN, A0 = 56, 57, 58, 36
    chain("v_max3_f32", "v_max_f32", U1, [f"v{G+4*u+2}" for u in range(4)])
    for sw in ("v_permlane32_swap_b32", "v_permlane16_swap_b32"):
        A(f"v_mov_b32 v{U2}, v{U1}")
        A(f"{sw} v{U1}, v{U2}")
        A(f"v_max_f32 v{U1}, v{U1}, v{U2}")
    for u in range(4): A(f"v_sub_f32 v{G+4*u+2}, v{G+4*u+2}, v{U1}")
    for u in range(4): A(f"v_exp_f32 v{G+4*u+2}, v{G+4*u+2}")
    for u in range(4):
        op = "v_mul_f32" if u == 0 else "v_fmac_f32"
        for k in range(2):
            A(f"v_lshlrev_b32 v{G+4*u+3}, 16, v{G+4*u+k}")
            A(f"v_and_b32 v{G+4*u+k}, 0xffff0000, v{G+4*u+k}")
            A(f"{op} v{A0+2*k}, v{G+4*u+2}, v{G+4*u+3}")
            A(f"{op} v{A0+2*k+1}, v{G+4*u+2}, v{G+4*u+k}")
        if u == 0: A(f"v_mov_b32 v{DEN}, v{G+2}")
        else: A(f"v_add_f32 v{DEN}, v{DEN}, v{G+4*u+2}")
    for r in (DEN, A0, A0 + 1, A0 + 2, A0 + 3):
        for sw in ("v_permlane32_swap_b32", "v_permlane16_swap_b32"):
            A(f"v_mov_b32 v{U2}, v{r}")
            A(f"{sw} v{r}, v{U2}")
            A(f"v_add_f32 v{r}, v{r}, v{U2}")
    A(f"v_rcp_f32 v{DEN}, v{DEN}")
    for k in range(4): A(f"v_mul_f32 v{A0+k}, v{A0+k}, v{DEN}")
    A(f"v_cvt_pk_bf16_f32 v12, v{A0}, v{A0+1}")
    A(f"v_cvt_pk_bf16_f32 v14, v{A0+2}, v{A0+3}")
    A("v_mov_b32 v13, s6")
    A("v_mov_b32 v15, s6")
    A("s_lshr_b32 s43, s4, 1")
    A("s_lshl_b32 s43, s43, 12")
    A("s_lshr_b32 s44, s5, 1")
    A("s_lshl_b32 s44, s44, 10")
    A("s_add_u32 s43, s43, s44")
    A("s_and_b32 s44, s4, 1")
    A("s_lshl_b32 s44, s44, 9")
    A("s_add_u32 s43, s43, s44")
    A("s_and_b32 s44, s5, 1")
    A("s_lshl_b32 s44, s44, 8")
    A("s_add_u32 s43, s43, s44")
    A(f"s_add_u32 s43, s43, {hex(W_OB2)}")
    A("s_mov_b64 exec, 0xffff")
    A(f"buffer_store_dwordx4 v[12:15], v2, s[24:27], s43 offen {bst}")
    A("s_mov_b64 exec, -1")
    A.label("L_nol1")
    if 2 in ab: A("s_branch L_hend")

    FR = [128, 160]
    flag_wait(62, 8, 4, 56, 8)
    for T_ in range(2):
        for ks in range(8):
            r = FR[T_] + ks * 4
            off = T_ * 32768 + ks * 4096
            A(f"ds_read_b64_tr_b16 v[{r}:{r+1}], v9 offset:{off}")
            A(f"ds_read_b64_tr_b16 v[{r+2}:{r+3}], v9 offset:{off+512}")
    G = 64
    A("s_mul_i32 s43, s3, 576")
    A(f"s_add_u32 s43, s43, {L_O}")
    A("v_and_b32 v60, 31, v1")
    A("v_lshl_add_u32 v60, v60, 3, s43")
    A("v_lshrrev_b32 v7, 5, v1")
    A("v_lshl_add_u32 v60, v7, 2, v60")
    A("v_and_b32 v6, 3, v1")
    A("v_mul_u32_u24 v6, 576, v6")
    A("v_lshrrev_b32 v7, 4, v1")
    A("v_lshl_add_u32 v6, v7, 4, v6")
    A(f"v_add_u32 v6, {L_O}, v6")
    A("v_and_b32 v8, 3, v1")
    A("v_lshlrev_b32 v8, 7, v8")
    A("v_lshl_add_u32 v8, v7, 4, v8")
    A("v_and_b32 v7, 4, v1")
    A("v_lshl_add_u32 v8, v7, 4, v8")
    A("s_lshl_b32 s52, s4, 3")
    A("s_add_u32 s52, s52, s5")
    A("s_lshl_b32 s61, s52, 7")
    A(f"s_add_u32 s61, s61, {hex(W_QP)}")
    A("s_add_u32 s63, s61, 0x40000")
    A("s_and_b32 s60, s52, 3")
    A("s_lshl_b32 s60, s60, 12")
    A("s_lshr_b32 s44, s52, 2")
    A("s_lshl_b32 s44, s44, 5")
    A("s_add_u32 s60, s60, s44")
    A("s_lshl_b32 s52, s52, 11")
    A("s_lshl_b32 s53, s3, 9")
    A("s_add_u32 s52, s52, s53")
    A(f"s_add_u32 s52, s52, {hex(W_QP)}")
    A("s_xor_b32 s53, s6, 0x5bd1e994")
    for r in (21, 23): A(f"v_mov_b32 v{r}, s53")
    A("v_and_b32 v11, 3, v1")
    A("v_lshlrev_b32 v11, 3, v11")
    A("v_lshl_add_u32 v11, v7, 9, v11")
    A("v_lshrrev_b32 v5, 3, v1")
    A("v_lshlrev_b32 v5, 15, v5")
    A("v_and_b32 v4, 0x70, v2")
    A("v_add_u32 v5, v5, v4")
    A("s_lshl_b32 s43, s3, 2")
    A("v_add_u32 v10, s43, v62")
    A("s_lshr_b32 s45, s4, 1")
    A("s_lshl_b32 s46, s45, 12")
    A("s_lshl_b32 s44, s3, 10")
    A("s_add_u32 s46, s46, s44")
    A(f"s_add_u32 s46, s46, {hex(W_OB2)}")
    A("s_lshl_b32 s80, s45, 16")
    A("s_lshl_b32 s44, s3, 9")
    A("s_add_u32 s80, s80, s44")
    A(f"s_add_u32 s80, s80, {hex(W_PB)}")
    for i in range(1, 8): A(f"s_add_u32 s{80+i}, s80, {i*8192}")
    A("v_and_b32 v3, 31, v1")
    A("v_lshlrev_b32 v3, 4, v3")
    A("v_lshrrev_b32 v4, 5, v1")
    A("v_lshl_add_u32 v3, v4, 12, v3")
    A("s_mul_i32 s43, s3, 576")
    A(f"s_add_u32 s43, s43, {L_O+2304}")
    A("v_lshl_add_u32 v4, v1, 3, s43")
    A("s_xor_b32 s54, s6, 0x2545f490")
    def gemv(T_, D):
        OFR = 96
        for ks in range(8):
            A(f"ds_read_b128 v[{OFR+4*ks}:{OFR+4*ks+3}], v6 offset:{T_*2304+ks*64}")
        for ks in range(8):
            A(f"s_waitcnt lgkmcnt({7-ks})")
            d = D + 4 * (ks & 1)
            r = FR[T_] + ks * 4
            c = "0" if ks < 2 else f"v[{d}:{d+3}]"
            A(f"v_mfma_f32_16x16x32_bf16 v[{d}:{d+3}], v[{r}:{r+3}], v[{OFR+4*ks}:{OFR+4*ks+3}], {c}")
        for r in range(4): A(f"v_add_f32 v{D+r}, v{D+r}, v{D+4+r}")
    flag_wait(10, 16, 1, 56, esl)
    stamp("h5")
    poll_masked(1, lambda i: A(f"buffer_load_dwordx4 v[{G}:{G+3}], v2, s[24:27], s46 offen {bld}"),
                lambda i: [G + 1, G + 3], 16)
    A(f"v_mov_b32 v{G+1}, v{G+2}")
    A(f"ds_write_b64 v4, v[{G}:{G+1}]")
    A("s_waitcnt lgkmcnt(0)")
    flag_add(62, 32)
    flag_wait(62, 32, 4, 56, 1)
    gemv(1, 12)
    A("v_cvt_pk_bf16_f32 v24, v12, v13")
    A("v_cvt_pk_bf16_f32 v26, v14, v15")
    if emid: flag_wait(10, 48, 1, 56, 4)
    flag_wait(10, 48, 2, 56, 0)
    if pd: A(f"s_sleep {pd}")
    stamp("h6")
    top, done, nis, np0, np1, nc0, nc1 = (lab(x) for x in ("pa", "padone", "nis", "np0", "np1", "nc0", "nc1"))
    A(f"s_mov_b32 s42, {spin}")
    for i in range(8): A(f"s_mov_b64 s[{64+2*i}:{65+2*i}], -1")
    A("s_mov_b32 s44, 0")
    A("s_mov_b32 s45, 0")
    A.label(top)
    A("s_cmp_eq_u32 s44, 3")
    A(f"s_cbranch_scc1 {nis}")
    for i in range(8):
        A(f"s_mov_b64 exec, s[{64+2*i}:{65+2*i}]")
        A(f"buffer_load_dwordx4 v[{G+4*i}:{G+4*i+3}], v3, s[24:27], s{80+i} offen {ald}")
    A("s_mov_b64 exec, -1")
    A.label(nis)
    for k, np_ in ((0, np0), (1, np1)):
        A(f"s_bitcmp1_b32 s45, {k}")
        A(f"s_cbranch_scc0 {np_}")
        combine2(G + 16 * k, 4, 60, 256 * k)
        A.label(np_)
    A("s_mov_b32 s45, 0")
    A("s_cmp_eq_u32 s44, 3")
    A(f"s_cbranch_scc1 {done}")
    A("s_waitcnt vmcnt(0)")
    for k, nc in ((0, nc0), (1, nc1)):
        A(f"s_bitcmp1_b32 s44, {k}")
        A(f"s_cbranch_scc1 {nc}")
        for i in range(4 * k, 4 * k + 4): chk(G + 4 * i, 64 + 2 * i, "s54")
        b0 = 64 + 8 * k
        A(f"s_or_b64 s[40:41], s[{b0}:{b0+1}], s[{b0+2}:{b0+3}]")
        A(f"s_or_b64 vcc, s[{b0+4}:{b0+5}], s[{b0+6}:{b0+7}]")
        A("s_or_b64 s[40:41], s[40:41], vcc")
        A(f"s_cselect_b32 s47, 0, {1<<k}")
        A("s_or_b32 s44, s44, s47")
        A("s_or_b32 s45, s45, s47")
        A.label(nc)
    if pbk:
        nb_ = lab("nbk")
        A("s_bcnt1_i32_b64 s47, s[64:65]")
        for i in range(1, 8):
            A(f"s_bcnt1_i32_b64 s43, s[{64+2*i}:{65+2*i}]")
            A("s_add_u32 s47, s47, s43")
        A(f"s_cmp_le_u32 s47, {pbt}")
        A(f"s_cbranch_scc1 {nb_}")
        A(f"s_sleep {pbk}")
        A.label(nb_)
    A("s_sub_u32 s42, s42, 1")
    A("s_cmp_lg_u32 s42, 0")
    A(f"s_cbranch_scc1 {top}")
    A.label(done)
    stamp("h7")
    A("s_waitcnt lgkmcnt(0)")
    A("s_barrier")
    gemv(0, 12)
    A("v_cvt_pk_bf16_f32 v20, v12, v13")
    A("v_cvt_pk_bf16_f32 v22, v14, v15")
    A("v_mov_b32_dpp v20, v24 row_shr:4 row_mask:0xf bank_mask:0x2")
    A("v_mov_b32_dpp v22, v26 row_shr:4 row_mask:0xf bank_mask:0x2")
    A("s_mov_b64 exec, s[56:57]")
    A(f"buffer_store_dwordx4 v[20:23], v8, s[24:27], s52 offen {yst}")
    A("s_mov_b64 exec, -1")
    stamp("h8")
    A("s_cmp_lg_u32 s3, 0")
    A("s_cbranch_scc1 L_hend")
    poll_masked(2, lambda i: A(f"buffer_load_dwordx4 v[{G+4*i}:{G+4*i+3}], v5, s[24:27], s{61+2*i} offen {yld}"),
                lambda i: [G + 4 * i + 1, G + 4 * i + 3], ysl, tagreg="s53")
    stamp("h9")
    U = G + 16
    for i in range(2):
        A(f"v_lshlrev_b32 v{U+4*i}, 16, v{G+4*i}")
        A(f"v_and_b32 v{U+4*i+1}, 0xffff0000, v{G+4*i}")
        A(f"v_lshlrev_b32 v{U+4*i+2}, 16, v{G+4*i+2}")
        A(f"v_and_b32 v{U+4*i+3}, 0xffff0000, v{G+4*i+2}")
    for k in range(4):
        A(f"v_add_f32 v{U+k}, v{U+k}, v{U+4+k}")
    A(f"v_permlane32_swap_b32 v{U}, v{U+2}")
    A(f"v_permlane32_swap_b32 v{U+1}, v{U+3}")
    A(f"v_add_f32 v{U}, v{U}, v{U+2}")
    A(f"v_add_f32 v{U+1}, v{U+1}, v{U+3}")
    A(f"v_add_f32_dpp v{U}, v{U}, v{U} row_ror:8 row_mask:0xf bank_mask:0xf")
    A(f"v_add_f32_dpp v{U+1}, v{U+1}, v{U+1} row_ror:8 row_mask:0xf bank_mask:0xf")
    A(f"v_mov_b32 v{U+2}, v{U}")
    A(f"v_mov_b32 v{U+3}, v{U+1}")
    A(f"v_permlane16_swap_b32 v{U}, v{U+2}")
    A(f"v_permlane16_swap_b32 v{U+1}, v{U+3}")
    A(f"v_add_f32 v{U}, v{U}, v{U+2}")
    A(f"v_add_f32 v{U+1}, v{U+1}, v{U+3}")
    A(f"v_cvt_pk_bf16_f32 v{U+4}, v{U}, v{U+1}")
    A(f"v_mov_b32 v{U+5}, v{U+4}")
    A(f"v_permlane32_swap_b32 v{U+4}, v{U+5}")
    A("s_mov_b64 exec, 0xff")
    A(f"buffer_store_dwordx2 v[{U+4}:{U+5}], v11, s[28:31], s60 offen {ost}")
    A("s_mov_b64 exec, -1")
    A("s_cmp_lg_u32 s2, 0")
    A("s_cbranch_scc1 L_hend")
    A("v_mov_b32 v3, 0")
    A("v_mov_b32 v4, s6")
    A("s_mov_b64 exec, 1")
    A(f"buffer_store_dword v4, v3, s[24:27], 0 offen {ost}")
    A("s_mov_b64 exec, -1")
    A.label("L_hend")
    stamp_store(240)
    A("s_endpgm")

    A.label("L_stream")
    srdp(8, "A_k", 0x10000000)
    A("s_sub_u32 s33, s3, 4")
    A("s_lshl_b32 s38, s33, 5")
    A("s_add_u32 s38, s38, s4")
    A("s_lshl_b32 s39, s38, 8")
    A("s_lshl_b32 s38, s38, 21")
    A(f"s_mul_i32 s28, s33, {rc}")
    A("s_add_u32 s29, s28, s5")
    if rhs is not None:
        A(f"s_lshr_b32 s37, s4, {rhs}")
        A("s_add_u32 s29, s29, s37")
    A("s_and_b32 s29, s29, 7")
    A(f"s_lshl_b32 s29, s29, {12 if ti else 14}")
    A("s_add_u32 s29, s29, s38")
    A("s_mov_b32 s30, s29")
    for q in range(4): A(f"v_add_u32 v{48+q}, {q*(32768 if ti else 4096)}, v2")
    R0 = 64
    def load(q, so, base=None):
        for j in range(4):
            r = (base or R0) + 16 * q + 4 * j
            A(f"buffer_load_dwordx4 v[{r}:{r+3}], v{48+q}, s[8:11], {so} offen offset:{j*1024} nt")
    if pt:
        srdp(76, "A_v", 0x10000000)
        srdp(16, "A_wo", 0x800000)
        srdp(20, "B_wo", 0x800000)
        A("s_lshl_b32 s34, s4, 18")
        A("s_mov_b64 exec, 1")
        A("buffer_load_dword v52, v2, s[8:11], s30 offen nt")
        if pt >= 2:
            A("buffer_load_dword v53, v2, s[16:19], s34 offen nt")
            A("buffer_load_dword v54, v2, s[20:23], s34 offen nt")
        if pt >= 3:
            A("buffer_load_dword v55, v2, s[76:79], s30 offen nt")
        A("s_mov_b64 exec, -1")
    for q in range(4):
        if wofirst: break
        if q == sgate - 1 + 0 and sgate: flag_wait(62, 36, 4, 10, 0)
        load(q, "s30")
    for x in range(xpre):
        A(f"s_add_u32 s30, s30, {NWP*CSB}")
        for q in range(4): load(q, "s30", 128 + 64 * x)
    A("s_mov_b32 s12, s8")
    A("s_mov_b32 s13, s9")
    A(f"s_mov_b32 s14, s{P['A_v']}")
    A(f"s_and_b32 s15, s{P['A_v']+1}, 0xffff")
    srdp(16, "A_wo", 0x800000)
    srdp(20, "B_wo", 0x800000)
    A(f"s_add_u32 s39, s39, {hex(W_CNT)}")
    A(f"s_add_u32 s52, s{P['ws']}, s39")
    A(f"s_addc_u32 s53, s{P['ws']+1}, 0")
    if jbh:
        A("s_lshr_b32 s37, s4, 2")
        A("s_add_u32 s28, s28, s37")
    else:
        A(f"s_add_u32 s28, s28, {JB}")
    A(f"s_and_b32 s28, s28, {8//NBW-1}")
    A(f"s_add_u32 s28, s28, {8*(ns-ksk)}")
    A("s_mov_b32 s57, s29")
    A("v_lshrrev_b32 v3, 3, v1")
    A("v_lshlrev_b32 v3, 11, v3")
    A("v_and_b32 v4, 0x70, v2")
    A("v_add_u32 v3, v3, v4")
    A("v_and_b32 v4, 16, v1")
    A("v_lshlrev_b32 v4, 1, v4")
    A("v_xor_b32 v3, v3, v4")
    A("v_xor_b32 v44, 64, v3")
    A("v_and_b32 v4, 0xf0, v2")
    A("s_andn2_b32 s34, s4, 1")
    A("s_lshl_b32 s34, s34, 18")
    A("s_lshl_b32 s35, s33, 17")
    A("s_add_u32 s34, s34, s35")
    A("s_and_b32 s35, s4, 1")
    A("s_lshl_b32 s35, s35, 3")
    A("s_add_u32 s35, s35, s5")
    A("s_lshl_b32 s35, s35, 7")
    A("s_add_u32 s34, s34, s35")
    A("s_lshl_b32 s35, s33, 13")
    A(f"s_add_u32 s35, s35, {L_WO}")
    flag_wait(62, 36, 4, 10, 0)
    for T_ in range(2):
        for u in range(8):
            A(f"s_add_u32 s37, s35, {T_*32768+u*1024}")
            A("s_mov_b32 m0, s37")
            A(f"s_add_u32 s39, s34, {u*16384}")
            if thr and T_ * 8 + u >= thr: A(f"s_waitcnt vmcnt({thr-1})")
            A(f"buffer_load_dwordx4 v{44 if u&1 else 3}, s[{16+4*T_}:{19+4*T_}], s39 offen nt lds")
    if wofirst:
        for n in range(pre0):
            if thr: A(f"s_waitcnt vmcnt({thr-1})")
            A(f"buffer_load_dwordx4 v[{R0+4*n}:{R0+4*n+3}], v{48+(n>>2)}, s[8:11], s30 offen offset:{(n&3)*1024} nt")
        A("s_mov_b32 s31, s30")
    Q, ACC, M, LS, C, AL, NM, S, T, PL, PH = 8, 12, 20, 21, 22, 23, 24, 28, 32, 34, 35
    init_state(M, LS, ACC)
    mktag()
    A("s_lshl_b32 s43, s33, 8")
    A(f"s_add_u32 s43, s43, {L_QA}")
    A("v_add_u32 v4, s43, v4")
    A(f"v_mov_b32 v7, {L_FL}")
    A("s_lshl_b32 s43, s33, 2")
    A("v_add_u32 v62, s43, v62")
    A("v_and_b32 v5, 15, v1")
    A("v_lshlrev_b32 v5, 5, v5")
    A("v_lshrrev_b32 v6, 5, v1")
    A("v_lshl_add_u32 v5, v6, 4, v5")
    A("s_lshl_b32 s43, s33, 12")
    A(f"s_add_u32 s43, s43, {L_FIFO}")
    A("v_lshl_add_u32 v46, v1, 2, s43")
    A("v_mov_b32 v47, v46")
    A("s_lshl_b32 s43, s4, 3")
    A("s_add_u32 s43, s43, s5")
    A("s_lshl_b32 s43, s43, 12")
    A("s_lshl_b32 s44, s33, 9")
    A("s_add_u32 s43, s43, s44")
    A(f"s_add_u32 s43, s43, {hex(W_PB)}")
    A("s_xor_b32 s6, s6, 0x2545f490")
    A("s_mov_b32 s72, 0xffff")
    A("s_mov_b32 s73, 0xffff")
    for q in range(4):
        A(f"s_mov_b32 s{64+2*q}, {hex(0x11111111 << q)}")
        A(f"s_mov_b32 s{65+2*q}, {hex(0x11111111 << q)}")
    A(f"s_mov_b32 s58, {ns-1}")
    A("s_mov_b32 s59, s58")
    A("s_mov_b32 s56, 0")
    A("s_mov_b32 s63, 0x10000000")
    A("s_mov_b32 s76, s8")
    A("s_mov_b32 s77, s9")
    A("s_mov_b32 s78, 0x10000000")
    A("s_mov_b32 s79, 0x20000")
    stamp("s1")
    A("s_barrier")
    stamp("s2")
    if sprio: A(f"s_setprio {sprio}")
    A(f"ds_read_b128 v[{Q}:{Q+3}], v4")
    def claim():
        A("s_mov_b32 s50, 1")
        A("s_atomic_add s50, s[52:53], 0 glc")
    def issue(q):
        sd, so = ("s[8:11]", "s30") if q < 2 else ("s[76:79]", "s31")
        for j in range(4):
            r = R0 + 16 * q + 4 * j
            A(f"buffer_load_dwordx4 v[{r}:{r+3}], v{48+q}, {sd}, {so} offen offset:{j*1024} nt")
    def setbase(a, b):
        A(f"s_mov_b32 s8, s{12+2*a}"); A(f"s_mov_b32 s9, s{13+2*a}")
        A(f"s_mov_b32 s76, s{12+2*b}"); A(f"s_mov_b32 s77, s{13+2*b}")
    def kq(q, ex, iss=True):
        A(f"s_waitcnt vmcnt({12+ex})")
        K = R0 + 16 * q
        for r in range(4):
            for j in range(4):
                c = "0" if r == 0 else f"v{S+j}"
                A(f"v_dot2_f32_bf16 v{S+j}, v{K+4*j+r}, v{Q+r}, {c}")
        if iss: issue(q)
        A(f"v_add_f32_dpp v{T}, v{S}, v{S} row_ror:8 row_mask:0xf bank_mask:0x3")
        A(f"v_add_f32_dpp v{T+1}, v{S+1}, v{S+1} row_ror:8 row_mask:0xf bank_mask:0x3")
        A(f"v_add_f32_dpp v{T}, v{S+2}, v{S+2} row_ror:8 row_mask:0xf bank_mask:0xc")
        A(f"v_add_f32_dpp v{T+1}, v{S+3}, v{S+3} row_ror:8 row_mask:0xf bank_mask:0xc")
        A(f"v_add_f32_dpp v{S}, v{T}, v{T} row_shl:4 row_mask:0xf bank_mask:0x5")
        A(f"v_add_f32_dpp v{S}, v{T+1}, v{T+1} row_shr:4 row_mask:0xf bank_mask:0xa")
        A(f"v_add_f32_dpp v{S}, v{S}, v{S} quad_perm:[2,3,0,1] row_mask:0xf bank_mask:0xf")
        A(f"v_add_f32_dpp v{S}, v{S}, v{S} quad_perm:[1,0,3,2] row_mask:0xf bank_mask:0xf")
        A(f"v_cndmask_b32 v{C}, v{C}, v{S}, s[{64+2*q}:{65+2*q}]")
    def smx():
        if rnd: round2([C])
        A(f"v_max_f32_dpp v{AL}, v{C}, v{C} row_ror:8 row_mask:0xf bank_mask:0xf")
        for st in (4, 2, 1):
            A(f"v_max_f32_dpp v{AL}, v{AL}, v{AL} row_ror:{st} row_mask:0xf bank_mask:0xf")
        A(f"v_max_f32 v{AL}, v{AL}, v{M}")
        A(f"v_sub_f32 v{NM}, v{M}, v{AL}")
        A(f"v_mov_b32 v{M}, v{AL}")
        A(f"v_sub_f32 v{C}, v{C}, v{AL}")
        A(f"v_mul_f32 v{AL}, s7, v{NM}")
        A(f"v_mul_f32 v{C}, s7, v{C}")
        A(f"v_exp_f32 v{AL}, v{AL}")
        A(f"v_exp_f32 v{C}, v{C}")
        for e in range(8): A(f"v_mul_f32 v{ACC+e}, v{ACC+e}, v{AL}")
        A(f"v_cvt_pk_bf16_f32 v{PL}, v{C}, 0")
        A(f"v_cvt_pk_bf16_f32 v{PH}, 0, v{C}")
        A(f"v_fma_f32 v{LS}, v{LS}, v{AL}, v{C}")
    def vq(q, ln, ex=0, iss=True):
        A(f"s_waitcnt vmcnt({12+ex})")
        V = R0 + 16 * q
        for j in range(4):
            for r in range(4):
                A(f"v_dot2c_f32_bf16_dpp v{ACC+2*r}, v{PL}, v{V+4*j+r} row_newbcast:{4*j+ln} row_mask:0xf bank_mask:0xf")
                A(f"v_dot2c_f32_bf16_dpp v{ACC+2*r+1}, v{PH}, v{V+4*j+r} row_newbcast:{4*j+ln} row_mask:0xf bank_mask:0xf")
        if iss: issue(q)
    def nextdyn(after):
        exh = lab("exh")
        A("s_waitcnt lgkmcnt(0)")
        A("s_add_u32 s56, s56, 1")
        A(f"s_cmp_gt_u32 s56, {NDYN}")
        A(f"s_cbranch_scc1 {exh}")
        A(f"s_cmp_ge_u32 s50, {NDYN}")
        A(f"s_cbranch_scc1 {exh}")
        A("s_lshr_b32 s37, s50, 1")
        A("s_lshl_b32 s37, s37, 3")
        A("s_add_u32 s37, s37, s28")
        A("s_lshl_b32 s37, s37, 1")
        A("s_and_b32 s36, s50, 1")
        A("s_add_u32 s37, s37, s36")
        A(f"s_add_u32 s36, s50, {T2//2 - 2*NSK}")
        A(f"s_cmp_lt_u32 s50, {2*NSK}")
        A("s_cselect_b32 s36, s37, s36")
        if ti:
            A("s_lshr_b32 s30, s36, 4")
            A("s_lshl_b32 s30, s30, 17")
            A("s_bfe_u32 s37, s36, 0x30001")
            A("s_lshl_b32 s37, s37, 12")
            A("s_add_u32 s30, s30, s37")
            A("s_and_b32 s37, s36, 1")
            A("s_lshl_b32 s37, s37, 16")
            A("s_add_u32 s30, s30, s37")
        else:
            A("s_lshl_b32 s30, s36, 13")
        A("s_add_u32 s30, s30, s38")
        A(f"s_sub_u32 s31, s30, {65536 if ti else 8192}")
        setbase(0, 1)
        A("s_mov_b32 s55, 3")
        if not emid:
            A(f"s_cmp_lt_u32 s50, {max(0, NDYN-wox)}")
            A(f"s_cbranch_scc1 {after}")
            flag_add(62, 16)
        A(f"s_branch {after}")
        A.label(exh)
        A("s_mov_b32 s30, s63")
        A("s_mov_b32 s31, s63")
        A("s_mov_b32 s55, 2")
        if not emid: flag_add(62, 16)
        flag_add(62, 48)
        stamp("s3")
    def adv():
        A(f"s_add_u32 s29, s29, {NWP*CSB}")
        A("s_mov_b32 s30, s29")
        A("s_mov_b32 s31, s29")
    CN = 25
    n0 = 16 - L
    assert 2 <= L <= 8
    def ld(n):
        q, j = n >> 2, n & 3
        sd, so = ("s[8:11]", "s30") if q < 2 else ("s[76:79]", "s31")
        A(f"buffer_load_dwordx4 v[{R0+4*n}:{R0+4*n+3}], v{48+q}, {sd}, {so} offen offset:{j*1024} nt")
    def kred(q):
        A(f"v_add_f32_dpp v{T}, v{S}, v{S} row_ror:8 row_mask:0xf bank_mask:0x3")
        A(f"v_add_f32_dpp v{T+1}, v{S+1}, v{S+1} row_ror:8 row_mask:0xf bank_mask:0x3")
        A(f"v_add_f32_dpp v{T}, v{S+2}, v{S+2} row_ror:8 row_mask:0xf bank_mask:0xc")
        A(f"v_add_f32_dpp v{T+1}, v{S+3}, v{S+3} row_ror:8 row_mask:0xf bank_mask:0xc")
        A(f"v_add_f32_dpp v{S}, v{T}, v{T} row_shl:4 row_mask:0xf bank_mask:0x5")
        A(f"v_add_f32_dpp v{S}, v{T+1}, v{T+1} row_shr:4 row_mask:0xf bank_mask:0xa")
        A(f"v_add_f32_dpp v{S}, v{S}, v{S} quad_perm:[2,3,0,1] row_mask:0xf bank_mask:0xf")
        A(f"v_add_f32_dpp v{S}, v{S}, v{S} quad_perm:[1,0,3,2] row_mask:0xf bank_mask:0xf")
        A(f"v_cndmask_b32 v{C}, v{C}, v{S}, s[{64+2*q}:{65+2*q}]")
    def k1(n):
        j = n & 3
        for r in range(4):
            c = "0" if r == 0 else f"v{S+j}"
            A(f"v_dot2_f32_bf16 v{S+j}, v{R0+4*n+r}, v{Q+r}, {c}")
        if j == 3: kred(n >> 2)
    def v1(n):
        q, j = n >> 2, n & 3
        for r in range(4):
            A(f"v_dot2c_f32_bf16_dpp v{ACC+2*r}, v{PL}, v{R0+4*n+r} row_newbcast:{4*j+q} row_mask:0xf bank_mask:0xf")
            A(f"v_dot2c_f32_bf16_dpp v{ACC+2*r+1}, v{PH}, v{R0+4*n+r} row_newbcast:{4*j+q} row_mask:0xf bank_mask:0xf")
    def fifo_pre():
        A(f"ds_read_b32 v{CN}, v47")
        A("v_add_u32 v47, 256, v47")
        A("s_waitcnt lgkmcnt(0)")
    def decK():
        last, go = lab("lk"), lab("gk")
        A("s_cmp_eq_u32 s58, 0")
        A(f"s_cbranch_scc1 {last}")
        adv()
        A("s_sub_u32 s58, s58, 1")
        A(f"s_branch {go}")
        A.label(last)
        stamp("sk")
        if emid: flag_add(62, 16)
        A("s_mov_b32 s29, s57")
        A("s_mov_b32 s30, s29")
        A("s_mov_b32 s31, s29")
        fifo_pre()
        setbase(1, 1)
        A("s_mov_b32 s55, 1")
        A.label(go)
    ak_ = [int(c) for c in ak] if ak else [L] * 16
    av_ = [int(c) for c in av] if av else [L] * 16
    assert wofirst and pre0 == L and ak_[15] == L and av_[15] == L
    def body(a, cons, dec):
        nxt = L
        done_dec = False
        for n in range(16):
            tgt = n + a[n]
            assert tgt >= nxt - 1 and a[n] <= 8
            if tgt >= 16 and not done_dec:
                assert nxt >= 16 or True
                pre = [i for i in range(nxt, 16)]
                if not pre: dec()
                A(f"s_waitcnt vmcnt({nxt-1-n})")
                for i in pre: ld(i)
                nxt = 16
                if pre: dec()
                done_dec = True
                for i in range(nxt, tgt + 1): ld(i & 15)
                nxt = tgt + 1
            else:
                A(f"s_waitcnt vmcnt({nxt-1-n})")
                for i in range(nxt, tgt + 1): ld(i & 15)
                nxt = max(nxt, tgt + 1)
            cons(n)
        assert nxt == 16 + L
    A("s_mov_b32 s55, 0")
    A(f"s_waitcnt vmcnt({L}) lgkmcnt(0)")
    flag_add(7, 8)
    A.label("L_K")
    body(ak_, k1, decK)
    A(f"ds_write_b32 v46, v{C}")
    A("v_add_u32 v46, 256, v46")
    A("s_cmp_eq_u32 s55, 0")
    A("s_cbranch_scc1 L_K")
    A.label("L_V")
    A(f"v_mov_b32 v{C}, v{CN}")
    smx()
    def decV():
        adv()
        A("s_sub_u32 s59, s59, 1")
        A(f"ds_read_b32 v{CN}, v47")
        A("v_add_u32 v47, 256, v47")
    body(av_, v1, decV)
    A("s_waitcnt lgkmcnt(0)")
    A(f"s_cmp_ge_u32 s59, {nd}")
    A("s_cbranch_scc1 L_V")
    for n in range(L, 16): ld(n)
    if not (set(ab) & {1, 3, 4}): flag_wait(7, 40, 1, 36, 1)
    A.label("L_VD")
    A("s_cmp_lg_u32 s59, 0")
    A("s_cbranch_scc1 L_VD1")
    claim()
    A.label("L_VD1")
    A(f"v_mov_b32 v{C}, v{CN}")
    smx()
    vq(0, 0, 0, False); vq(1, 1, -4, False)
    A("s_cmp_eq_u32 s59, 0")
    A("s_cbranch_scc1 L_VD2")
    adv()
    A("s_sub_u32 s59, s59, 1")
    fifo_pre()
    A("s_branch L_VD3")
    A.label("L_VD2")
    nextdyn("L_VD3")
    A.label("L_VD3")
    issue(0); issue(1)
    vq(2, 2); vq(3, 3)
    A("s_cmp_eq_u32 s55, 1")
    A("s_cbranch_scc1 L_VD")
    A("s_cmp_eq_u32 s55, 2")
    A("s_cbranch_scc1 L_fin")
    A.label("L_top2")
    claim()
    A(f"v_mov_b32 v{C}, 0xf149f2ca")
    kq(0, 0, False); kq(1, -4, False)
    smx()
    nextdyn("L_2")
    A.label("L_2")
    issue(0); issue(1)
    vq(2, 0); vq(3, 1)
    A("s_cmp_eq_u32 s55, 3")
    A("s_cbranch_scc1 L_top2")
    A.label("L_fin")
    stamp("s5")
    for st in (8, 4, 2, 1):
        A(f"v_add_f32_dpp v{LS}, v{LS}, v{LS} row_ror:{st} row_mask:0xf bank_mask:0xf")
    finalize(M, LS, ACC, 24, 40, 42)
    A("v_mov_b32 v41, v40")
    A("v_xor_b32 v43, s6, v42")
    A("v_permlane16_swap_b32 v40, v41")
    A("v_bitop3_b32 v43, v40, v41, v43 bitop3:0x96")
    stamp("s4")
    A("s_mov_b64 exec, s[72:73]")
    A(f"buffer_store_dwordx4 v[40:43], v5, s[24:27], s43 offen {ast}")
    flag_add(62, 48)
    stamp_store(240)
    A.label("L_end")
    A("s_endpgm")

    body = A.render()
    nv = 256
    txt = HEADER + f"; @launch grid=(256,1,1) block=(512,1,1) lds={L_TOT}\n"
    txt += '.amdgcn_target "amdgcn-amd-amdhsa--gfx950"\n.text\n'
    txt += f".globl {NAME}\n.p2align 8\n.type {NAME},@function\n"
    txt += body
    txt += '.section .rodata,"a"\n.p2align 6\n'
    txt += f".amdhsa_kernel {NAME}\n"
    txt += f"  .amdhsa_next_free_vgpr {nv}\n  .amdhsa_next_free_sgpr 102\n  .amdhsa_accum_offset {nv}\n"
    txt += "  .amdhsa_group_segment_fixed_size 0\n  .amdhsa_kernarg_size 104\n  .amdhsa_user_sgpr_count 2\n"
    txt += "  .amdhsa_user_sgpr_kernarg_segment_ptr 1\n  .amdhsa_system_sgpr_workgroup_id_x 1\n.end_amdhsa_kernel\n"
    return txt

if __name__ == "__main__":
    import argparse
    ap = argparse.ArgumentParser()
    ap.add_argument("out")
    ap.add_argument("--kw", default="")
    a = ap.parse_args()
    kw = eval("dict(" + a.kw + ")")
    open(a.out, "w").write(gen(**kw))
```

```python
import sys, struct
sys.path.insert(0, "dev")
from asmlib import Asm
from gen import HEADER, NAME

L_W = 0
L_FIFO = 32768
L_WO = 65536
L_QA = 131072
L_QB = L_QA + 1024
L_O = L_QB + 2048
L_FL = L_O + 4608
L_X = L_FL + 64
L_TOT = L_X + 4352
W_CNT = 0x1000
W_QP = 0x10000
W_PA = 0x100000
W_PB = 0x200000
W_OB2 = 0x100000
W_STAMP = 0x20000000

F32 = lambda x: struct.unpack("<I", struct.pack("<f", x))[0]
CEXP = struct.unpack("<I", struct.pack("<f", 1.4426950408889634 / (128 ** 0.5)))[0]

def gen(TD=3, CS=4, ns=12, NBW=1, JB=2, ksk=4, stamps=0, spin=200000, hst=("h1", "h2", "h3", "h4"),
        sst=("s1", "s2", "s3", "s4"), rot=1, wox=8, psl=16, qsl=4, ysl=0, early=0, esl=16,
        bst="sc1 nt", bld="sc1 nt", ast="sc1", ald="sc1", ab=(), wolate=0, pasl=0, touch=0, woh=0, kp="nt", vp="nt", til=0, gate=3, n2=0, n1=0, rc=0, rnd=0, mixed=0, warm=0, ybk=0, sgate=1, qst="sc1", qld="sc1", yst=None, yld=None, xpre=0, ost="sc1", pt=0, L=6, jbh=1, sprio=0, wofirst=0, thr=0, pre0=16, nd=1, ti=1, gb=1, w1=127, w1n=2, l1sl=64, ak=None, av=None, rhs=None, pbk=0, pbt=64, pd=0, emid=0, bl=0, ymap=0, l1j=0, lateb0=0, o2n=2, xsl=4):
    tl = 4
    ksk = 0
    yst = ast if yst is None else yst; yld = yld or ald
    A = Asm()
    NWP = 8
    NT = 512
    CD = CS
    CSB = CS * 4096
    assert ns * NWP * CS <= NT and (NT - ns * NWP * CS) % CD == 0
    NSK = NBW * ksk
    assert n1 == 0 and xpre == 0
    assert NBW == 1 and not til and (2 * n2 + n1) % CS == 0
    T2 = ns * NWP * CS
    NDYN = 2 * NSK + (NT - T2) // 2
    assert CS == 4 and ns - ksk >= 2 + nd and ns <= 16 and nd >= 1
    NP = 2 * NBW
    BT = 16 // NBW
    uid = [0]
    def lab(p):
        uid[0] += 1
        return f"L_{p}_{uid[0]}"

    P = dict(A_x=64, A_k=66, A_v=68, A_wq=70, A_wo=72, B_x=74, B_k=76, B_v=78, B_wq=80, B_wo=82, out=84, dbg=86, ws=88)
    def srd(d, lo, hi, n):
        A(f"s_mov_b32 s{d}, s{lo}")
        A(f"s_and_b32 s{d+1}, s{hi}, 0xffff")
        A(f"s_mov_b32 s{d+2}, {hex(n)}")
        A(f"s_mov_b32 s{d+3}, 0x20000")
    def srdp(d, name, n): srd(d, P[name], P[name] + 1, n)

    def stamp(i):
        if not stamps: return
        if isinstance(i, str):
            lst = hst if i[0] == "h" else sst
            if i not in lst: return
            i = 1 + list(lst).index(i)
        A(f"s_memrealtime s[{90+2*i}:{91+2*i}]")
    def stamp_store(vt):
        if not stamps: return
        A(f"s_memrealtime s[{90+2*(stamps-1)}:{91+2*(stamps-1)}]")
        A("s_waitcnt lgkmcnt(0)")
        A("s_lshl_b32 s32, s2, 3")
        A("s_add_u32 s32, s32, s3")
        A(f"s_mul_i32 s32, s32, {stamps*8}")
        A(f"s_add_u32 s32, s32, {hex(W_STAMP)}")
        for i in range(stamps):
            A(f"v_mov_b32 v{vt+2*i}, s{90+2*i}")
            A(f"v_mov_b32 v{vt+2*i+1}, s{91+2*i}")
        A(f"v_mov_b32 v{vt+2*stamps}, 0")
        A("s_mov_b64 exec, 1")
        for i in range(stamps):
            A(f"buffer_store_dwordx2 v[{vt+2*i}:{vt+2*i+1}], v{vt+2*stamps}, s[24:27], s32 offen offset:{8*i}")
        A("s_mov_b64 exec, -1")

    def chain(op3, op2, dst, regs):
        if len(regs) == 2:
            A(f"{op2} v{dst}, {regs[0]}, {regs[1]}"); return
        A(f"{op3} v{dst}, {regs[0]}, {regs[1]}, {regs[2]}")
        i = 3
        while i < len(regs):
            if i + 1 < len(regs):
                A(f"{op3} v{dst}, v{dst}, {regs[i]}, {regs[i+1]}"); i += 2
            else:
                A(f"{op2} v{dst}, v{dst}, {regs[i]}"); i += 1
    def scores(K, Q, S, n):
        for r in range(4):
            for j in range(n):
                c = "0" if r == 0 else f"v{S+j}"
                A(f"v_dot2_f32_bf16 v{S+j}, v{K+4*j+r}, v{Q+r}, {c}")
        for st in (8, 4, 2, 1):
            for j in range(n):
                A(f"v_add_f32_dpp v{S+j}, v{S+j}, v{S+j} row_ror:{st} row_mask:0xf bank_mask:0xf")
    def round2(regs):
        for r in regs: A(f"v_cvt_pk_bf16_f32 v{r}, 0, v{r}")
        for r in regs: A(f"v_mul_f32 v{r}, {hex(F32(128 ** -0.5))}, v{r}")
        for r in regs: A(f"v_cvt_pk_bf16_f32 v{r}, 0, v{r}")
    def softmax(S, n, M, LS, ACC, AL, NM, PL, PH):
        if rnd: round2([S + j for j in range(n)])
        chain("v_max3_f32", "v_max_f32", AL, [f"v{S+j}" for j in range(n)] + [f"v{M}"])
        A(f"v_sub_f32 v{NM}, v{M}, v{AL}")
        A(f"v_mov_b32 v{M}, v{AL}")
        A(f"v_mul_f32 v{AL}, s7, v{NM}")
        A(f"v_mul_f32 v{NM}, s7, v{M}")
        A(f"v_exp_f32 v{AL}, v{AL}")
        for j in range(n):
            A(f"v_fma_f32 v{S+j}, v{S+j}, s7, -v{NM}")
        for j in range(n):
            A(f"v_exp_f32 v{S+j}, v{S+j}")
        for e in range(8):
            A(f"v_mul_f32 v{ACC+e}, v{ACC+e}, v{AL}")
        A(f"v_fma_f32 v{LS}, v{LS}, v{AL}, v{S}")
        for j in range(1, n):
            A(f"v_add_f32 v{LS}, v{LS}, v{S+j}")
        for j in range(n):
            A(f"v_cvt_pk_bf16_f32 v{PL+j}, v{S+j}, 0")
            A(f"v_cvt_pk_bf16_f32 v{PH+j}, 0, v{S+j}")
    def pv(V, n, ACC, PL, PH):
        for j in range(n):
            for r in range(4):
                A(f"v_dot2_f32_bf16 v{ACC+2*r}, v{V+4*j+r}, v{PL+j}, v{ACC+2*r}")
                A(f"v_dot2_f32_bf16 v{ACC+2*r+1}, v{V+4*j+r}, v{PH+j}, v{ACC+2*r+1}")
    def init_state(M, LS, ACC):
        for e in range(8): A(f"v_mov_b32 v{ACC+e}, 0")
        A(f"v_mov_b32 v{M}, 0xf149f2ca")
        A(f"v_mov_b32 v{LS}, 0")
    def finalize(M, LS, ACC, T, OPK, OLSE):
        A(f"v_mov_b32 v{T+1}, v{M}")
        A(f"v_mov_b32 v{T+2}, v{M}")
        A(f"v_permlane32_swap_b32 v{T+1}, v{T+2}")
        A(f"v_max_f32 v{T+1}, v{T+1}, v{T+2}")
        A(f"v_mov_b32 v{T+2}, v{T+1}")
        A(f"v_permlane16_swap_b32 v{T+1}, v{T+2}")
        A(f"v_max_f32 v{T}, v{T+1}, v{T+2}")
        A(f"v_sub_f32 v{T+1}, v{M}, v{T}")
        A(f"v_mul_f32 v{T+1}, s7, v{T+1}")
        A(f"v_exp_f32 v{T+1}, v{T+1}")
        A(f"v_mul_f32 v{LS}, v{LS}, v{T+1}")
        for e in range(8): A(f"v_mul_f32 v{ACC+e}, v{ACC+e}, v{T+1}")
        A(f"v_mov_b32 v{T+1}, v{LS}")
        A(f"v_mov_b32 v{T+2}, v{LS}")
        for e in range(4): A(f"v_permlane32_swap_b32 v{ACC+e}, v{ACC+e+4}")
        A(f"v_permlane32_swap_b32 v{T+1}, v{T+2}")
        for e in range(4): A(f"v_add_f32 v{ACC+e}, v{ACC+e}, v{ACC+e+4}")
        A(f"v_add_f32 v{T+1}, v{T+1}, v{T+2}")
        A(f"v_mov_b32 v{T+2}, v{T+1}")
        for e in range(2): A(f"v_permlane16_swap_b32 v{ACC+e}, v{ACC+e+2}")
        A(f"v_permlane16_swap_b32 v{T+1}, v{T+2}")
        A(f"v_add_f32 v{T+3}, v{T+1}, v{T+2}")
        for e in range(2): A(f"v_add_f32 v{ACC+e}, v{ACC+e}, v{ACC+e+2}")
        A(f"v_rcp_f32 v{T+1}, v{T+3}")
        A(f"v_log_f32 v{T+2}, v{T+3}")
        A(f"v_mul_f32 v{ACC}, v{ACC}, v{T+1}")
        A(f"v_mul_f32 v{ACC+1}, v{ACC+1}, v{T+1}")
        A(f"v_fma_f32 v{OLSE}, v{T}, s7, v{T+2}")
        A(f"v_cvt_pk_bf16_f32 v{OPK}, v{ACC}, v{ACC+1}")
    def combine(G, n, OPK, OLSE=None):
        T1, T2, T3, T4 = 56, 57, 58, 59
        chain("v_max3_f32", "v_max_f32", T1, [f"v{G+4*i+2}" for i in range(n)])
        for i in range(n): A(f"v_sub_f32 v{G+4*i+2}, v{G+4*i+2}, v{T1}")
        for i in range(n): A(f"v_exp_f32 v{G+4*i+2}, v{G+4*i+2}")
        for i in range(n):
            A(f"v_lshlrev_b32 v{G+4*i+1}, 16, v{G+4*i}")
            A(f"v_and_b32 v{G+4*i+3}, 0xffff0000, v{G+4*i}")
        A(f"v_add_f32 v{T4}, v{G+2}, v{G+6}")
        A(f"v_mul_f32 v{T2}, v{G+2}, v{G+1}")
        A(f"v_mul_f32 v{T3}, v{G+2}, v{G+3}")
        for i in range(2, n): A(f"v_add_f32 v{T4}, v{T4}, v{G+4*i+2}")
        if OLSE is not None: A(f"v_log_f32 v{OLSE}, v{T4}")
        A(f"v_rcp_f32 v{T4}, v{T4}")
        for i in range(1, n):
            A(f"v_fmac_f32 v{T2}, v{G+4*i+2}, v{G+4*i+1}")
            A(f"v_fmac_f32 v{T3}, v{G+4*i+2}, v{G+4*i+3}")
        if OLSE is not None: A(f"v_add_f32 v{OLSE}, v{OLSE}, v{T1}")
        A(f"v_mul_f32 v{T2}, v{T2}, v{T4}")
        A(f"v_mul_f32 v{T3}, v{T3}, v{T4}")
        A(f"v_cvt_pk_bf16_f32 v{OPK}, v{T2}, v{T3}")
    def chk(g, m, tg="s6"):
        A(f"v_bitop3_b32 v56, v{g}, v{g+1}, v{g+2} bitop3:0x96")
        A(f"v_xor_b32 v56, v56, v{g+3}")
        A(f"v_cmp_ne_u32 s[{m}:{m+1}], {tg}, v56")
    def combine2(G, n, addr_v, off):
        T1, T2, DEN, A0 = 56, 57, 58, 36
        if n == 1: A(f"v_mov_b32 v{T1}, v{G+2}")
        else: chain("v_max3_f32", "v_max_f32", T1, [f"v{G+4*u+2}" for u in range(n)])
        A(f"v_mov_b32 v{T2}, v{T1}")
        for u in range(n):
            A(f"v_lshlrev_b32 v{G+4*u+3}, 16, v{G+4*u}")
        A(f"v_permlane32_swap_b32 v{T1}, v{T2}")
        A(f"v_max_f32 v{T1}, v{T1}, v{T2}")
        for u in range(n): A(f"v_sub_f32 v{G+4*u+2}, v{G+4*u+2}, v{T1}")
        for u in range(n): A(f"v_exp_f32 v{G+4*u+2}, v{G+4*u+2}")
        for u in range(n): A(f"v_and_b32 v{G+4*u}, 0xffff0000, v{G+4*u}")
        for u in range(n):
            op = "v_mul_f32" if u == 0 else "v_fmac_f32"
            A(f"{op} v{A0}, v{G+4*u+2}, v{G+4*u+3}")
            A(f"{op} v{A0+1}, v{G+4*u+2}, v{G+4*u}")
            A(f"v_lshlrev_b32 v{G+4*u+3}, 16, v{G+4*u+1}")
            A(f"v_and_b32 v{G+4*u+1}, 0xffff0000, v{G+4*u+1}")
            if u == 0: A(f"v_mov_b32 v{DEN}, v{G+2}")
            else: A(f"v_add_f32 v{DEN}, v{DEN}, v{G+4*u+2}")
        A(f"v_mov_b32 v{DEN+1}, v{DEN}")
        for u in range(n):
            op = "v_mul_f32" if u == 0 else "v_fmac_f32"
            A(f"{op} v{A0+2}, v{G+4*u+2}, v{G+4*u+3}")
            A(f"{op} v{A0+3}, v{G+4*u+2}, v{G+4*u+1}")
        A(f"v_permlane32_swap_b32 v{DEN}, v{DEN+1}")
        A(f"v_add_f32 v{DEN}, v{DEN}, v{DEN+1}")
        A(f"v_permlane32_swap_b32 v{A0}, v{A0+2}")
        A(f"v_permlane32_swap_b32 v{A0+1}, v{A0+3}")
        A(f"v_rcp_f32 v{DEN}, v{DEN}")
        A(f"v_add_f32 v{A0}, v{A0}, v{A0+2}")
        A(f"v_add_f32 v{A0+1}, v{A0+1}, v{A0+3}")
        A(f"v_mul_f32 v{A0}, v{A0}, v{DEN}")
        A(f"v_mul_f32 v{A0+1}, v{A0+1}, v{DEN}")
        A(f"v_cvt_pk_bf16_f32 v{A0}, v{A0}, v{A0+1}")
        A(f"ds_write_b32 v{addr_v}, v{A0} offset:{off}")
    def poll_masked(n, issue1, tagregs, sleep, mbase=64, extra=None, tagreg="s6", presleep=0):
        top, done = lab("pk"), lab("pkdone")
        A(f"s_mov_b32 s42, {spin}")
        for i in range(n): A(f"s_mov_b64 s[{mbase+2*i}:{mbase+2*i+1}], -1")
        A.label(top)
        for i in range(presleep): A("s_sleep 127")
        for i in range(n):
            A(f"s_mov_b64 exec, s[{mbase+2*i}:{mbase+2*i+1}]")
            issue1(i)
        A("s_mov_b64 exec, -1")
        if extra: extra[0]()
        A("s_waitcnt vmcnt(0) lgkmcnt(0)" if extra else "s_waitcnt vmcnt(0)")
        for i in range(n):
            tr = tagregs(i)
            if isinstance(tr, int):
                chk(tr, mbase + 2 * i)
                if i == 0: A(f"s_mov_b64 s[40:41], s[{mbase}:{mbase+1}]")
                else: A(f"s_or_b64 s[40:41], s[40:41], s[{mbase+2*i}:{mbase+2*i+1}]")
                continue
            A(f"v_cmp_ne_u32 s[{mbase+2*i}:{mbase+2*i+1}], {tagreg}, v{tr[0]}")
            for r in tr[1:]:
                A(f"v_cmp_ne_u32 vcc, {tagreg}, v{r}")
                A(f"s_or_b64 s[{mbase+2*i}:{mbase+2*i+1}], s[{mbase+2*i}:{mbase+2*i+1}], vcc")
            if i == 0: A(f"s_mov_b64 s[40:41], s[{mbase}:{mbase+1}]")
            else: A(f"s_or_b64 s[40:41], s[40:41], s[{mbase+2*i}:{mbase+2*i+1}]")
        A("s_cmp_eq_u64 s[40:41], 0")
        A(f"s_cbranch_scc1 {done}")
        if extra: extra[1]()
        elif sleep: A(f"s_sleep {sleep}")
        A("s_sub_u32 s42, s42, 1")
        A("s_cmp_lg_u32 s42, 0")
        A(f"s_cbranch_scc1 {top}")
        A.label(done)
    def flag_add(addr_v, off=0):
        A("s_mov_b64 exec, 1")
        A(f"ds_add_u32 v{addr_v}, v63 offset:{off}")
        A("s_mov_b64 exec, -1")
    def flag_wait(addr_v, off, target, tmp_v, sleep):
        top, done = lab("fw"), lab("fwdone")
        A(f"s_mov_b32 s42, {spin*16}")
        A.label(top)
        A(f"ds_read_b32 v{tmp_v}, v{addr_v} offset:{off}")
        A("s_waitcnt lgkmcnt(0)")
        A(f"v_readfirstlane_b32 s47, v{tmp_v}")
        A(f"s_cmp_ge_u32 s47, {target}")
        A(f"s_cbranch_scc1 {done}")
        if sleep: A(f"s_sleep {sleep}")
        A("s_sub_u32 s42, s42, 1")
        A("s_cmp_lg_u32 s42, 0")
        A(f"s_cbranch_scc1 {top}")
        A.label(done)
    def mktag():
        A("s_mul_i32 s6, s6, 0x9e3779b1")
        A("s_add_u32 s6, s6, 0x7f4a7c15")
        A("s_cmp_eq_u32 s6, 0")
        A("s_cselect_b32 s6, 2, s6")

    A.label(NAME)
    A("s_cmp_ge_u32 s2, 256")
    A("s_cbranch_scc1 L_end")
    for i in range(stamps): stamp(i)
    A("s_load_dwordx16 s[64:79], s[0:1], 0")
    A("s_load_dwordx8 s[80:87], s[0:1], 64")
    A("s_load_dwordx2 s[88:89], s[0:1], 96")
    A("v_lshrrev_b32 v1, 6, v0")
    A("v_readfirstlane_b32 s3, v1")
    A("v_and_b32 v1, 63, v0")
    A("s_lshr_b32 s4, s2, 3")
    A("s_and_b32 s5, s2, 7")
    if rot:
        A(f"s_mul_i32 s7, s5, {rot}")
        A("s_add_u32 s4, s4, s7")
        A("s_and_b32 s4, s4, 31")
    A(f"s_mov_b32 s7, {hex(F32(1.4426950408889634) if rnd else CEXP)}")
    A("v_lshlrev_b32 v2, 4, v1")
    A(f"v_mov_b32 v62, {L_FL}")
    A("v_mov_b32 v63, 1")
    A("v_mov_b32 v7, 0")
    A("v_and_b32 v6, 15, v1")
    A("v_lshl_add_u32 v6, v6, 2, v62")
    A("ds_write_b32 v6, v7")
    A("s_waitcnt lgkmcnt(0)")
    if not lateb0: A("s_barrier")
    A("s_load_dword s6, s[88:89], 0")
    srdp(24, "ws", 0x40000000)
    A("s_cmp_ge_u32 s3, 4")
    A("s_cbranch_scc1 L_stream")

    stamp("h0a")
    A("s_lshr_b32 s33, s5, 2")
    A("s_bfe_u32 s34, s5, 0x10001")
    A("s_and_b32 s35, s5, 1")
    A("s_cmp_eq_u32 s33, 0")
    A(f"s_cselect_b32 s36, s{P['A_wq']}, s{P['B_wq']}")
    A(f"s_cselect_b32 s37, s{P['A_wq']+1}, s{P['B_wq']+1}")
    A(f"s_cselect_b32 s38, s{P['A_x']}, s{P['B_x']}")
    A(f"s_cselect_b32 s39, s{P['A_x']+1}, s{P['B_x']+1}")
    srd(12, 36, 37, 0x800000)
    srd(8, 38, 39, 8192)
    A("v_lshrrev_b32 v3, 3, v1")
    A("v_lshlrev_b32 v3, 13, v3")
    A("v_and_b32 v4, 7, v1")
    A("v_lshl_add_u32 v3, v4, 4, v3")
    A("v_and_b32 v4, 16, v1")
    A("v_lshlrev_b32 v4, 1, v4")
    A("v_xor_b32 v3, v3, v4")
    A("v_xor_b32 v4, 64, v3")
    A("s_lshl_b32 s43, s35, 9")
    A("s_lshl_b32 s44, s3, 7")
    A("s_add_u32 s43, s43, s44")
    A("s_lshl_b32 s43, s43, 13")
    A("s_lshl_b32 s44, s4, 8")
    A("s_add_u32 s43, s43, s44")
    A("s_lshl_b32 s44, s34, 7")
    A("s_add_u32 s43, s43, s44")
    A("s_lshl_b32 s44, s3, 14")
    for u in range(16):
        A("s_mov_b32 m0, s44")
        A(f"buffer_load_dwordx4 v{3+(u&1)}, s[12:15], s43 offen nt lds")
        if u < 15:
            A("s_add_u32 s43, s43, 0x10000")
            A("s_add_u32 s44, s44, 1024")
    XF = 64
    A("s_lshl_b32 s43, s3, 11")
    A("s_lshl_b32 s44, s35, 10")
    A("s_add_u32 s43, s43, s44")
    A("s_mul_i32 s44, s3, 1088")
    A(f"s_add_u32 s44, s44, {L_X}")
    A("s_mov_b32 m0, s44")
    A("buffer_load_dwordx4 v2, s[8:11], s43 offen lds")
    if not gb: flag_add(62, 36)
    A("s_or_b32 s43, s5, s3")
    A("s_cmp_lg_u32 s43, 0")
    A("s_cbranch_scc1 L_noinit")
    A("v_lshlrev_b32 v6, 13, v1")
    A("s_lshl_b32 s43, s4, 8")
    A(f"s_add_u32 s43, s43, {hex(W_CNT)}")
    A("s_mov_b64 exec, 15")
    A("buffer_store_dword v7, v6, s[24:27], s43 offen sc1")
    A("s_mov_b64 exec, -1")
    A.label("L_noinit")
    srdp(16, "B_k", 0x2000000)
    srdp(20, "B_v", 0x2000000)
    A("s_lshr_b32 s59, s2, 4")
    A("s_and_b32 s58, s2, 15")
    A("s_lshl_b32 s60, s59, 21")
    A("s_lshl_b32 s61, s58, 15")
    A("s_add_u32 s60, s60, s61")
    A("s_lshl_b32 s61, s3, 13")
    A("s_add_u32 s60, s60, s61")
    A(f"s_add_u32 s60, s60, {6144*256}")
    A("s_add_u32 s61, s60, 4096")
    KB, VB = 192, 224
    def bkv(which):
        for base, sd in which:
            for u in range(8):
                A(f"buffer_load_dwordx4 v[{base+4*u}:{base+4*u+3}], v2, {sd}, s{60+u//4} offen offset:{(u%4)*1024} nt")
    BK_, BV_ = (KB, "s[16:19]"), (VB, "s[20:23]")
    early_b = {0: [BK_, BV_], 1: [], 2: [BK_], 3: []}[bl]
    late_b = {0: [], 1: [BK_, BV_], 2: [BV_], 3: [BK_, BV_]}[bl]
    bkv(early_b)
    if lateb0: A("s_barrier")
    elif gb: flag_add(62, 36)
    stamp("h0b")
    A("s_waitcnt lgkmcnt(0)")
    A("v_and_b32 v11, 3, v1")
    A("v_mul_u32_u24 v11, 1088, v11")
    A("v_lshrrev_b32 v5, 4, v1")
    A("v_lshl_add_u32 v11, v5, 4, v11")
    A(f"v_add_u32 v11, {L_X}, v11")
    srdp(28, "out", 16384)
    if woh:
        srdp(8, "A_wo", 0x800000)
        srdp(12, "B_wo", 0x800000)
    A("v_lshrrev_b32 v5, 4, v1")
    A("v_lshlrev_b32 v5, 3, v5")
    A("v_bfe_u32 v6, v1, 2, 2")
    A("v_add_u32 v5, v5, v6")
    A("v_and_b32 v6, 3, v1")
    A("v_lshlrev_b32 v6, 3, v6")
    A("v_lshl_add_u32 v8, v5, 7, v6")
    A("v_bfe_u32 v12, v1, 3, 2")
    A("v_xor_b32 v12, s3, v12")
    A("v_lshl_add_u32 v8, v12, 5, v8")
    A(f"v_add_u32 v9, {L_WO}, v8")
    mktag()
    A("v_and_b32 v4, 3, v1")
    A("v_lshlrev_b32 v4, 10, v4")
    A("v_lshrrev_b32 v5, 4, v1")
    A("v_lshl_add_u32 v4, v5, 5, v4")
    A("v_and_b32 v5, 4, v1")
    A("v_lshl_add_u32 v4, v5, 2, v4")
    A("s_lshl_b32 s43, s4, 1")
    A("s_add_u32 s43, s43, s33")
    A("s_lshl_b32 s43, s43, 1")
    A("s_add_u32 s43, s43, s35")
    A("s_lshl_b32 s43, s43, 12")
    A("s_lshl_b32 s44, s34, 9")
    A("s_add_u32 s43, s43, s44")
    A("s_lshl_b32 s44, s3, 7")
    A("s_add_u32 s43, s43, s44")
    A(f"s_add_u32 s43, s43, {hex(W_QP)}")
    for r in (21, 23): A(f"v_mov_b32 v{r}, s6")
    A("s_mov_b32 s56, 0x00ff00ff")
    A("s_mov_b32 s57, 0x00ff00ff")
    A(f"s_waitcnt vmcnt({8*len(early_b)})")
    flag_add(62, 0)
    flag_wait(62, 0, 4, 10, 0)
    stamp("h1")
    WF = 128
    for ks in range(16):
        A(f"ds_read_b64_tr_b16 v[{WF+4*ks}:{WF+4*ks+1}], v8 offset:{ks*4096}")
        A(f"ds_read_b64_tr_b16 v[{WF+4*ks+2}:{WF+4*ks+3}], v8 offset:{ks*4096+512}")
        A(f"ds_read_b128 v[{XF+4*ks}:{XF+4*ks+3}], v11 offset:{ks*64}")
    for ks in range(16):
        A(f"s_waitcnt lgkmcnt({min(15, 3*(15-ks))})")
        d = 12 + 4 * (ks & 1)
        c = "0" if ks < 2 else f"v[{d}:{d+3}]"
        A(f"v_mfma_f32_16x16x32_bf16 v[{d}:{d+3}], v[{WF+4*ks}:{WF+4*ks+3}], v[{XF+4*ks}:{XF+4*ks+3}], {c}")
    for r in range(4): A(f"v_add_f32 v{20+2*r}, v{12+r}, v{16+r}")
    A("v_mov_b32_dpp v20, v24 row_shr:4 row_mask:0xf bank_mask:0x2")
    A("v_mov_b32_dpp v22, v26 row_shr:4 row_mask:0xf bank_mask:0x2")
    A("s_mov_b64 exec, s[56:57]")
    A(f"buffer_store_dwordx4 v[20:23], v4, s[24:27], s43 offen {qst}")
    A("s_mov_b64 exec, -1")
    stamp("h2")
    A("s_lshl_b32 s43, s4, 14")
    A("s_lshl_b32 s44, s3, 10")
    A("s_add_u32 s43, s43, s44")
    A(f"s_add_u32 s43, s43, {hex(W_QP)}")
    A("s_add_u32 s44, s43, 4096")
    A("s_lshl_b32 s45, s3, 8")
    A(f"s_add_u32 s45, s45, {L_QA}")
    A("v_lshl_add_u32 v10, v1, 2, s45")
    poll_masked(2, lambda i: A(f"buffer_load_dwordx4 v[{28+4*i}:{31+4*i}], v2, s[24:27], s{43+i} offen {qld}"),
                lambda i: [29 + 4 * i, 31 + 4 * i], qsl)
    A("v_add_f32 v28, v28, v32")
    A("v_add_f32 v30, v30, v34")
    A("v_cvt_pk_bf16_f32 v28, v28, v30")
    A("ds_write_b32 v10, v28")
    if bl == 3: bkv(late_b)
    A("s_waitcnt lgkmcnt(0)")
    A("s_barrier")
    if bl in (1, 2): bkv(late_b)
    stamp("h3")
    if 1 in ab: A("s_branch L_hend")
    A("s_and_b32 s48, s59, 3")
    A("s_lshl_b32 s48, s48, 3")
    A("s_lshl_b32 s49, s3, 1")
    A("s_add_u32 s48, s48, s49")
    A("s_lshl_b32 s49, s48, 14")
    A("s_lshr_b32 s61, s59, 2")
    A("s_lshl_b32 s50, s61, 10")
    A("s_add_u32 s49, s49, s50")
    A(f"s_add_u32 s49, s49, {hex(W_QP+8192)}")
    A("s_add_u32 s50, s49, 4096")
    A("s_add_u32 s51, s49, 16384")
    A("s_add_u32 s52, s49, 20480")
    poll_masked(4, lambda i: A(f"buffer_load_dwordx4 v[{28+4*i}:{31+4*i}], v2, s[24:27], s{49+i} offen {qld}"),
                lambda i: [29 + 4 * i, 31 + 4 * i], 16)
    A("v_add_f32 v28, v28, v32")
    A("v_add_f32 v30, v30, v34")
    A("v_add_f32 v36, v36, v40")
    A("v_add_f32 v38, v38, v42")
    A("v_cvt_pk_bf16_f32 v28, v28, v30")
    A("v_cvt_pk_bf16_f32 v36, v36, v38")
    A("s_lshl_b32 s43, s3, 9")
    A(f"s_add_u32 s43, s43, {L_QB}")
    A("v_lshl_add_u32 v10, v1, 2, s43")
    A("ds_write_b32 v10, v28")
    A("ds_write_b32 v10, v36 offset:256")
    A("s_waitcnt lgkmcnt(0)")
    if 3 in ab: A("s_branch L_hend")
    flag_add(62, 4)
    flag_wait(62, 4, 4, 10, 1)
    A("v_and_b32 v11, 0xf0, v2")
    A(f"v_add_u32 v11, {L_QB}, v11")
    A("v_and_b32 v4, 15, v1")
    A("v_lshlrev_b32 v4, 5, v4")
    A("v_lshrrev_b32 v5, 4, v1")
    A("v_lshl_add_u32 v4, v5, 3, v4")
    A("s_lshl_b32 s43, s3, 12")
    A("v_add_u32 v4, s43, v4")
    A("s_mov_b32 s45, 8")
    A.label("L_battn")
    A("ds_read_b128 v[64:67], v11")
    A("v_add_u32 v11, 256, v11")
    init_state(68, 69, 72)
    A("s_waitcnt lgkmcnt(0)")
    scores(KB, 64, 80, 8)
    softmax(80, 8, 68, 69, 72, 70, 71, 88, 96)
    pv(VB, 8, 72, 88, 96)
    finalize(68, 69, 72, 12, 17, 16)
    A("ds_write_b64 v4, v[16:17]")
    A("v_add_u32 v4, 512, v4")
    A("s_sub_u32 s45, s45, 1")
    A("s_cmp_lg_u32 s45, 0")
    A("s_cbranch_scc1 L_battn")
    A("s_waitcnt lgkmcnt(0)")
    flag_add(62, 12)
    flag_wait(62, 12, 4, 10, 1)
    A("s_lshl_b32 s43, s3, 10")
    A("v_lshl_add_u32 v4, v1, 3, s43")
    A("s_lshl_b32 s43, s48, 2")
    A("s_add_u32 s43, s43, s61")
    A("s_lshl_b32 s43, s43, 13")
    A("s_lshl_b32 s44, s58, 8")
    A("s_add_u32 s43, s43, s44")
    A(f"s_add_u32 s43, s43, {hex(W_PB)}")
    A("s_add_u32 s44, s43, 0x8000")
    G = 64
    for k in range(2):
        for w_ in range(4):
            A(f"ds_read_b64 v[{G+16*k+4*w_+2}:{G+16*k+4*w_+3}], v4 offset:{w_*4096+k*512}")
    A("v_and_b32 v5, 31, v1")
    A("v_lshlrev_b32 v5, 3, v5")
    A("v_lshrrev_b32 v6, 5, v1")
    A("v_lshl_add_u32 v5, v6, 12, v5")
    A("s_mov_b32 s46, 0x55555555")
    A("s_mov_b32 s47, 0x55555555")
    A("s_waitcnt lgkmcnt(0)")
    for k in range(2):
        o = 12 + 4 * k
        for w_ in range(4): A(f"v_mov_b32 v{G+16*k+4*w_}, v{G+16*k+4*w_+3}")
        combine(G + 16 * k, 4, o, o + 2)
        A(f"v_mov_b32_dpp v{o+1}, v{o} quad_perm:[1,1,3,3] row_mask:0xf bank_mask:0xf")
        A(f"v_bitop3_b32 v{o+3}, v{o}, v{o+1}, v{o+2} bitop3:0x96")
        A(f"v_xor_b32 v{o+3}, s6, v{o+3}")
        A("s_mov_b64 exec, s[46:47]")
        A(f"buffer_store_dwordx4 v[{o}:{o+3}], v5, s[24:27], s{43+k} offen {bst}")
        A("s_mov_b64 exec, -1")
    stamp("h4")
    if 4 in ab: A("s_branch L_hend")
    A("s_cmp_lg_u32 s3, 3")
    A("s_cbranch_scc1 L_nol1")
    A("s_lshl_b32 s45, s4, 3")
    A("s_add_u32 s45, s45, s5")
    A("s_lshl_b32 s46, s45, 12")
    A(f"s_add_u32 s46, s46, {hex(W_PB)}")
    if l1j: flag_wait(62, 44, 1, 56, 32)
    poll_masked(4, lambda i: A(f"buffer_load_dwordx4 v[{G+4*i}:{G+4*i+3}], v2, s[24:27], s46 offen offset:{i*1024} {bld}"),
                lambda i: G + 4 * i, l1sl if l1j else 0, presleep=0 if l1j else w1n)
    flag_add(62, 40)
    U1, U2, DEN, A0 = 56, 57, 58, 36
    chain("v_max3_f32", "v_max_f32", U1, [f"v{G+4*u+2}" for u in range(4)])
    for sw in ("v_permlane32_swap_b32", "v_permlane16_swap_b32"):
        A(f"v_mov_b32 v{U2}, v{U1}")
        A(f"{sw} v{U1}, v{U2}")
        A(f"v_max_f32 v{U1}, v{U1}, v{U2}")
    for u in range(4): A(f"v_sub_f32 v{G+4*u+2}, v{G+4*u+2}, v{U1}")
    for u in range(4): A(f"v_exp_f32 v{G+4*u+2}, v{G+4*u+2}")
    for u in range(4):
        op = "v_mul_f32" if u == 0 else "v_fmac_f32"
        for k in range(2):
            A(f"v_lshlrev_b32 v{G+4*u+3}, 16, v{G+4*u+k}")
            A(f"v_and_b32 v{G+4*u+k}, 0xffff0000, v{G+4*u+k}")
            A(f"{op} v{A0+2*k}, v{G+4*u+2}, v{G+4*u+3}")
            A(f"{op} v{A0+2*k+1}, v{G+4*u+2}, v{G+4*u+k}")
        if u == 0: A(f"v_mov_b32 v{DEN}, v{G+2}")
        else: A(f"v_add_f32 v{DEN}, v{DEN}, v{G+4*u+2}")
    for r in (DEN, A0, A0 + 1, A0 + 2, A0 + 3):
        for sw in ("v_permlane32_swap_b32", "v_permlane16_swap_b32"):
            A(f"v_mov_b32 v{U2}, v{r}")
            A(f"{sw} v{r}, v{U2}")
            A(f"v_add_f32 v{r}, v{r}, v{U2}")
    A(f"v_rcp_f32 v{DEN}, v{DEN}")
    for k in range(4): A(f"v_mul_f32 v{A0+k}, v{A0+k}, v{DEN}")
    A(f"v_cvt_pk_bf16_f32 v12, v{A0}, v{A0+1}")
    A(f"v_cvt_pk_bf16_f32 v14, v{A0+2}, v{A0+3}")
    A("v_mov_b32 v13, s6")
    A("v_mov_b32 v15, s6")
    A("s_lshr_b32 s43, s4, 1")
    A("s_lshl_b32 s43, s43, 12")
    A("s_lshr_b32 s44, s5, 1")
    A("s_lshl_b32 s44, s44, 10")
    A("s_add_u32 s43, s43, s44")
    A("s_and_b32 s44, s4, 1")
    A("s_lshl_b32 s44, s44, 9")
    A("s_add_u32 s43, s43, s44")
    A("s_and_b32 s44, s5, 1")
    A("s_lshl_b32 s44, s44, 8")
    A("s_add_u32 s43, s43, s44")
    A(f"s_add_u32 s43, s43, {hex(W_OB2)}")
    A("s_mov_b64 exec, 0xffff")
    A(f"buffer_store_dwordx4 v[12:15], v2, s[24:27], s43 offen {bst}")
    A("s_mov_b64 exec, -1")
    A.label("L_nol1")
    if 2 in ab: A("s_branch L_hend")

    FR = [128, 160]
    flag_wait(62, 8, 4, 56, 8)
    for T_ in range(2):
        for ks in range(8):
            r = FR[T_] + ks * 4
            off = T_ * 32768 + ks * 4096
            A(f"ds_read_b64_tr_b16 v[{r}:{r+1}], v9 offset:{off}")
            A(f"ds_read_b64_tr_b16 v[{r+2}:{r+3}], v9 offset:{off+512}")
    G = 64
    A("s_mul_i32 s43, s3, 576")
    A(f"s_add_u32 s43, s43, {L_O}")
    A("v_and_b32 v60, 31, v1")
    A("v_lshl_add_u32 v60, v60, 3, s43")
    A("v_lshrrev_b32 v7, 5, v1")
    A("v_lshl_add_u32 v60, v7, 2, v60")
    A("v_and_b32 v6, 3, v1")
    A("v_mul_u32_u24 v6, 576, v6")
    A("v_lshrrev_b32 v7, 4, v1")
    A("v_lshl_add_u32 v6, v7, 4, v6")
    A(f"v_add_u32 v6, {L_O}, v6")
    A("v_and_b32 v8, 3, v1")
    A("v_lshlrev_b32 v8, 7, v8")
    A("v_lshl_add_u32 v8, v7, 4, v8")
    A("v_and_b32 v7, 4, v1")
    A("v_lshl_add_u32 v8, v7, 4, v8")
    A("s_lshl_b32 s52, s4, 3")
    A("s_add_u32 s52, s52, s5")
    if ymap:
        A("s_and_b32 s63, s52, 15")
        A("s_lshl_b32 s63, s63, 4")
        A("s_lshr_b32 s44, s4, 1")
        A("s_add_u32 s48, s63, s44")
    else:
        A("s_mov_b32 s48, s52")
    A("s_lshl_b32 s61, s48, 7")
    A(f"s_add_u32 s61, s61, {hex(W_QP)}")
    A("s_add_u32 s63, s61, 0x40000")
    A("s_and_b32 s60, s48, 3")
    A("s_lshl_b32 s60, s60, 12")
    A("s_lshr_b32 s44, s48, 2")
    A("s_lshl_b32 s44, s44, 5")
    A("s_add_u32 s60, s60, s44")
    A("s_lshl_b32 s52, s52, 11")
    A("s_lshl_b32 s53, s3, 9")
    A("s_add_u32 s52, s52, s53")
    A(f"s_add_u32 s52, s52, {hex(W_QP)}")
    A("s_xor_b32 s53, s6, 0x5bd1e994")
    for r in (21, 23): A(f"v_mov_b32 v{r}, s53")
    A("v_and_b32 v11, 3, v1")
    A("v_lshlrev_b32 v11, 3, v11")
    A("v_lshl_add_u32 v11, v7, 9, v11")
    A("v_lshrrev_b32 v5, 3, v1")
    A("v_lshlrev_b32 v5, 15, v5")
    A("v_and_b32 v4, 0x70, v2")
    A("v_add_u32 v5, v5, v4")
    A("s_lshl_b32 s43, s3, 2")
    A("v_add_u32 v10, s43, v62")
    A("s_lshr_b32 s45, s4, 1")
    A("s_lshl_b32 s46, s45, 12")
    A("s_lshl_b32 s44, s3, 10")
    A("s_add_u32 s46, s46, s44")
    A(f"s_add_u32 s46, s46, {hex(W_OB2)}")
    A("s_lshl_b32 s80, s45, 16")
    A("s_lshl_b32 s44, s3, 9")
    A("s_add_u32 s80, s80, s44")
    A(f"s_add_u32 s80, s80, {hex(W_PB)}")
    for i in range(1, 8): A(f"s_add_u32 s{80+i}, s80, {i*8192}")
    A("v_and_b32 v3, 31, v1")
    A("v_lshlrev_b32 v3, 4, v3")
    A("v_lshrrev_b32 v4, 5, v1")
    A("v_lshl_add_u32 v3, v4, 12, v3")
    A("s_mul_i32 s43, s3, 576")
    A(f"s_add_u32 s43, s43, {L_O+2304}")
    A("v_lshl_add_u32 v4, v1, 3, s43")
    A("s_xor_b32 s54, s6, 0x2545f490")
    def gemv(T_, D):
        OFR = 96
        for ks in range(8):
            A(f"ds_read_b128 v[{OFR+4*ks}:{OFR+4*ks+3}], v6 offset:{T_*2304+ks*64}")
        for ks in range(8):
            A(f"s_waitcnt lgkmcnt({7-ks})")
            d = D + 4 * (ks & 1)
            r = FR[T_] + ks * 4
            c = "0" if ks < 2 else f"v[{d}:{d+3}]"
            A(f"v_mfma_f32_16x16x32_bf16 v[{d}:{d+3}], v[{r}:{r+3}], v[{OFR+4*ks}:{OFR+4*ks+3}], {c}")
        for r in range(4): A(f"v_add_f32 v{D+r}, v{D+r}, v{D+4+r}")
    if emid != 2: flag_wait(10, 16, 1, 56, esl)
    stamp("h5")
    poll_masked(1, lambda i: A(f"buffer_load_dwordx4 v[{G}:{G+3}], v2, s[24:27], s46 offen {bld}"),
                lambda i: [G + 1, G + 3], 16 if emid != 2 else 0, presleep=o2n if emid == 2 else 0)
    A(f"v_mov_b32 v{G+1}, v{G+2}")
    A(f"ds_write_b64 v4, v[{G}:{G+1}]")
    A("s_waitcnt lgkmcnt(0)")
    flag_add(62, 32)
    flag_wait(62, 32, 4, 56, 1 if emid != 2 else 16)
    gemv(1, 12)
    A("v_cvt_pk_bf16_f32 v24, v12, v13")
    A("v_cvt_pk_bf16_f32 v26, v14, v15")
    if emid: flag_wait(10, 48, 1, 56, xsl)
    flag_wait(10, 48, 2, 56, 0)
    if pd: A(f"s_sleep {pd}")
    stamp("h6")
    top, done, nis, np0, np1, nc0, nc1 = (lab(x) for x in ("pa", "padone", "nis", "np0", "np1", "nc0", "nc1"))
    A(f"s_mov_b32 s42, {spin}")
    for i in range(8): A(f"s_mov_b64 s[{64+2*i}:{65+2*i}], -1")
    A("s_mov_b32 s44, 0")
    A("s_mov_b32 s45, 0")
    A.label(top)
    A("s_cmp_eq_u32 s44, 3")
    A(f"s_cbranch_scc1 {nis}")
    for i in range(8):
        A(f"s_mov_b64 exec, s[{64+2*i}:{65+2*i}]")
        A(f"buffer_load_dwordx4 v[{G+4*i}:{G+4*i+3}], v3, s[24:27], s{80+i} offen {ald}")
    A("s_mov_b64 exec, -1")
    A.label(nis)
    for k, np_ in ((0, np0), (1, np1)):
        A(f"s_bitcmp1_b32 s45, {k}")
        A(f"s_cbranch_scc0 {np_}")
        combine2(G + 16 * k, 4, 60, 256 * k)
        A.label(np_)
    A("s_mov_b32 s45, 0")
    A("s_cmp_eq_u32 s44, 3")
    A(f"s_cbranch_scc1 {done}")
    A("s_waitcnt vmcnt(0)")
    for k, nc in ((0, nc0), (1, nc1)):
        A(f"s_bitcmp1_b32 s44, {k}")
        A(f"s_cbranch_scc1 {nc}")
        for i in range(4 * k, 4 * k + 4): chk(G + 4 * i, 64 + 2 * i, "s54")
        b0 = 64 + 8 * k
        A(f"s_or_b64 s[40:41], s[{b0}:{b0+1}], s[{b0+2}:{b0+3}]")
        A(f"s_or_b64 vcc, s[{b0+4}:{b0+5}], s[{b0+6}:{b0+7}]")
        A("s_or_b64 s[40:41], s[40:41], vcc")
        A(f"s_cselect_b32 s47, 0, {1<<k}")
        A("s_or_b32 s44, s44, s47")
        A("s_or_b32 s45, s45, s47")
        A.label(nc)
    if pbk:
        nb_ = lab("nbk")
        A("s_bcnt1_i32_b64 s47, s[64:65]")
        for i in range(1, 8):
            A(f"s_bcnt1_i32_b64 s43, s[{64+2*i}:{65+2*i}]")
            A("s_add_u32 s47, s47, s43")
        A(f"s_cmp_le_u32 s47, {pbt}")
        A(f"s_cbranch_scc1 {nb_}")
        A(f"s_sleep {pbk}")
        A.label(nb_)
    A("s_sub_u32 s42, s42, 1")
    A("s_cmp_lg_u32 s42, 0")
    A(f"s_cbranch_scc1 {top}")
    A.label(done)
    stamp("h7")
    A("s_waitcnt lgkmcnt(0)")
    A("s_barrier")
    gemv(0, 12)
    A("v_cvt_pk_bf16_f32 v20, v12, v13")
    A("v_cvt_pk_bf16_f32 v22, v14, v15")
    A("v_mov_b32_dpp v20, v24 row_shr:4 row_mask:0xf bank_mask:0x2")
    A("v_mov_b32_dpp v22, v26 row_shr:4 row_mask:0xf bank_mask:0x2")
    A("s_mov_b64 exec, s[56:57]")
    A(f"buffer_store_dwordx4 v[20:23], v8, s[24:27], s52 offen {yst}")
    A("s_mov_b64 exec, -1")
    stamp("h8")
    A("s_cmp_lg_u32 s3, 0")
    A("s_cbranch_scc1 L_hend")
    poll_masked(2, lambda i: A(f"buffer_load_dwordx4 v[{G+4*i}:{G+4*i+3}], v5, s[24:27], s{61+2*i} offen {yld}"),
                lambda i: [G + 4 * i + 1, G + 4 * i + 3], ysl, tagreg="s53")
    stamp("h9")
    U = G + 16
    for i in range(2):
        A(f"v_lshlrev_b32 v{U+4*i}, 16, v{G+4*i}")
        A(f"v_and_b32 v{U+4*i+1}, 0xffff0000, v{G+4*i}")
        A(f"v_lshlrev_b32 v{U+4*i+2}, 16, v{G+4*i+2}")
        A(f"v_and_b32 v{U+4*i+3}, 0xffff0000, v{G+4*i+2}")
    for k in range(4):
        A(f"v_add_f32 v{U+k}, v{U+k}, v{U+4+k}")
    A(f"v_permlane32_swap_b32 v{U}, v{U+2}")
    A(f"v_permlane32_swap_b32 v{U+1}, v{U+3}")
    A(f"v_add_f32 v{U}, v{U}, v{U+2}")
    A(f"v_add_f32 v{U+1}, v{U+1}, v{U+3}")
    A(f"v_add_f32_dpp v{U}, v{U}, v{U} row_ror:8 row_mask:0xf bank_mask:0xf")
    A(f"v_add_f32_dpp v{U+1}, v{U+1}, v{U+1} row_ror:8 row_mask:0xf bank_mask:0xf")
    A(f"v_mov_b32 v{U+2}, v{U}")
    A(f"v_mov_b32 v{U+3}, v{U+1}")
    A(f"v_permlane16_swap_b32 v{U}, v{U+2}")
    A(f"v_permlane16_swap_b32 v{U+1}, v{U+3}")
    A(f"v_add_f32 v{U}, v{U}, v{U+2}")
    A(f"v_add_f32 v{U+1}, v{U+1}, v{U+3}")
    A(f"v_cvt_pk_bf16_f32 v{U+4}, v{U}, v{U+1}")
    A(f"v_mov_b32 v{U+5}, v{U+4}")
    A(f"v_permlane32_swap_b32 v{U+4}, v{U+5}")
    A("s_mov_b64 exec, 0xff")
    A(f"buffer_store_dwordx2 v[{U+4}:{U+5}], v11, s[28:31], s60 offen {ost}")
    A("s_mov_b64 exec, -1")
    A("s_cmp_lg_u32 s2, 0")
    A("s_cbranch_scc1 L_hend")
    A("v_mov_b32 v3, 0")
    A("v_mov_b32 v4, s6")
    A("s_mov_b64 exec, 1")
    A(f"buffer_store_dword v4, v3, s[24:27], 0 offen {ost}")
    A("s_mov_b64 exec, -1")
    A.label("L_hend")
    stamp_store(240)
    A("s_endpgm")

    A.label("L_stream")
    srdp(8, "A_k", 0x10000000)
    A("s_sub_u32 s33, s3, 4")
    A("s_lshl_b32 s38, s33, 5")
    A("s_add_u32 s38, s38, s4")
    A("s_lshl_b32 s39, s38, 8")
    A("s_lshl_b32 s38, s38, 21")
    A(f"s_mul_i32 s28, s33, {rc}")
    A("s_add_u32 s29, s28, s5")
    if rhs is not None:
        A(f"s_lshr_b32 s37, s4, {rhs}")
        A("s_add_u32 s29, s29, s37")
    A("s_and_b32 s29, s29, 7")
    A(f"s_lshl_b32 s29, s29, {12 if ti else 14}")
    A("s_add_u32 s29, s29, s38")
    A("s_mov_b32 s30, s29")
    for q in range(4): A(f"v_add_u32 v{48+q}, {q*(32768 if ti else 4096)}, v2")
    R0 = 64
    def load(q, so, base=None):
        for j in range(4):
            r = (base or R0) + 16 * q + 4 * j
            A(f"buffer_load_dwordx4 v[{r}:{r+3}], v{48+q}, s[8:11], {so} offen offset:{j*1024} nt")
    if pt:
        srdp(76, "A_v", 0x10000000)
        srdp(16, "A_wo", 0x800000)
        srdp(20, "B_wo", 0x800000)
        A("s_lshl_b32 s34, s4, 18")
        A("s_mov_b64 exec, 1")
        A("buffer_load_dword v52, v2, s[8:11], s30 offen nt")
        if pt >= 2:
            A("buffer_load_dword v53, v2, s[16:19], s34 offen nt")
            A("buffer_load_dword v54, v2, s[20:23], s34 offen nt")
        if pt >= 3:
            A("buffer_load_dword v55, v2, s[76:79], s30 offen nt")
        A("s_mov_b64 exec, -1")
    for q in range(4):
        if wofirst: break
        if q == sgate - 1 + 0 and sgate: flag_wait(62, 36, 4, 10, 0)
        load(q, "s30")
    for x in range(xpre):
        A(f"s_add_u32 s30, s30, {NWP*CSB}")
        for q in range(4): load(q, "s30", 128 + 64 * x)
    A("s_mov_b32 s12, s8")
    A("s_mov_b32 s13, s9")
    A(f"s_mov_b32 s14, s{P['A_v']}")
    A(f"s_and_b32 s15, s{P['A_v']+1}, 0xffff")
    srdp(16, "A_wo", 0x800000)
    srdp(20, "B_wo", 0x800000)
    A(f"s_add_u32 s39, s39, {hex(W_CNT)}")
    A(f"s_add_u32 s52, s{P['ws']}, s39")
    A(f"s_addc_u32 s53, s{P['ws']+1}, 0")
    if jbh:
        A("s_lshr_b32 s37, s4, 2")
        A("s_add_u32 s28, s28, s37")
    else:
        A(f"s_add_u32 s28, s28, {JB}")
    A(f"s_and_b32 s28, s28, {8//NBW-1}")
    A(f"s_add_u32 s28, s28, {8*(ns-ksk)}")
    A("s_mov_b32 s57, s29")
    A("v_lshrrev_b32 v3, 3, v1")
    A("v_lshlrev_b32 v3, 11, v3")
    A("v_and_b32 v4, 0x70, v2")
    A("v_add_u32 v3, v3, v4")
    A("v_and_b32 v4, 16, v1")
    A("v_lshlrev_b32 v4, 1, v4")
    A("v_xor_b32 v3, v3, v4")
    A("v_xor_b32 v44, 64, v3")
    A("v_and_b32 v4, 0xf0, v2")
    A("s_andn2_b32 s34, s4, 1")
    A("s_lshl_b32 s34, s34, 18")
    A("s_lshl_b32 s35, s33, 17")
    A("s_add_u32 s34, s34, s35")
    A("s_and_b32 s35, s4, 1")
    A("s_lshl_b32 s35, s35, 3")
    A("s_add_u32 s35, s35, s5")
    A("s_lshl_b32 s35, s35, 7")
    A("s_add_u32 s34, s34, s35")
    A("s_lshl_b32 s35, s33, 13")
    A(f"s_add_u32 s35, s35, {L_WO}")
    if lateb0: A("s_barrier")
    else: flag_wait(62, 36, 4, 10, 0)
    for T_ in range(2):
        for u in range(8):
            A(f"s_add_u32 s37, s35, {T_*32768+u*1024}")
            A("s_mov_b32 m0, s37")
            A(f"s_add_u32 s39, s34, {u*16384}")
            if thr and T_ * 8 + u >= thr: A(f"s_waitcnt vmcnt({thr-1})")
            A(f"buffer_load_dwordx4 v{44 if u&1 else 3}, s[{16+4*T_}:{19+4*T_}], s39 offen nt lds")
    if wofirst:
        for n in range(pre0):
            if thr: A(f"s_waitcnt vmcnt({thr-1})")
            A(f"buffer_load_dwordx4 v[{R0+4*n}:{R0+4*n+3}], v{48+(n>>2)}, s[8:11], s30 offen offset:{(n&3)*1024} nt")
        A("s_mov_b32 s31, s30")
    Q, ACC, M, LS, C, AL, NM, S, T, PL, PH = 8, 12, 20, 21, 22, 23, 24, 28, 32, 34, 35
    init_state(M, LS, ACC)
    A("s_waitcnt lgkmcnt(0)")
    mktag()
    A("s_lshl_b32 s43, s33, 8")
    A(f"s_add_u32 s43, s43, {L_QA}")
    A("v_add_u32 v4, s43, v4")
    A(f"v_mov_b32 v7, {L_FL}")
    A("s_lshl_b32 s43, s33, 2")
    A("v_add_u32 v62, s43, v62")
    A("v_and_b32 v5, 15, v1")
    A("v_lshlrev_b32 v5, 5, v5")
    A("v_lshrrev_b32 v6, 5, v1")
    A("v_lshl_add_u32 v5, v6, 4, v5")
    A("s_lshl_b32 s43, s33, 12")
    A(f"s_add_u32 s43, s43, {L_FIFO}")
    A("v_lshl_add_u32 v46, v1, 2, s43")
    A("v_mov_b32 v47, v46")
    A("s_lshl_b32 s43, s4, 3")
    A("s_add_u32 s43, s43, s5")
    A("s_lshl_b32 s43, s43, 12")
    A("s_lshl_b32 s44, s33, 9")
    A("s_add_u32 s43, s43, s44")
    A(f"s_add_u32 s43, s43, {hex(W_PB)}")
    A("s_xor_b32 s6, s6, 0x2545f490")
    A("s_mov_b32 s72, 0xffff")
    A("s_mov_b32 s73, 0xffff")
    for q in range(4):
        A(f"s_mov_b32 s{64+2*q}, {hex(0x11111111 << q)}")
        A(f"s_mov_b32 s{65+2*q}, {hex(0x11111111 << q)}")
    A(f"s_mov_b32 s58, {ns-1}")
    A("s_mov_b32 s59, s58")
    A("s_mov_b32 s56, 0")
    A("s_mov_b32 s63, 0x10000000")
    A("s_mov_b32 s76, s8")
    A("s_mov_b32 s77, s9")
    A("s_mov_b32 s78, 0x10000000")
    A("s_mov_b32 s79, 0x20000")
    stamp("s1")
    A("s_barrier")
    stamp("s2")
    if sprio: A(f"s_setprio {sprio}")
    A(f"ds_read_b128 v[{Q}:{Q+3}], v4")
    def claim():
        A("s_mov_b32 s50, 1")
        A("s_atomic_add s50, s[52:53], 0 glc")
    def issue(q):
        sd, so = ("s[8:11]", "s30") if q < 2 else ("s[76:79]", "s31")
        for j in range(4):
            r = R0 + 16 * q + 4 * j
            A(f"buffer_load_dwordx4 v[{r}:{r+3}], v{48+q}, {sd}, {so} offen offset:{j*1024} nt")
    def setbase(a, b):
        A(f"s_mov_b32 s8, s{12+2*a}"); A(f"s_mov_b32 s9, s{13+2*a}")
        A(f"s_mov_b32 s76, s{12+2*b}"); A(f"s_mov_b32 s77, s{13+2*b}")
    def kq(q, ex, iss=True):
        A(f"s_waitcnt vmcnt({12+ex})")
        K = R0 + 16 * q
        for r in range(4):
            for j in range(4):
                c = "0" if r == 0 else f"v{S+j}"
                A(f"v_dot2_f32_bf16 v{S+j}, v{K+4*j+r}, v{Q+r}, {c}")
        if iss: issue(q)
        A(f"v_add_f32_dpp v{T}, v{S}, v{S} row_ror:8 row_mask:0xf bank_mask:0x3")
        A(f"v_add_f32_dpp v{T+1}, v{S+1}, v{S+1} row_ror:8 row_mask:0xf bank_mask:0x3")
        A(f"v_add_f32_dpp v{T}, v{S+2}, v{S+2} row_ror:8 row_mask:0xf bank_mask:0xc")
        A(f"v_add_f32_dpp v{T+1}, v{S+3}, v{S+3} row_ror:8 row_mask:0xf bank_mask:0xc")
        A(f"v_add_f32_dpp v{S}, v{T}, v{T} row_shl:4 row_mask:0xf bank_mask:0x5")
        A(f"v_add_f32_dpp v{S}, v{T+1}, v{T+1} row_shr:4 row_mask:0xf bank_mask:0xa")
        A(f"v_add_f32_dpp v{S}, v{S}, v{S} quad_perm:[2,3,0,1] row_mask:0xf bank_mask:0xf")
        A(f"v_add_f32_dpp v{S}, v{S}, v{S} quad_perm:[1,0,3,2] row_mask:0xf bank_mask:0xf")
        A(f"v_cndmask_b32 v{C}, v{C}, v{S}, s[{64+2*q}:{65+2*q}]")
    def smx():
        if rnd: round2([C])
        A(f"v_max_f32_dpp v{AL}, v{C}, v{C} row_ror:8 row_mask:0xf bank_mask:0xf")
        for st in (4, 2, 1):
            A(f"v_max_f32_dpp v{AL}, v{AL}, v{AL} row_ror:{st} row_mask:0xf bank_mask:0xf")
        A(f"v_max_f32 v{AL}, v{AL}, v{M}")
        A(f"v_sub_f32 v{NM}, v{M}, v{AL}")
        A(f"v_mov_b32 v{M}, v{AL}")
        A(f"v_sub_f32 v{C}, v{C}, v{AL}")
        A(f"v_mul_f32 v{AL}, s7, v{NM}")
        A(f"v_mul_f32 v{C}, s7, v{C}")
        A(f"v_exp_f32 v{AL}, v{AL}")
        A(f"v_exp_f32 v{C}, v{C}")
        for e in range(8): A(f"v_mul_f32 v{ACC+e}, v{ACC+e}, v{AL}")
        A(f"v_cvt_pk_bf16_f32 v{PL}, v{C}, 0")
        A(f"v_cvt_pk_bf16_f32 v{PH}, 0, v{C}")
        A(f"v_fma_f32 v{LS}, v{LS}, v{AL}, v{C}")
    def vq(q, ln, ex=0, iss=True):
        A(f"s_waitcnt vmcnt({12+ex})")
        V = R0 + 16 * q
        for j in range(4):
            for r in range(4):
                A(f"v_dot2c_f32_bf16_dpp v{ACC+2*r}, v{PL}, v{V+4*j+r} row_newbcast:{4*j+ln} row_mask:0xf bank_mask:0xf")
                A(f"v_dot2c_f32_bf16_dpp v{ACC+2*r+1}, v{PH}, v{V+4*j+r} row_newbcast:{4*j+ln} row_mask:0xf bank_mask:0xf")
        if iss: issue(q)
    def nextdyn(after):
        exh = lab("exh")
        A("s_waitcnt lgkmcnt(0)")
        A("s_add_u32 s56, s56, 1")
        A(f"s_cmp_gt_u32 s56, {NDYN}")
        A(f"s_cbranch_scc1 {exh}")
        A(f"s_cmp_ge_u32 s50, {NDYN}")
        A(f"s_cbranch_scc1 {exh}")
        A("s_lshr_b32 s37, s50, 1")
        A("s_lshl_b32 s37, s37, 3")
        A("s_add_u32 s37, s37, s28")
        A("s_lshl_b32 s37, s37, 1")
        A("s_and_b32 s36, s50, 1")
        A("s_add_u32 s37, s37, s36")
        A(f"s_add_u32 s36, s50, {T2//2 - 2*NSK}")
        A(f"s_cmp_lt_u32 s50, {2*NSK}")
        A("s_cselect_b32 s36, s37, s36")
        if ti:
            A("s_lshr_b32 s30, s36, 4")
            A("s_lshl_b32 s30, s30, 17")
            A("s_bfe_u32 s37, s36, 0x30001")
            A("s_lshl_b32 s37, s37, 12")
            A("s_add_u32 s30, s30, s37")
            A("s_and_b32 s37, s36, 1")
            A("s_lshl_b32 s37, s37, 16")
            A("s_add_u32 s30, s30, s37")
        else:
            A("s_lshl_b32 s30, s36, 13")
        A("s_add_u32 s30, s30, s38")
        A(f"s_sub_u32 s31, s30, {65536 if ti else 8192}")
        setbase(0, 1)
        A("s_mov_b32 s55, 3")
        if not emid:
            A(f"s_cmp_lt_u32 s50, {max(0, NDYN-wox)}")
            A(f"s_cbranch_scc1 {after}")
            flag_add(62, 16)
        A(f"s_branch {after}")
        A.label(exh)
        A("s_mov_b32 s30, s63")
        A("s_mov_b32 s31, s63")
        A("s_mov_b32 s55, 2")
        if not emid: flag_add(62, 16)
        flag_add(62, 48)
        stamp("s3")
    def adv():
        A(f"s_add_u32 s29, s29, {NWP*CSB}")
        A("s_mov_b32 s30, s29")
        A("s_mov_b32 s31, s29")
    CN = 25
    n0 = 16 - L
    assert 2 <= L <= 8
    def ld(n):
        q, j = n >> 2, n & 3
        sd, so = ("s[8:11]", "s30") if q < 2 else ("s[76:79]", "s31")
        A(f"buffer_load_dwordx4 v[{R0+4*n}:{R0+4*n+3}], v{48+q}, {sd}, {so} offen offset:{j*1024} nt")
    def kred(q):
        A(f"v_add_f32_dpp v{T}, v{S}, v{S} row_ror:8 row_mask:0xf bank_mask:0x3")
        A(f"v_add_f32_dpp v{T+1}, v{S+1}, v{S+1} row_ror:8 row_mask:0xf bank_mask:0x3")
        A(f"v_add_f32_dpp v{T}, v{S+2}, v{S+2} row_ror:8 row_mask:0xf bank_mask:0xc")
        A(f"v_add_f32_dpp v{T+1}, v{S+3}, v{S+3} row_ror:8 row_mask:0xf bank_mask:0xc")
        A(f"v_add_f32_dpp v{S}, v{T}, v{T} row_shl:4 row_mask:0xf bank_mask:0x5")
        A(f"v_add_f32_dpp v{S}, v{T+1}, v{T+1} row_shr:4 row_mask:0xf bank_mask:0xa")
        A(f"v_add_f32_dpp v{S}, v{S}, v{S} quad_perm:[2,3,0,1] row_mask:0xf bank_mask:0xf")
        A(f"v_add_f32_dpp v{S}, v{S}, v{S} quad_perm:[1,0,3,2] row_mask:0xf bank_mask:0xf")
        A(f"v_cndmask_b32 v{C}, v{C}, v{S}, s[{64+2*q}:{65+2*q}]")
    def k1(n):
        j = n & 3
        for r in range(4):
            c = "0" if r == 0 else f"v{S+j}"
            A(f"v_dot2_f32_bf16 v{S+j}, v{R0+4*n+r}, v{Q+r}, {c}")
        if j == 3: kred(n >> 2)
    def v1(n):
        q, j = n >> 2, n & 3
        for r in range(4):
            A(f"v_dot2c_f32_bf16_dpp v{ACC+2*r}, v{PL}, v{R0+4*n+r} row_newbcast:{4*j+q} row_mask:0xf bank_mask:0xf")
            A(f"v_dot2c_f32_bf16_dpp v{ACC+2*r+1}, v{PH}, v{R0+4*n+r} row_newbcast:{4*j+q} row_mask:0xf bank_mask:0xf")
    def fifo_pre():
        A(f"ds_read_b32 v{CN}, v47")
        A("v_add_u32 v47, 256, v47")
        A("s_waitcnt lgkmcnt(0)")
    def decK():
        last, go = lab("lk"), lab("gk")
        A("s_cmp_eq_u32 s58, 0")
        A(f"s_cbranch_scc1 {last}")
        adv()
        A("s_sub_u32 s58, s58, 1")
        if l1j:
            A(f"s_cmp_lg_u32 s58, {ns-1-l1j}")
            A(f"s_cbranch_scc1 {go}")
            flag_add(7, 44)
        A(f"s_branch {go}")
        A.label(last)
        stamp("sk")
        if emid == 1: flag_add(62, 16)
        A("s_mov_b32 s29, s57")
        A("s_mov_b32 s30, s29")
        A("s_mov_b32 s31, s29")
        fifo_pre()
        setbase(1, 1)
        A("s_mov_b32 s55, 1")
        A.label(go)
    ak_ = [int(c) for c in ak] if ak else [L] * 16
    av_ = [int(c) for c in av] if av else [L] * 16
    assert wofirst and pre0 == L and ak_[15] == L and av_[15] == L
    def body(a, cons, dec):
        nxt = L
        done_dec = False
        for n in range(16):
            tgt = n + a[n]
            assert tgt >= nxt - 1 and a[n] <= 8
            if tgt >= 16 and not done_dec:
                assert nxt >= 16 or True
                pre = [i for i in range(nxt, 16)]
                if not pre: dec()
                A(f"s_waitcnt vmcnt({nxt-1-n})")
                for i in pre: ld(i)
                nxt = 16
                if pre: dec()
                done_dec = True
                for i in range(nxt, tgt + 1): ld(i & 15)
                nxt = tgt + 1
            else:
                A(f"s_waitcnt vmcnt({nxt-1-n})")
                for i in range(nxt, tgt + 1): ld(i & 15)
                nxt = max(nxt, tgt + 1)
            cons(n)
        assert nxt == 16 + L
    A("s_mov_b32 s55, 0")
    A(f"s_waitcnt vmcnt({L}) lgkmcnt(0)")
    flag_add(7, 8)
    A.label("L_K")
    body(ak_, k1, decK)
    A(f"ds_write_b32 v46, v{C}")
    A("v_add_u32 v46, 256, v46")
    A("s_cmp_eq_u32 s55, 0")
    A("s_cbranch_scc1 L_K")
    A.label("L_V")
    A(f"v_mov_b32 v{C}, v{CN}")
    smx()
    def decV():
        adv()
        A("s_sub_u32 s59, s59, 1")
        A(f"ds_read_b32 v{CN}, v47")
        A("v_add_u32 v47, 256, v47")
    body(av_, v1, decV)
    A("s_waitcnt lgkmcnt(0)")
    A(f"s_cmp_ge_u32 s59, {nd}")
    A("s_cbranch_scc1 L_V")
    for n in range(L, 16): ld(n)
    if not (set(ab) & {1, 3, 4}): flag_wait(7, 40, 1, 36, 1)
    A.label("L_VD")
    A("s_cmp_lg_u32 s59, 0")
    A("s_cbranch_scc1 L_VD1")
    claim()
    A.label("L_VD1")
    A(f"v_mov_b32 v{C}, v{CN}")
    smx()
    vq(0, 0, 0, False); vq(1, 1, -4, False)
    A("s_cmp_eq_u32 s59, 0")
    A("s_cbranch_scc1 L_VD2")
    adv()
    A("s_sub_u32 s59, s59, 1")
    fifo_pre()
    A("s_branch L_VD3")
    A.label("L_VD2")
    nextdyn("L_VD3")
    A.label("L_VD3")
    issue(0); issue(1)
    vq(2, 2); vq(3, 3)
    A("s_cmp_eq_u32 s55, 1")
    A("s_cbranch_scc1 L_VD")
    A("s_cmp_eq_u32 s55, 2")
    A("s_cbranch_scc1 L_fin")
    A.label("L_top2")
    claim()
    A(f"v_mov_b32 v{C}, 0xf149f2ca")
    kq(0, 0, False); kq(1, -4, False)
    smx()
    nextdyn("L_2")
    A.label("L_2")
    issue(0); issue(1)
    vq(2, 0); vq(3, 1)
    A("s_cmp_eq_u32 s55, 3")
    A("s_cbranch_scc1 L_top2")
    A.label("L_fin")
    stamp("s5")
    for st in (8, 4, 2, 1):
        A(f"v_add_f32_dpp v{LS}, v{LS}, v{LS} row_ror:{st} row_mask:0xf bank_mask:0xf")
    finalize(M, LS, ACC, 24, 40, 42)
    A("v_mov_b32 v41, v40")
    A("v_xor_b32 v43, s6, v42")
    A("v_permlane16_swap_b32 v40, v41")
    A("v_bitop3_b32 v43, v40, v41, v43 bitop3:0x96")
    stamp("s4")
    A("s_mov_b64 exec, s[72:73]")
    A(f"buffer_store_dwordx4 v[40:43], v5, s[24:27], s43 offen {ast}")
    flag_add(62, 48)
    stamp_store(240)
    A.label("L_end")
    A("s_endpgm")

    body = A.render()
    nv = 256
    txt = HEADER + f"; @launch grid=(256,1,1) block=(512,1,1) lds={L_TOT}\n"
    txt += '.amdgcn_target "amdgcn-amd-amdhsa--gfx950"\n.text\n'
    txt += f".globl {NAME}\n.p2align 8\n.type {NAME},@function\n"
    txt += body
    txt += '.section .rodata,"a"\n.p2align 6\n'
    txt += f".amdhsa_kernel {NAME}\n"
    txt += f"  .amdhsa_next_free_vgpr {nv}\n  .amdhsa_next_free_sgpr 102\n  .amdhsa_accum_offset {nv}\n"
    txt += "  .amdhsa_group_segment_fixed_size 0\n  .amdhsa_kernarg_size 104\n  .amdhsa_user_sgpr_count 2\n"
    txt += "  .amdhsa_user_sgpr_kernarg_segment_ptr 1\n  .amdhsa_system_sgpr_workgroup_id_x 1\n.end_amdhsa_kernel\n"
    return txt

if __name__ == "__main__":
    import argparse
    ap = argparse.ArgumentParser()
    ap.add_argument("out")
    ap.add_argument("--kw", default="")
    a = ap.parse_args()
    kw = eval("dict(" + a.kw + ")")
    open(a.out, "w").write(gen(**kw))
```

```python
import sys, struct
sys.path.insert(0, "dev")
from asmlib import Asm
from gen import HEADER, NAME

L_W = 0
L_FIFO = 32768
L_WO = 65536
L_QA = 131072
L_QB = L_QA + 1024
L_O = L_QB + 2048
L_FL = L_O + 4608
L_X = L_FL + 64
L_TOT = L_X + 4352
W_CNT = 0x1000
W_QP = 0x10000
W_PA = 0x100000
W_PB = 0x200000
W_OB2 = 0x100000
W_STAMP = 0x20000000

F32 = lambda x: struct.unpack("<I", struct.pack("<f", x))[0]
CEXP = struct.unpack("<I", struct.pack("<f", 1.4426950408889634 / (128 ** 0.5)))[0]

def gen(TD=3, CS=4, ns=12, NBW=1, JB=2, ksk=4, stamps=0, spin=200000, hst=("h1", "h2", "h3", "h4"),
        sst=("s1", "s2", "s3", "s4"), rot=1, wox=8, psl=16, qsl=4, ysl=0, early=0, esl=16,
        bst="sc1 nt", bld="sc1 nt", ast="sc1", ald="sc1", ab=(), wolate=0, pasl=0, touch=0, woh=0, kp="nt", vp="nt", til=0, gate=3, n2=0, n1=0, rc=0, rnd=0, mixed=0, warm=0, ybk=0, sgate=1, qst="sc1", qld="sc1", yst=None, yld=None, xpre=0, ost="sc1", pt=0, L=6, jbh=1, sprio=0, wofirst=0, thr=0, pre0=16, nd=1, ti=1, gb=1, w1=127, w1n=2, l1sl=64, ak=None, av=None, rhs=None, pbk=0, pbt=64, pd=0, emid=0, bl=0, ymap=0, l1j=0, lateb0=0, o2n=2, xsl=4, bw=None, wx=0):
    tl = 4
    ksk = 0
    yst = ast if yst is None else yst; yld = yld or ald
    A = Asm()
    NWP = 8
    NT = 512
    CD = CS
    CSB = CS * 4096
    assert ns * NWP * CS <= NT and (NT - ns * NWP * CS) % CD == 0
    NSK = NBW * ksk
    assert n1 == 0 and xpre == 0
    assert NBW == 1 and not til and (2 * n2 + n1) % CS == 0
    T2 = ns * NWP * CS
    NDYN = 2 * NSK + (NT - T2) // 2
    assert CS == 4 and ns - ksk >= 2 + nd and ns <= 16 and nd >= 1
    NP = 2 * NBW
    BT = 16 // NBW
    uid = [0]
    def lab(p):
        uid[0] += 1
        return f"L_{p}_{uid[0]}"

    P = dict(A_x=64, A_k=66, A_v=68, A_wq=70, A_wo=72, B_x=74, B_k=76, B_v=78, B_wq=80, B_wo=82, out=84, dbg=86, ws=88)
    def srd(d, lo, hi, n):
        A(f"s_mov_b32 s{d}, s{lo}")
        A(f"s_and_b32 s{d+1}, s{hi}, 0xffff")
        A(f"s_mov_b32 s{d+2}, {hex(n)}")
        A(f"s_mov_b32 s{d+3}, 0x20000")
    def srdp(d, name, n): srd(d, P[name], P[name] + 1, n)

    def stamp(i):
        if not stamps: return
        if isinstance(i, str):
            lst = hst if i[0] == "h" else sst
            if i not in lst: return
            i = 1 + list(lst).index(i)
        A(f"s_memrealtime s[{90+2*i}:{91+2*i}]")
    def stamp_store(vt):
        if not stamps: return
        A(f"s_memrealtime s[{90+2*(stamps-1)}:{91+2*(stamps-1)}]")
        A("s_waitcnt lgkmcnt(0)")
        A("s_lshl_b32 s32, s2, 3")
        A("s_add_u32 s32, s32, s3")
        A(f"s_mul_i32 s32, s32, {stamps*8}")
        A(f"s_add_u32 s32, s32, {hex(W_STAMP)}")
        for i in range(stamps):
            A(f"v_mov_b32 v{vt+2*i}, s{90+2*i}")
            A(f"v_mov_b32 v{vt+2*i+1}, s{91+2*i}")
        A(f"v_mov_b32 v{vt+2*stamps}, 0")
        A("s_mov_b64 exec, 1")
        for i in range(stamps):
            A(f"buffer_store_dwordx2 v[{vt+2*i}:{vt+2*i+1}], v{vt+2*stamps}, s[24:27], s32 offen offset:{8*i}")
        A("s_mov_b64 exec, -1")

    def chain(op3, op2, dst, regs):
        if len(regs) == 2:
            A(f"{op2} v{dst}, {regs[0]}, {regs[1]}"); return
        A(f"{op3} v{dst}, {regs[0]}, {regs[1]}, {regs[2]}")
        i = 3
        while i < len(regs):
            if i + 1 < len(regs):
                A(f"{op3} v{dst}, v{dst}, {regs[i]}, {regs[i+1]}"); i += 2
            else:
                A(f"{op2} v{dst}, v{dst}, {regs[i]}"); i += 1
    def scores(K, Q, S, n):
        for r in range(4):
            for j in range(n):
                c = "0" if r == 0 else f"v{S+j}"
                A(f"v_dot2_f32_bf16 v{S+j}, v{K+4*j+r}, v{Q+r}, {c}")
        for st in (8, 4, 2, 1):
            for j in range(n):
                A(f"v_add_f32_dpp v{S+j}, v{S+j}, v{S+j} row_ror:{st} row_mask:0xf bank_mask:0xf")
    def round2(regs):
        for r in regs: A(f"v_cvt_pk_bf16_f32 v{r}, 0, v{r}")
        for r in regs: A(f"v_mul_f32 v{r}, {hex(F32(128 ** -0.5))}, v{r}")
        for r in regs: A(f"v_cvt_pk_bf16_f32 v{r}, 0, v{r}")
    def softmax(S, n, M, LS, ACC, AL, NM, PL, PH):
        if rnd: round2([S + j for j in range(n)])
        chain("v_max3_f32", "v_max_f32", AL, [f"v{S+j}" for j in range(n)] + [f"v{M}"])
        A(f"v_sub_f32 v{NM}, v{M}, v{AL}")
        A(f"v_mov_b32 v{M}, v{AL}")
        A(f"v_mul_f32 v{AL}, s7, v{NM}")
        A(f"v_mul_f32 v{NM}, s7, v{M}")
        A(f"v_exp_f32 v{AL}, v{AL}")
        for j in range(n):
            A(f"v_fma_f32 v{S+j}, v{S+j}, s7, -v{NM}")
        for j in range(n):
            A(f"v_exp_f32 v{S+j}, v{S+j}")
        for e in range(8):
            A(f"v_mul_f32 v{ACC+e}, v{ACC+e}, v{AL}")
        A(f"v_fma_f32 v{LS}, v{LS}, v{AL}, v{S}")
        for j in range(1, n):
            A(f"v_add_f32 v{LS}, v{LS}, v{S+j}")
        for j in range(n):
            A(f"v_cvt_pk_bf16_f32 v{PL+j}, v{S+j}, 0")
            A(f"v_cvt_pk_bf16_f32 v{PH+j}, 0, v{S+j}")
    def pv(V, n, ACC, PL, PH):
        for j in range(n):
            for r in range(4):
                A(f"v_dot2_f32_bf16 v{ACC+2*r}, v{V+4*j+r}, v{PL+j}, v{ACC+2*r}")
                A(f"v_dot2_f32_bf16 v{ACC+2*r+1}, v{V+4*j+r}, v{PH+j}, v{ACC+2*r+1}")
    def init_state(M, LS, ACC):
        for e in range(8): A(f"v_mov_b32 v{ACC+e}, 0")
        A(f"v_mov_b32 v{M}, 0xf149f2ca")
        A(f"v_mov_b32 v{LS}, 0")
    def finalize(M, LS, ACC, T, OPK, OLSE):
        A(f"v_mov_b32 v{T+1}, v{M}")
        A(f"v_mov_b32 v{T+2}, v{M}")
        A(f"v_permlane32_swap_b32 v{T+1}, v{T+2}")
        A(f"v_max_f32 v{T+1}, v{T+1}, v{T+2}")
        A(f"v_mov_b32 v{T+2}, v{T+1}")
        A(f"v_permlane16_swap_b32 v{T+1}, v{T+2}")
        A(f"v_max_f32 v{T}, v{T+1}, v{T+2}")
        A(f"v_sub_f32 v{T+1}, v{M}, v{T}")
        A(f"v_mul_f32 v{T+1}, s7, v{T+1}")
        A(f"v_exp_f32 v{T+1}, v{T+1}")
        A(f"v_mul_f32 v{LS}, v{LS}, v{T+1}")
        for e in range(8): A(f"v_mul_f32 v{ACC+e}, v{ACC+e}, v{T+1}")
        A(f"v_mov_b32 v{T+1}, v{LS}")
        A(f"v_mov_b32 v{T+2}, v{LS}")
        for e in range(4): A(f"v_permlane32_swap_b32 v{ACC+e}, v{ACC+e+4}")
        A(f"v_permlane32_swap_b32 v{T+1}, v{T+2}")
        for e in range(4): A(f"v_add_f32 v{ACC+e}, v{ACC+e}, v{ACC+e+4}")
        A(f"v_add_f32 v{T+1}, v{T+1}, v{T+2}")
        A(f"v_mov_b32 v{T+2}, v{T+1}")
        for e in range(2): A(f"v_permlane16_swap_b32 v{ACC+e}, v{ACC+e+2}")
        A(f"v_permlane16_swap_b32 v{T+1}, v{T+2}")
        A(f"v_add_f32 v{T+3}, v{T+1}, v{T+2}")
        for e in range(2): A(f"v_add_f32 v{ACC+e}, v{ACC+e}, v{ACC+e+2}")
        A(f"v_rcp_f32 v{T+1}, v{T+3}")
        A(f"v_log_f32 v{T+2}, v{T+3}")
        A(f"v_mul_f32 v{ACC}, v{ACC}, v{T+1}")
        A(f"v_mul_f32 v{ACC+1}, v{ACC+1}, v{T+1}")
        A(f"v_fma_f32 v{OLSE}, v{T}, s7, v{T+2}")
        A(f"v_cvt_pk_bf16_f32 v{OPK}, v{ACC}, v{ACC+1}")
    def combine(G, n, OPK, OLSE=None):
        T1, T2, T3, T4 = 56, 57, 58, 59
        chain("v_max3_f32", "v_max_f32", T1, [f"v{G+4*i+2}" for i in range(n)])
        for i in range(n): A(f"v_sub_f32 v{G+4*i+2}, v{G+4*i+2}, v{T1}")
        for i in range(n): A(f"v_exp_f32 v{G+4*i+2}, v{G+4*i+2}")
        for i in range(n):
            A(f"v_lshlrev_b32 v{G+4*i+1}, 16, v{G+4*i}")
            A(f"v_and_b32 v{G+4*i+3}, 0xffff0000, v{G+4*i}")
        A(f"v_add_f32 v{T4}, v{G+2}, v{G+6}")
        A(f"v_mul_f32 v{T2}, v{G+2}, v{G+1}")
        A(f"v_mul_f32 v{T3}, v{G+2}, v{G+3}")
        for i in range(2, n): A(f"v_add_f32 v{T4}, v{T4}, v{G+4*i+2}")
        if OLSE is not None: A(f"v_log_f32 v{OLSE}, v{T4}")
        A(f"v_rcp_f32 v{T4}, v{T4}")
        for i in range(1, n):
            A(f"v_fmac_f32 v{T2}, v{G+4*i+2}, v{G+4*i+1}")
            A(f"v_fmac_f32 v{T3}, v{G+4*i+2}, v{G+4*i+3}")
        if OLSE is not None: A(f"v_add_f32 v{OLSE}, v{OLSE}, v{T1}")
        A(f"v_mul_f32 v{T2}, v{T2}, v{T4}")
        A(f"v_mul_f32 v{T3}, v{T3}, v{T4}")
        A(f"v_cvt_pk_bf16_f32 v{OPK}, v{T2}, v{T3}")
    def chk(g, m, tg="s6"):
        A(f"v_bitop3_b32 v56, v{g}, v{g+1}, v{g+2} bitop3:0x96")
        A(f"v_xor_b32 v56, v56, v{g+3}")
        A(f"v_cmp_ne_u32 s[{m}:{m+1}], {tg}, v56")
    def combine2(G, n, addr_v, off):
        T1, T2, DEN, A0 = 56, 57, 58, 36
        if n == 1: A(f"v_mov_b32 v{T1}, v{G+2}")
        else: chain("v_max3_f32", "v_max_f32", T1, [f"v{G+4*u+2}" for u in range(n)])
        A(f"v_mov_b32 v{T2}, v{T1}")
        for u in range(n):
            A(f"v_lshlrev_b32 v{G+4*u+3}, 16, v{G+4*u}")
        A(f"v_permlane32_swap_b32 v{T1}, v{T2}")
        A(f"v_max_f32 v{T1}, v{T1}, v{T2}")
        for u in range(n): A(f"v_sub_f32 v{G+4*u+2}, v{G+4*u+2}, v{T1}")
        for u in range(n): A(f"v_exp_f32 v{G+4*u+2}, v{G+4*u+2}")
        for u in range(n): A(f"v_and_b32 v{G+4*u}, 0xffff0000, v{G+4*u}")
        for u in range(n):
            op = "v_mul_f32" if u == 0 else "v_fmac_f32"
            A(f"{op} v{A0}, v{G+4*u+2}, v{G+4*u+3}")
            A(f"{op} v{A0+1}, v{G+4*u+2}, v{G+4*u}")
            A(f"v_lshlrev_b32 v{G+4*u+3}, 16, v{G+4*u+1}")
            A(f"v_and_b32 v{G+4*u+1}, 0xffff0000, v{G+4*u+1}")
            if u == 0: A(f"v_mov_b32 v{DEN}, v{G+2}")
            else: A(f"v_add_f32 v{DEN}, v{DEN}, v{G+4*u+2}")
        A(f"v_mov_b32 v{DEN+1}, v{DEN}")
        for u in range(n):
            op = "v_mul_f32" if u == 0 else "v_fmac_f32"
            A(f"{op} v{A0+2}, v{G+4*u+2}, v{G+4*u+3}")
            A(f"{op} v{A0+3}, v{G+4*u+2}, v{G+4*u+1}")
        A(f"v_permlane32_swap_b32 v{DEN}, v{DEN+1}")
        A(f"v_add_f32 v{DEN}, v{DEN}, v{DEN+1}")
        A(f"v_permlane32_swap_b32 v{A0}, v{A0+2}")
        A(f"v_permlane32_swap_b32 v{A0+1}, v{A0+3}")
        A(f"v_rcp_f32 v{DEN}, v{DEN}")
        A(f"v_add_f32 v{A0}, v{A0}, v{A0+2}")
        A(f"v_add_f32 v{A0+1}, v{A0+1}, v{A0+3}")
        A(f"v_mul_f32 v{A0}, v{A0}, v{DEN}")
        A(f"v_mul_f32 v{A0+1}, v{A0+1}, v{DEN}")
        A(f"v_cvt_pk_bf16_f32 v{A0}, v{A0}, v{A0+1}")
        A(f"ds_write_b32 v{addr_v}, v{A0} offset:{off}")
    def poll_masked(n, issue1, tagregs, sleep, mbase=64, extra=None, tagreg="s6", presleep=0):
        top, done = lab("pk"), lab("pkdone")
        A(f"s_mov_b32 s42, {spin}")
        for i in range(n): A(f"s_mov_b64 s[{mbase+2*i}:{mbase+2*i+1}], -1")
        A.label(top)
        for i in range(presleep): A("s_sleep 127")
        for i in range(n):
            A(f"s_mov_b64 exec, s[{mbase+2*i}:{mbase+2*i+1}]")
            issue1(i)
        A("s_mov_b64 exec, -1")
        if extra: extra[0]()
        A("s_waitcnt vmcnt(0) lgkmcnt(0)" if extra else "s_waitcnt vmcnt(0)")
        for i in range(n):
            tr = tagregs(i)
            if isinstance(tr, int):
                chk(tr, mbase + 2 * i)
                if i == 0: A(f"s_mov_b64 s[40:41], s[{mbase}:{mbase+1}]")
                else: A(f"s_or_b64 s[40:41], s[40:41], s[{mbase+2*i}:{mbase+2*i+1}]")
                continue
            A(f"v_cmp_ne_u32 s[{mbase+2*i}:{mbase+2*i+1}], {tagreg}, v{tr[0]}")
            for r in tr[1:]:
                A(f"v_cmp_ne_u32 vcc, {tagreg}, v{r}")
                A(f"s_or_b64 s[{mbase+2*i}:{mbase+2*i+1}], s[{mbase+2*i}:{mbase+2*i+1}], vcc")
            if i == 0: A(f"s_mov_b64 s[40:41], s[{mbase}:{mbase+1}]")
            else: A(f"s_or_b64 s[40:41], s[40:41], s[{mbase+2*i}:{mbase+2*i+1}]")
        A("s_cmp_eq_u64 s[40:41], 0")
        A(f"s_cbranch_scc1 {done}")
        if extra: extra[1]()
        elif sleep: A(f"s_sleep {sleep}")
        A("s_sub_u32 s42, s42, 1")
        A("s_cmp_lg_u32 s42, 0")
        A(f"s_cbranch_scc1 {top}")
        A.label(done)
    def flag_add(addr_v, off=0):
        A("s_mov_b64 exec, 1")
        A(f"ds_add_u32 v{addr_v}, v63 offset:{off}")
        A("s_mov_b64 exec, -1")
    def flag_wait(addr_v, off, target, tmp_v, sleep):
        top, done = lab("fw"), lab("fwdone")
        A(f"s_mov_b32 s42, {spin*16}")
        A.label(top)
        A(f"ds_read_b32 v{tmp_v}, v{addr_v} offset:{off}")
        A("s_waitcnt lgkmcnt(0)")
        A(f"v_readfirstlane_b32 s47, v{tmp_v}")
        A(f"s_cmp_ge_u32 s47, {target}")
        A(f"s_cbranch_scc1 {done}")
        if sleep: A(f"s_sleep {sleep}")
        A("s_sub_u32 s42, s42, 1")
        A("s_cmp_lg_u32 s42, 0")
        A(f"s_cbranch_scc1 {top}")
        A.label(done)
    def mktag():
        A("s_mul_i32 s6, s6, 0x9e3779b1")
        A("s_add_u32 s6, s6, 0x7f4a7c15")
        A("s_cmp_eq_u32 s6, 0")
        A("s_cselect_b32 s6, 2, s6")

    A.label(NAME)
    A("s_cmp_ge_u32 s2, 256")
    A("s_cbranch_scc1 L_end")
    for i in range(stamps): stamp(i)
    A("s_load_dwordx16 s[64:79], s[0:1], 0")
    A("s_load_dwordx8 s[80:87], s[0:1], 64")
    A("s_load_dwordx2 s[88:89], s[0:1], 96")
    A("v_lshrrev_b32 v1, 6, v0")
    A("v_readfirstlane_b32 s3, v1")
    A("v_and_b32 v1, 63, v0")
    A("s_lshr_b32 s4, s2, 3")
    A("s_and_b32 s5, s2, 7")
    if rot:
        A(f"s_mul_i32 s7, s5, {rot}")
        A("s_add_u32 s4, s4, s7")
        A("s_and_b32 s4, s4, 31")
    A(f"s_mov_b32 s7, {hex(F32(1.4426950408889634) if rnd else CEXP)}")
    A("v_lshlrev_b32 v2, 4, v1")
    A(f"v_mov_b32 v62, {L_FL}")
    A("v_mov_b32 v63, 1")
    A("v_mov_b32 v7, 0")
    A("v_and_b32 v6, 15, v1")
    A("v_lshl_add_u32 v6, v6, 2, v62")
    A("ds_write_b32 v6, v7")
    A("s_waitcnt lgkmcnt(0)")
    if not lateb0: A("s_barrier")
    A("s_load_dword s6, s[88:89], 0")
    srdp(24, "ws", 0x40000000)
    A("s_cmp_ge_u32 s3, 4")
    A("s_cbranch_scc1 L_stream")

    stamp("h0a")
    A("s_lshr_b32 s33, s5, 2")
    A("s_bfe_u32 s34, s5, 0x10001")
    A("s_and_b32 s35, s5, 1")
    A("s_cmp_eq_u32 s33, 0")
    A(f"s_cselect_b32 s36, s{P['A_wq']}, s{P['B_wq']}")
    A(f"s_cselect_b32 s37, s{P['A_wq']+1}, s{P['B_wq']+1}")
    A(f"s_cselect_b32 s38, s{P['A_x']}, s{P['B_x']}")
    A(f"s_cselect_b32 s39, s{P['A_x']+1}, s{P['B_x']+1}")
    srd(12, 36, 37, 0x800000)
    srd(8, 38, 39, 8192)
    A("v_lshrrev_b32 v3, 3, v1")
    A("v_lshlrev_b32 v3, 13, v3")
    A("v_and_b32 v4, 7, v1")
    A("v_lshl_add_u32 v3, v4, 4, v3")
    A("v_and_b32 v4, 16, v1")
    A("v_lshlrev_b32 v4, 1, v4")
    A("v_xor_b32 v3, v3, v4")
    A("v_xor_b32 v4, 64, v3")
    A("s_lshl_b32 s43, s35, 9")
    A("s_lshl_b32 s44, s3, 7")
    A("s_add_u32 s43, s43, s44")
    A("s_lshl_b32 s43, s43, 13")
    A("s_lshl_b32 s44, s4, 8")
    A("s_add_u32 s43, s43, s44")
    A("s_lshl_b32 s44, s34, 7")
    A("s_add_u32 s43, s43, s44")
    A("s_lshl_b32 s44, s3, 14")
    for u in range(16):
        A("s_mov_b32 m0, s44")
        A(f"buffer_load_dwordx4 v{3+(u&1)}, s[12:15], s43 offen nt lds")
        if u < 15:
            A("s_add_u32 s43, s43, 0x10000")
            A("s_add_u32 s44, s44, 1024")
    XF = 64
    A("s_lshl_b32 s43, s3, 11")
    A("s_lshl_b32 s44, s35, 10")
    A("s_add_u32 s43, s43, s44")
    A("s_mul_i32 s44, s3, 1088")
    A(f"s_add_u32 s44, s44, {L_X}")
    A("s_mov_b32 m0, s44")
    A("buffer_load_dwordx4 v2, s[8:11], s43 offen lds")
    if not gb: flag_add(62, 36)
    A("s_or_b32 s43, s5, s3")
    A("s_cmp_lg_u32 s43, 0")
    A("s_cbranch_scc1 L_noinit")
    A("v_lshlrev_b32 v6, 13, v1")
    A("s_lshl_b32 s43, s4, 8")
    A(f"s_add_u32 s43, s43, {hex(W_CNT)}")
    A("s_mov_b64 exec, 15")
    A("buffer_store_dword v7, v6, s[24:27], s43 offen sc1")
    A("s_mov_b64 exec, -1")
    A.label("L_noinit")
    srdp(16, "B_k", 0x2000000)
    srdp(20, "B_v", 0x2000000)
    A("s_lshr_b32 s59, s2, 4")
    A("s_and_b32 s58, s2, 15")
    A("s_lshl_b32 s60, s59, 21")
    A("s_lshl_b32 s61, s58, 15")
    A("s_add_u32 s60, s60, s61")
    A("s_lshl_b32 s61, s3, 13")
    A("s_add_u32 s60, s60, s61")
    A(f"s_add_u32 s60, s60, {6144*256}")
    A("s_add_u32 s61, s60, 4096")
    KB, VB = 192, 224
    def bkv(which):
        for base, sd in which:
            for u in range(8):
                A(f"buffer_load_dwordx4 v[{base+4*u}:{base+4*u+3}], v2, {sd}, s{60+u//4} offen offset:{(u%4)*1024} nt")
    BK_, BV_ = (KB, "s[16:19]"), (VB, "s[20:23]")
    early_b = {0: [BK_, BV_], 1: [], 2: [BK_], 3: []}[bl]
    late_b = {0: [], 1: [BK_, BV_], 2: [BV_], 3: [BK_, BV_]}[bl]
    if bw is not None: A(f"s_waitcnt vmcnt({bw})")
    bkv(early_b)
    if lateb0: A("s_barrier")
    elif gb: flag_add(62, 36)
    stamp("h0b")
    A("s_waitcnt lgkmcnt(0)")
    A("v_and_b32 v11, 3, v1")
    A("v_mul_u32_u24 v11, 1088, v11")
    A("v_lshrrev_b32 v5, 4, v1")
    A("v_lshl_add_u32 v11, v5, 4, v11")
    A(f"v_add_u32 v11, {L_X}, v11")
    srdp(28, "out", 16384)
    if woh:
        srdp(8, "A_wo", 0x800000)
        srdp(12, "B_wo", 0x800000)
    A("v_lshrrev_b32 v5, 4, v1")
    A("v_lshlrev_b32 v5, 3, v5")
    A("v_bfe_u32 v6, v1, 2, 2")
    A("v_add_u32 v5, v5, v6")
    A("v_and_b32 v6, 3, v1")
    A("v_lshlrev_b32 v6, 3, v6")
    A("v_lshl_add_u32 v8, v5, 7, v6")
    A("v_bfe_u32 v12, v1, 3, 2")
    A("v_xor_b32 v12, s3, v12")
    A("v_lshl_add_u32 v8, v12, 5, v8")
    A(f"v_add_u32 v9, {L_WO}, v8")
    mktag()
    A("v_and_b32 v4, 3, v1")
    A("v_lshlrev_b32 v4, 10, v4")
    A("v_lshrrev_b32 v5, 4, v1")
    A("v_lshl_add_u32 v4, v5, 5, v4")
    A("v_and_b32 v5, 4, v1")
    A("v_lshl_add_u32 v4, v5, 2, v4")
    A("s_lshl_b32 s43, s4, 1")
    A("s_add_u32 s43, s43, s33")
    A("s_lshl_b32 s43, s43, 1")
    A("s_add_u32 s43, s43, s35")
    A("s_lshl_b32 s43, s43, 12")
    A("s_lshl_b32 s44, s34, 9")
    A("s_add_u32 s43, s43, s44")
    A("s_lshl_b32 s44, s3, 7")
    A("s_add_u32 s43, s43, s44")
    A(f"s_add_u32 s43, s43, {hex(W_QP)}")
    for r in (21, 23): A(f"v_mov_b32 v{r}, s6")
    A("s_mov_b32 s56, 0x00ff00ff")
    A("s_mov_b32 s57, 0x00ff00ff")
    A(f"s_waitcnt vmcnt({8*len(early_b)})")
    flag_add(62, 0)
    flag_wait(62, 0, 4, 10, 0)
    stamp("h1")
    WF = 128
    for ks in range(16):
        A(f"ds_read_b64_tr_b16 v[{WF+4*ks}:{WF+4*ks+1}], v8 offset:{ks*4096}")
        A(f"ds_read_b64_tr_b16 v[{WF+4*ks+2}:{WF+4*ks+3}], v8 offset:{ks*4096+512}")
        A(f"ds_read_b128 v[{XF+4*ks}:{XF+4*ks+3}], v11 offset:{ks*64}")
    for ks in range(16):
        A(f"s_waitcnt lgkmcnt({min(15, 3*(15-ks))})")
        d = 12 + 4 * (ks & 1)
        c = "0" if ks < 2 else f"v[{d}:{d+3}]"
        A(f"v_mfma_f32_16x16x32_bf16 v[{d}:{d+3}], v[{WF+4*ks}:{WF+4*ks+3}], v[{XF+4*ks}:{XF+4*ks+3}], {c}")
    for r in range(4): A(f"v_add_f32 v{20+2*r}, v{12+r}, v{16+r}")
    A("v_mov_b32_dpp v20, v24 row_shr:4 row_mask:0xf bank_mask:0x2")
    A("v_mov_b32_dpp v22, v26 row_shr:4 row_mask:0xf bank_mask:0x2")
    A("s_mov_b64 exec, s[56:57]")
    A(f"buffer_store_dwordx4 v[20:23], v4, s[24:27], s43 offen {qst}")
    A("s_mov_b64 exec, -1")
    stamp("h2")
    A("s_lshl_b32 s43, s4, 14")
    A("s_lshl_b32 s44, s3, 10")
    A("s_add_u32 s43, s43, s44")
    A(f"s_add_u32 s43, s43, {hex(W_QP)}")
    A("s_add_u32 s44, s43, 4096")
    A("s_lshl_b32 s45, s3, 8")
    A(f"s_add_u32 s45, s45, {L_QA}")
    A("v_lshl_add_u32 v10, v1, 2, s45")
    poll_masked(2, lambda i: A(f"buffer_load_dwordx4 v[{28+4*i}:{31+4*i}], v2, s[24:27], s{43+i} offen {qld}"),
                lambda i: [29 + 4 * i, 31 + 4 * i], qsl)
    A("v_add_f32 v28, v28, v32")
    A("v_add_f32 v30, v30, v34")
    A("v_cvt_pk_bf16_f32 v28, v28, v30")
    A("ds_write_b32 v10, v28")
    if bl == 3: bkv(late_b)
    A("s_waitcnt lgkmcnt(0)")
    A("s_barrier")
    if bl in (1, 2): bkv(late_b)
    stamp("h3")
    if 1 in ab: A("s_branch L_hend")
    A("s_and_b32 s48, s59, 3")
    A("s_lshl_b32 s48, s48, 3")
    A("s_lshl_b32 s49, s3, 1")
    A("s_add_u32 s48, s48, s49")
    A("s_lshl_b32 s49, s48, 14")
    A("s_lshr_b32 s61, s59, 2")
    A("s_lshl_b32 s50, s61, 10")
    A("s_add_u32 s49, s49, s50")
    A(f"s_add_u32 s49, s49, {hex(W_QP+8192)}")
    A("s_add_u32 s50, s49, 4096")
    A("s_add_u32 s51, s49, 16384")
    A("s_add_u32 s52, s49, 20480")
    poll_masked(4, lambda i: A(f"buffer_load_dwordx4 v[{28+4*i}:{31+4*i}], v2, s[24:27], s{49+i} offen {qld}"),
                lambda i: [29 + 4 * i, 31 + 4 * i], 16)
    A("v_add_f32 v28, v28, v32")
    A("v_add_f32 v30, v30, v34")
    A("v_add_f32 v36, v36, v40")
    A("v_add_f32 v38, v38, v42")
    A("v_cvt_pk_bf16_f32 v28, v28, v30")
    A("v_cvt_pk_bf16_f32 v36, v36, v38")
    A("s_lshl_b32 s43, s3, 9")
    A(f"s_add_u32 s43, s43, {L_QB}")
    A("v_lshl_add_u32 v10, v1, 2, s43")
    A("ds_write_b32 v10, v28")
    A("ds_write_b32 v10, v36 offset:256")
    A("s_waitcnt lgkmcnt(0)")
    if 3 in ab: A("s_branch L_hend")
    flag_add(62, 4)
    flag_wait(62, 4, 4, 10, 1)
    A("v_and_b32 v11, 0xf0, v2")
    A(f"v_add_u32 v11, {L_QB}, v11")
    A("v_and_b32 v4, 15, v1")
    A("v_lshlrev_b32 v4, 5, v4")
    A("v_lshrrev_b32 v5, 4, v1")
    A("v_lshl_add_u32 v4, v5, 3, v4")
    A("s_lshl_b32 s43, s3, 12")
    A("v_add_u32 v4, s43, v4")
    A("s_mov_b32 s45, 8")
    A.label("L_battn")
    A("ds_read_b128 v[64:67], v11")
    A("v_add_u32 v11, 256, v11")
    init_state(68, 69, 72)
    A("s_waitcnt lgkmcnt(0)")
    scores(KB, 64, 80, 8)
    softmax(80, 8, 68, 69, 72, 70, 71, 88, 96)
    pv(VB, 8, 72, 88, 96)
    finalize(68, 69, 72, 12, 17, 16)
    A("ds_write_b64 v4, v[16:17]")
    A("v_add_u32 v4, 512, v4")
    A("s_sub_u32 s45, s45, 1")
    A("s_cmp_lg_u32 s45, 0")
    A("s_cbranch_scc1 L_battn")
    A("s_waitcnt lgkmcnt(0)")
    flag_add(62, 12)
    flag_wait(62, 12, 4, 10, 1)
    A("s_lshl_b32 s43, s3, 10")
    A("v_lshl_add_u32 v4, v1, 3, s43")
    A("s_lshl_b32 s43, s48, 2")
    A("s_add_u32 s43, s43, s61")
    A("s_lshl_b32 s43, s43, 13")
    A("s_lshl_b32 s44, s58, 8")
    A("s_add_u32 s43, s43, s44")
    A(f"s_add_u32 s43, s43, {hex(W_PB)}")
    A("s_add_u32 s44, s43, 0x8000")
    G = 64
    for k in range(2):
        for w_ in range(4):
            A(f"ds_read_b64 v[{G+16*k+4*w_+2}:{G+16*k+4*w_+3}], v4 offset:{w_*4096+k*512}")
    A("v_and_b32 v5, 31, v1")
    A("v_lshlrev_b32 v5, 3, v5")
    A("v_lshrrev_b32 v6, 5, v1")
    A("v_lshl_add_u32 v5, v6, 12, v5")
    A("s_mov_b32 s46, 0x55555555")
    A("s_mov_b32 s47, 0x55555555")
    A("s_waitcnt lgkmcnt(0)")
    for k in range(2):
        o = 12 + 4 * k
        for w_ in range(4): A(f"v_mov_b32 v{G+16*k+4*w_}, v{G+16*k+4*w_+3}")
        combine(G + 16 * k, 4, o, o + 2)
        A(f"v_mov_b32_dpp v{o+1}, v{o} quad_perm:[1,1,3,3] row_mask:0xf bank_mask:0xf")
        A(f"v_bitop3_b32 v{o+3}, v{o}, v{o+1}, v{o+2} bitop3:0x96")
        A(f"v_xor_b32 v{o+3}, s6, v{o+3}")
        A("s_mov_b64 exec, s[46:47]")
        A(f"buffer_store_dwordx4 v[{o}:{o+3}], v5, s[24:27], s{43+k} offen {bst}")
        A("s_mov_b64 exec, -1")
    stamp("h4")
    if 4 in ab: A("s_branch L_hend")
    A("s_cmp_lg_u32 s3, 3")
    A("s_cbranch_scc1 L_nol1")
    A("s_lshl_b32 s45, s4, 3")
    A("s_add_u32 s45, s45, s5")
    A("s_lshl_b32 s46, s45, 12")
    A(f"s_add_u32 s46, s46, {hex(W_PB)}")
    if l1j: flag_wait(62, 44, 1, 56, 32)
    poll_masked(4, lambda i: A(f"buffer_load_dwordx4 v[{G+4*i}:{G+4*i+3}], v2, s[24:27], s46 offen offset:{i*1024} {bld}"),
                lambda i: G + 4 * i, l1sl if l1j else 0, presleep=0 if l1j else w1n)
    flag_add(62, 40)
    U1, U2, DEN, A0 = 56, 57, 58, 36
    chain("v_max3_f32", "v_max_f32", U1, [f"v{G+4*u+2}" for u in range(4)])
    for sw in ("v_permlane32_swap_b32", "v_permlane16_swap_b32"):
        A(f"v_mov_b32 v{U2}, v{U1}")
        A(f"{sw} v{U1}, v{U2}")
        A(f"v_max_f32 v{U1}, v{U1}, v{U2}")
    for u in range(4): A(f"v_sub_f32 v{G+4*u+2}, v{G+4*u+2}, v{U1}")
    for u in range(4): A(f"v_exp_f32 v{G+4*u+2}, v{G+4*u+2}")
    for u in range(4):
        op = "v_mul_f32" if u == 0 else "v_fmac_f32"
        for k in range(2):
            A(f"v_lshlrev_b32 v{G+4*u+3}, 16, v{G+4*u+k}")
            A(f"v_and_b32 v{G+4*u+k}, 0xffff0000, v{G+4*u+k}")
            A(f"{op} v{A0+2*k}, v{G+4*u+2}, v{G+4*u+3}")
            A(f"{op} v{A0+2*k+1}, v{G+4*u+2}, v{G+4*u+k}")
        if u == 0: A(f"v_mov_b32 v{DEN}, v{G+2}")
        else: A(f"v_add_f32 v{DEN}, v{DEN}, v{G+4*u+2}")
    for r in (DEN, A0, A0 + 1, A0 + 2, A0 + 3):
        for sw in ("v_permlane32_swap_b32", "v_permlane16_swap_b32"):
            A(f"v_mov_b32 v{U2}, v{r}")
            A(f"{sw} v{r}, v{U2}")
            A(f"v_add_f32 v{r}, v{r}, v{U2}")
    A(f"v_rcp_f32 v{DEN}, v{DEN}")
    for k in range(4): A(f"v_mul_f32 v{A0+k}, v{A0+k}, v{DEN}")
    A(f"v_cvt_pk_bf16_f32 v12, v{A0}, v{A0+1}")
    A(f"v_cvt_pk_bf16_f32 v14, v{A0+2}, v{A0+3}")
    A("v_mov_b32 v13, s6")
    A("v_mov_b32 v15, s6")
    A("s_lshr_b32 s43, s4, 1")
    A("s_lshl_b32 s43, s43, 12")
    A("s_lshr_b32 s44, s5, 1")
    A("s_lshl_b32 s44, s44, 10")
    A("s_add_u32 s43, s43, s44")
    A("s_and_b32 s44, s4, 1")
    A("s_lshl_b32 s44, s44, 9")
    A("s_add_u32 s43, s43, s44")
    A("s_and_b32 s44, s5, 1")
    A("s_lshl_b32 s44, s44, 8")
    A("s_add_u32 s43, s43, s44")
    A(f"s_add_u32 s43, s43, {hex(W_OB2)}")
    A("s_mov_b64 exec, 0xffff")
    A(f"buffer_store_dwordx4 v[12:15], v2, s[24:27], s43 offen {bst}")
    A("s_mov_b64 exec, -1")
    A.label("L_nol1")
    if 2 in ab: A("s_branch L_hend")

    FR = [128, 160]
    flag_wait(62, 8, 4, 56, 8)
    for T_ in range(2):
        for ks in range(8):
            r = FR[T_] + ks * 4
            off = T_ * 32768 + ks * 4096
            A(f"ds_read_b64_tr_b16 v[{r}:{r+1}], v9 offset:{off}")
            A(f"ds_read_b64_tr_b16 v[{r+2}:{r+3}], v9 offset:{off+512}")
    G = 64
    A("s_mul_i32 s43, s3, 576")
    A(f"s_add_u32 s43, s43, {L_O}")
    A("v_and_b32 v60, 31, v1")
    A("v_lshl_add_u32 v60, v60, 3, s43")
    A("v_lshrrev_b32 v7, 5, v1")
    A("v_lshl_add_u32 v60, v7, 2, v60")
    A("v_and_b32 v6, 3, v1")
    A("v_mul_u32_u24 v6, 576, v6")
    A("v_lshrrev_b32 v7, 4, v1")
    A("v_lshl_add_u32 v6, v7, 4, v6")
    A(f"v_add_u32 v6, {L_O}, v6")
    A("v_and_b32 v8, 3, v1")
    A("v_lshlrev_b32 v8, 7, v8")
    A("v_lshl_add_u32 v8, v7, 4, v8")
    A("v_and_b32 v7, 4, v1")
    A("v_lshl_add_u32 v8, v7, 4, v8")
    A("s_lshl_b32 s52, s4, 3")
    A("s_add_u32 s52, s52, s5")
    if ymap:
        A("s_and_b32 s63, s52, 15")
        A("s_lshl_b32 s63, s63, 4")
        A("s_lshr_b32 s44, s4, 1")
        A("s_add_u32 s48, s63, s44")
    else:
        A("s_mov_b32 s48, s52")
    A("s_lshl_b32 s61, s48, 7")
    A(f"s_add_u32 s61, s61, {hex(W_QP)}")
    A("s_add_u32 s63, s61, 0x40000")
    A("s_and_b32 s60, s48, 3")
    A("s_lshl_b32 s60, s60, 12")
    A("s_lshr_b32 s44, s48, 2")
    A("s_lshl_b32 s44, s44, 5")
    A("s_add_u32 s60, s60, s44")
    A("s_lshl_b32 s52, s52, 11")
    A("s_lshl_b32 s53, s3, 9")
    A("s_add_u32 s52, s52, s53")
    A(f"s_add_u32 s52, s52, {hex(W_QP)}")
    A("s_xor_b32 s53, s6, 0x5bd1e994")
    for r in (21, 23): A(f"v_mov_b32 v{r}, s53")
    A("v_and_b32 v11, 3, v1")
    A("v_lshlrev_b32 v11, 3, v11")
    A("v_lshl_add_u32 v11, v7, 9, v11")
    if wx:
        A("v_add_u32 v11, s60, v11")
        A("v_lshlrev_b32 v5, 7, v7")
        A("v_xor_b32 v11, v11, v5")
        A("s_mov_b32 s60, 0")
    A("v_lshrrev_b32 v5, 3, v1")
    A("v_lshlrev_b32 v5, 15, v5")
    A("v_and_b32 v4, 0x70, v2")
    A("v_add_u32 v5, v5, v4")
    A("s_lshl_b32 s43, s3, 2")
    A("v_add_u32 v10, s43, v62")
    A("s_lshr_b32 s45, s4, 1")
    A("s_lshl_b32 s46, s45, 12")
    A("s_lshl_b32 s44, s3, 10")
    A("s_add_u32 s46, s46, s44")
    A(f"s_add_u32 s46, s46, {hex(W_OB2)}")
    A("s_lshl_b32 s80, s45, 16")
    A("s_lshl_b32 s44, s3, 9")
    A("s_add_u32 s80, s80, s44")
    A(f"s_add_u32 s80, s80, {hex(W_PB)}")
    for i in range(1, 8): A(f"s_add_u32 s{80+i}, s80, {i*8192}")
    A("v_and_b32 v3, 31, v1")
    A("v_lshlrev_b32 v3, 4, v3")
    A("v_lshrrev_b32 v4, 5, v1")
    A("v_lshl_add_u32 v3, v4, 12, v3")
    A("s_mul_i32 s43, s3, 576")
    A(f"s_add_u32 s43, s43, {L_O+2304}")
    A("v_lshl_add_u32 v4, v1, 3, s43")
    A("s_xor_b32 s54, s6, 0x2545f490")
    def gemv(T_, D):
        OFR = 96
        for ks in range(8):
            A(f"ds_read_b128 v[{OFR+4*ks}:{OFR+4*ks+3}], v6 offset:{T_*2304+ks*64}")
        for ks in range(8):
            A(f"s_waitcnt lgkmcnt({7-ks})")
            d = D + 4 * (ks & 1)
            r = FR[T_] + ks * 4
            c = "0" if ks < 2 else f"v[{d}:{d+3}]"
            A(f"v_mfma_f32_16x16x32_bf16 v[{d}:{d+3}], v[{r}:{r+3}], v[{OFR+4*ks}:{OFR+4*ks+3}], {c}")
        for r in range(4): A(f"v_add_f32 v{D+r}, v{D+r}, v{D+4+r}")
    if emid != 2: flag_wait(10, 16, 1, 56, esl)
    stamp("h5")
    poll_masked(1, lambda i: A(f"buffer_load_dwordx4 v[{G}:{G+3}], v2, s[24:27], s46 offen {bld}"),
                lambda i: [G + 1, G + 3], 16 if emid != 2 else 0, presleep=o2n if emid == 2 else 0)
    A(f"v_mov_b32 v{G+1}, v{G+2}")
    A(f"ds_write_b64 v4, v[{G}:{G+1}]")
    A("s_waitcnt lgkmcnt(0)")
    flag_add(62, 32)
    flag_wait(62, 32, 4, 56, 1 if emid != 2 else 16)
    gemv(1, 12)
    A("v_cvt_pk_bf16_f32 v24, v12, v13")
    A("v_cvt_pk_bf16_f32 v26, v14, v15")
    if emid: flag_wait(10, 48, 1, 56, xsl)
    flag_wait(10, 48, 2, 56, 0)
    if pd: A(f"s_sleep {pd}")
    stamp("h6")
    top, done, nis, np0, np1, nc0, nc1 = (lab(x) for x in ("pa", "padone", "nis", "np0", "np1", "nc0", "nc1"))
    A(f"s_mov_b32 s42, {spin}")
    for i in range(8): A(f"s_mov_b64 s[{64+2*i}:{65+2*i}], -1")
    A("s_mov_b32 s44, 0")
    A("s_mov_b32 s45, 0")
    A.label(top)
    A("s_cmp_eq_u32 s44, 3")
    A(f"s_cbranch_scc1 {nis}")
    for i in range(8):
        A(f"s_mov_b64 exec, s[{64+2*i}:{65+2*i}]")
        A(f"buffer_load_dwordx4 v[{G+4*i}:{G+4*i+3}], v3, s[24:27], s{80+i} offen {ald}")
    A("s_mov_b64 exec, -1")
    A.label(nis)
    for k, np_ in ((0, np0), (1, np1)):
        A(f"s_bitcmp1_b32 s45, {k}")
        A(f"s_cbranch_scc0 {np_}")
        combine2(G + 16 * k, 4, 60, 256 * k)
        A.label(np_)
    A("s_mov_b32 s45, 0")
    A("s_cmp_eq_u32 s44, 3")
    A(f"s_cbranch_scc1 {done}")
    A("s_waitcnt vmcnt(0)")
    for k, nc in ((0, nc0), (1, nc1)):
        A(f"s_bitcmp1_b32 s44, {k}")
        A(f"s_cbranch_scc1 {nc}")
        for i in range(4 * k, 4 * k + 4): chk(G + 4 * i, 64 + 2 * i, "s54")
        b0 = 64 + 8 * k
        A(f"s_or_b64 s[40:41], s[{b0}:{b0+1}], s[{b0+2}:{b0+3}]")
        A(f"s_or_b64 vcc, s[{b0+4}:{b0+5}], s[{b0+6}:{b0+7}]")
        A("s_or_b64 s[40:41], s[40:41], vcc")
        A(f"s_cselect_b32 s47, 0, {1<<k}")
        A("s_or_b32 s44, s44, s47")
        A("s_or_b32 s45, s45, s47")
        A.label(nc)
    if pbk:
        nb_ = lab("nbk")
        A("s_bcnt1_i32_b64 s47, s[64:65]")
        for i in range(1, 8):
            A(f"s_bcnt1_i32_b64 s43, s[{64+2*i}:{65+2*i}]")
            A("s_add_u32 s47, s47, s43")
        A(f"s_cmp_le_u32 s47, {pbt}")
        A(f"s_cbranch_scc1 {nb_}")
        A(f"s_sleep {pbk}")
        A.label(nb_)
    A("s_sub_u32 s42, s42, 1")
    A("s_cmp_lg_u32 s42, 0")
    A(f"s_cbranch_scc1 {top}")
    A.label(done)
    stamp("h7")
    A("s_waitcnt lgkmcnt(0)")
    A("s_barrier")
    gemv(0, 12)
    A("v_cvt_pk_bf16_f32 v20, v12, v13")
    A("v_cvt_pk_bf16_f32 v22, v14, v15")
    A("v_mov_b32_dpp v20, v24 row_shr:4 row_mask:0xf bank_mask:0x2")
    A("v_mov_b32_dpp v22, v26 row_shr:4 row_mask:0xf bank_mask:0x2")
    A("s_mov_b64 exec, s[56:57]")
    A(f"buffer_store_dwordx4 v[20:23], v8, s[24:27], s52 offen {yst}")
    A("s_mov_b64 exec, -1")
    stamp("h8")
    A("s_cmp_lg_u32 s3, 0")
    A("s_cbranch_scc1 L_hend")
    poll_masked(2, lambda i: A(f"buffer_load_dwordx4 v[{G+4*i}:{G+4*i+3}], v5, s[24:27], s{61+2*i} offen {yld}"),
                lambda i: [G + 4 * i + 1, G + 4 * i + 3], ysl, tagreg="s53")
    stamp("h9")
    U = G + 16
    for i in range(2):
        A(f"v_lshlrev_b32 v{U+4*i}, 16, v{G+4*i}")
        A(f"v_and_b32 v{U+4*i+1}, 0xffff0000, v{G+4*i}")
        A(f"v_lshlrev_b32 v{U+4*i+2}, 16, v{G+4*i+2}")
        A(f"v_and_b32 v{U+4*i+3}, 0xffff0000, v{G+4*i+2}")
    for k in range(4):
        A(f"v_add_f32 v{U+k}, v{U+k}, v{U+4+k}")
    A(f"v_permlane32_swap_b32 v{U}, v{U+2}")
    A(f"v_permlane32_swap_b32 v{U+1}, v{U+3}")
    A(f"v_add_f32 v{U}, v{U}, v{U+2}")
    A(f"v_add_f32 v{U+1}, v{U+1}, v{U+3}")
    A(f"v_add_f32_dpp v{U}, v{U}, v{U} row_ror:8 row_mask:0xf bank_mask:0xf")
    A(f"v_add_f32_dpp v{U+1}, v{U+1}, v{U+1} row_ror:8 row_mask:0xf bank_mask:0xf")
    A(f"v_mov_b32 v{U+2}, v{U}")
    A(f"v_mov_b32 v{U+3}, v{U+1}")
    A(f"v_permlane16_swap_b32 v{U}, v{U+2}")
    A(f"v_permlane16_swap_b32 v{U+1}, v{U+3}")
    A(f"v_add_f32 v{U}, v{U}, v{U+2}")
    A(f"v_add_f32 v{U+1}, v{U+1}, v{U+3}")
    A(f"v_cvt_pk_bf16_f32 v{U+4}, v{U}, v{U+1}")
    A(f"v_mov_b32 v{U+5}, v{U+4}")
    A(f"v_permlane32_swap_b32 v{U+4}, v{U+5}")
    A("s_mov_b64 exec, 0xff")
    A(f"buffer_store_dwordx2 v[{U+4}:{U+5}], v11, s[28:31], s60 offen {ost}")
    A("s_mov_b64 exec, -1")
    A("s_cmp_lg_u32 s2, 0")
    A("s_cbranch_scc1 L_hend")
    A("v_mov_b32 v3, 0")
    A("v_mov_b32 v4, s6")
    A("s_mov_b64 exec, 1")
    A(f"buffer_store_dword v4, v3, s[24:27], 0 offen {ost}")
    A("s_mov_b64 exec, -1")
    A.label("L_hend")
    stamp_store(240)
    A("s_endpgm")

    A.label("L_stream")
    srdp(8, "A_k", 0x10000000)
    A("s_sub_u32 s33, s3, 4")
    A("s_lshl_b32 s38, s33, 5")
    A("s_add_u32 s38, s38, s4")
    A("s_lshl_b32 s39, s38, 8")
    A("s_lshl_b32 s38, s38, 21")
    A(f"s_mul_i32 s28, s33, {rc}")
    A("s_add_u32 s29, s28, s5")
    if rhs is not None:
        A(f"s_lshr_b32 s37, s4, {rhs}")
        A("s_add_u32 s29, s29, s37")
    A("s_and_b32 s29, s29, 7")
    A(f"s_lshl_b32 s29, s29, {12 if ti else 14}")
    A("s_add_u32 s29, s29, s38")
    A("s_mov_b32 s30, s29")
    for q in range(4): A(f"v_add_u32 v{48+q}, {q*(32768 if ti else 4096)}, v2")
    R0 = 64
    def load(q, so, base=None):
        for j in range(4):
            r = (base or R0) + 16 * q + 4 * j
            A(f"buffer_load_dwordx4 v[{r}:{r+3}], v{48+q}, s[8:11], {so} offen offset:{j*1024} nt")
    if pt:
        srdp(76, "A_v", 0x10000000)
        srdp(16, "A_wo", 0x800000)
        srdp(20, "B_wo", 0x800000)
        A("s_lshl_b32 s34, s4, 18")
        A("s_mov_b64 exec, 1")
        A("buffer_load_dword v52, v2, s[8:11], s30 offen nt")
        if pt >= 2:
            A("buffer_load_dword v53, v2, s[16:19], s34 offen nt")
            A("buffer_load_dword v54, v2, s[20:23], s34 offen nt")
        if pt >= 3:
            A("buffer_load_dword v55, v2, s[76:79], s30 offen nt")
        A("s_mov_b64 exec, -1")
    for q in range(4):
        if wofirst: break
        if q == sgate - 1 + 0 and sgate: flag_wait(62, 36, 4, 10, 0)
        load(q, "s30")
    for x in range(xpre):
        A(f"s_add_u32 s30, s30, {NWP*CSB}")
        for q in range(4): load(q, "s30", 128 + 64 * x)
    A("s_mov_b32 s12, s8")
    A("s_mov_b32 s13, s9")
    A(f"s_mov_b32 s14, s{P['A_v']}")
    A(f"s_and_b32 s15, s{P['A_v']+1}, 0xffff")
    srdp(16, "A_wo", 0x800000)
    srdp(20, "B_wo", 0x800000)
    A(f"s_add_u32 s39, s39, {hex(W_CNT)}")
    A(f"s_add_u32 s52, s{P['ws']}, s39")
    A(f"s_addc_u32 s53, s{P['ws']+1}, 0")
    if jbh:
        A("s_lshr_b32 s37, s4, 2")
        A("s_add_u32 s28, s28, s37")
    else:
        A(f"s_add_u32 s28, s28, {JB}")
    A(f"s_and_b32 s28, s28, {8//NBW-1}")
    A(f"s_add_u32 s28, s28, {8*(ns-ksk)}")
    A("s_mov_b32 s57, s29")
    A("v_lshrrev_b32 v3, 3, v1")
    A("v_lshlrev_b32 v3, 11, v3")
    A("v_and_b32 v4, 0x70, v2")
    A("v_add_u32 v3, v3, v4")
    A("v_and_b32 v4, 16, v1")
    A("v_lshlrev_b32 v4, 1, v4")
    A("v_xor_b32 v3, v3, v4")
    A("v_xor_b32 v44, 64, v3")
    A("v_and_b32 v4, 0xf0, v2")
    A("s_andn2_b32 s34, s4, 1")
    A("s_lshl_b32 s34, s34, 18")
    A("s_lshl_b32 s35, s33, 17")
    A("s_add_u32 s34, s34, s35")
    A("s_and_b32 s35, s4, 1")
    A("s_lshl_b32 s35, s35, 3")
    A("s_add_u32 s35, s35, s5")
    A("s_lshl_b32 s35, s35, 7")
    A("s_add_u32 s34, s34, s35")
    A("s_lshl_b32 s35, s33, 13")
    A(f"s_add_u32 s35, s35, {L_WO}")
    if lateb0: A("s_barrier")
    else: flag_wait(62, 36, 4, 10, 0)
    A(f"s_xor_b32 s45, s34, {512 if wx else 0}")
    order = [(T_, u) for u in range(8) for T_ in range(2)] if wx else [(T_, u) for T_ in range(2) for u in range(8)]
    for k_, (T_, u) in enumerate(order):
        A(f"s_add_u32 s37, s35, {T_*32768+u*1024}")
        A("s_mov_b32 m0, s37")
        A(f"s_add_u32 s39, s{45 if T_ else 34}, {u*16384}")
        if thr and k_ >= thr: A(f"s_waitcnt vmcnt({thr-1})")
        A(f"buffer_load_dwordx4 v{44 if u&1 else 3}, s[{16+4*T_}:{19+4*T_}], s39 offen nt lds")
    if wofirst:
        for n in range(pre0):
            if thr: A(f"s_waitcnt vmcnt({thr-1})")
            A(f"buffer_load_dwordx4 v[{R0+4*n}:{R0+4*n+3}], v{48+(n>>2)}, s[8:11], s30 offen offset:{(n&3)*1024} nt")
        A("s_mov_b32 s31, s30")
    Q, ACC, M, LS, C, AL, NM, S, T, PL, PH = 8, 12, 20, 21, 22, 23, 24, 28, 32, 34, 35
    init_state(M, LS, ACC)
    A("s_waitcnt lgkmcnt(0)")
    mktag()
    A("s_lshl_b32 s43, s33, 8")
    A(f"s_add_u32 s43, s43, {L_QA}")
    A("v_add_u32 v4, s43, v4")
    A(f"v_mov_b32 v7, {L_FL}")
    A("s_lshl_b32 s43, s33, 2")
    A("v_add_u32 v62, s43, v62")
    A("v_and_b32 v5, 15, v1")
    A("v_lshlrev_b32 v5, 5, v5")
    A("v_lshrrev_b32 v6, 5, v1")
    A("v_lshl_add_u32 v5, v6, 4, v5")
    A("s_lshl_b32 s43, s33, 12")
    A(f"s_add_u32 s43, s43, {L_FIFO}")
    A("v_lshl_add_u32 v46, v1, 2, s43")
    A("v_mov_b32 v47, v46")
    A("s_lshl_b32 s43, s4, 3")
    A("s_add_u32 s43, s43, s5")
    A("s_lshl_b32 s43, s43, 12")
    A("s_lshl_b32 s44, s33, 9")
    A("s_add_u32 s43, s43, s44")
    A(f"s_add_u32 s43, s43, {hex(W_PB)}")
    A("s_xor_b32 s6, s6, 0x2545f490")
    A("s_mov_b32 s72, 0xffff")
    A("s_mov_b32 s73, 0xffff")
    for q in range(4):
        A(f"s_mov_b32 s{64+2*q}, {hex(0x11111111 << q)}")
        A(f"s_mov_b32 s{65+2*q}, {hex(0x11111111 << q)}")
    A(f"s_mov_b32 s58, {ns-1}")
    A("s_mov_b32 s59, s58")
    A("s_mov_b32 s56, 0")
    A("s_mov_b32 s63, 0x10000000")
    A("s_mov_b32 s76, s8")
    A("s_mov_b32 s77, s9")
    A("s_mov_b32 s78, 0x10000000")
    A("s_mov_b32 s79, 0x20000")
    stamp("s1")
    A("s_barrier")
    stamp("s2")
    if sprio: A(f"s_setprio {sprio}")
    A(f"ds_read_b128 v[{Q}:{Q+3}], v4")
    def claim():
        A("s_mov_b32 s50, 1")
        A("s_atomic_add s50, s[52:53], 0 glc")
    def issue(q):
        sd, so = ("s[8:11]", "s30") if q < 2 else ("s[76:79]", "s31")
        for j in range(4):
            r = R0 + 16 * q + 4 * j
            A(f"buffer_load_dwordx4 v[{r}:{r+3}], v{48+q}, {sd}, {so} offen offset:{j*1024} nt")
    def setbase(a, b):
        A(f"s_mov_b32 s8, s{12+2*a}"); A(f"s_mov_b32 s9, s{13+2*a}")
        A(f"s_mov_b32 s76, s{12+2*b}"); A(f"s_mov_b32 s77, s{13+2*b}")
    def kq(q, ex, iss=True):
        A(f"s_waitcnt vmcnt({12+ex})")
        K = R0 + 16 * q
        for r in range(4):
            for j in range(4):
                c = "0" if r == 0 else f"v{S+j}"
                A(f"v_dot2_f32_bf16 v{S+j}, v{K+4*j+r}, v{Q+r}, {c}")
        if iss: issue(q)
        A(f"v_add_f32_dpp v{T}, v{S}, v{S} row_ror:8 row_mask:0xf bank_mask:0x3")
        A(f"v_add_f32_dpp v{T+1}, v{S+1}, v{S+1} row_ror:8 row_mask:0xf bank_mask:0x3")
        A(f"v_add_f32_dpp v{T}, v{S+2}, v{S+2} row_ror:8 row_mask:0xf bank_mask:0xc")
        A(f"v_add_f32_dpp v{T+1}, v{S+3}, v{S+3} row_ror:8 row_mask:0xf bank_mask:0xc")
        A(f"v_add_f32_dpp v{S}, v{T}, v{T} row_shl:4 row_mask:0xf bank_mask:0x5")
        A(f"v_add_f32_dpp v{S}, v{T+1}, v{T+1} row_shr:4 row_mask:0xf bank_mask:0xa")
        A(f"v_add_f32_dpp v{S}, v{S}, v{S} quad_perm:[2,3,0,1] row_mask:0xf bank_mask:0xf")
        A(f"v_add_f32_dpp v{S}, v{S}, v{S} quad_perm:[1,0,3,2] row_mask:0xf bank_mask:0xf")
        A(f"v_cndmask_b32 v{C}, v{C}, v{S}, s[{64+2*q}:{65+2*q}]")
    def smx():
        if rnd: round2([C])
        A(f"v_max_f32_dpp v{AL}, v{C}, v{C} row_ror:8 row_mask:0xf bank_mask:0xf")
        for st in (4, 2, 1):
            A(f"v_max_f32_dpp v{AL}, v{AL}, v{AL} row_ror:{st} row_mask:0xf bank_mask:0xf")
        A(f"v_max_f32 v{AL}, v{AL}, v{M}")
        A(f"v_sub_f32 v{NM}, v{M}, v{AL}")
        A(f"v_mov_b32 v{M}, v{AL}")
        A(f"v_sub_f32 v{C}, v{C}, v{AL}")
        A(f"v_mul_f32 v{AL}, s7, v{NM}")
        A(f"v_mul_f32 v{C}, s7, v{C}")
        A(f"v_exp_f32 v{AL}, v{AL}")
        A(f"v_exp_f32 v{C}, v{C}")
        for e in range(8): A(f"v_mul_f32 v{ACC+e}, v{ACC+e}, v{AL}")
        A(f"v_cvt_pk_bf16_f32 v{PL}, v{C}, 0")
        A(f"v_cvt_pk_bf16_f32 v{PH}, 0, v{C}")
        A(f"v_fma_f32 v{LS}, v{LS}, v{AL}, v{C}")
    def vq(q, ln, ex=0, iss=True):
        A(f"s_waitcnt vmcnt({12+ex})")
        V = R0 + 16 * q
        for j in range(4):
            for r in range(4):
                A(f"v_dot2c_f32_bf16_dpp v{ACC+2*r}, v{PL}, v{V+4*j+r} row_newbcast:{4*j+ln} row_mask:0xf bank_mask:0xf")
                A(f"v_dot2c_f32_bf16_dpp v{ACC+2*r+1}, v{PH}, v{V+4*j+r} row_newbcast:{4*j+ln} row_mask:0xf bank_mask:0xf")
        if iss: issue(q)
    def nextdyn(after):
        exh = lab("exh")
        A("s_waitcnt lgkmcnt(0)")
        A("s_add_u32 s56, s56, 1")
        A(f"s_cmp_gt_u32 s56, {NDYN}")
        A(f"s_cbranch_scc1 {exh}")
        A(f"s_cmp_ge_u32 s50, {NDYN}")
        A(f"s_cbranch_scc1 {exh}")
        A("s_lshr_b32 s37, s50, 1")
        A("s_lshl_b32 s37, s37, 3")
        A("s_add_u32 s37, s37, s28")
        A("s_lshl_b32 s37, s37, 1")
        A("s_and_b32 s36, s50, 1")
        A("s_add_u32 s37, s37, s36")
        A(f"s_add_u32 s36, s50, {T2//2 - 2*NSK}")
        A(f"s_cmp_lt_u32 s50, {2*NSK}")
        A("s_cselect_b32 s36, s37, s36")
        if ti:
            A("s_lshr_b32 s30, s36, 4")
            A("s_lshl_b32 s30, s30, 17")
            A("s_bfe_u32 s37, s36, 0x30001")
            A("s_lshl_b32 s37, s37, 12")
            A("s_add_u32 s30, s30, s37")
            A("s_and_b32 s37, s36, 1")
            A("s_lshl_b32 s37, s37, 16")
            A("s_add_u32 s30, s30, s37")
        else:
            A("s_lshl_b32 s30, s36, 13")
        A("s_add_u32 s30, s30, s38")
        A(f"s_sub_u32 s31, s30, {65536 if ti else 8192}")
        setbase(0, 1)
        A("s_mov_b32 s55, 3")
        if not emid:
            A(f"s_cmp_lt_u32 s50, {max(0, NDYN-wox)}")
            A(f"s_cbranch_scc1 {after}")
            flag_add(62, 16)
        A(f"s_branch {after}")
        A.label(exh)
        A("s_mov_b32 s30, s63")
        A("s_mov_b32 s31, s63")
        A("s_mov_b32 s55, 2")
        if not emid: flag_add(62, 16)
        flag_add(62, 48)
        stamp("s3")
    def adv():
        A(f"s_add_u32 s29, s29, {NWP*CSB}")
        A("s_mov_b32 s30, s29")
        A("s_mov_b32 s31, s29")
    CN = 25
    n0 = 16 - L
    assert 2 <= L <= 8
    def ld(n):
        q, j = n >> 2, n & 3
        sd, so = ("s[8:11]", "s30") if q < 2 else ("s[76:79]", "s31")
        A(f"buffer_load_dwordx4 v[{R0+4*n}:{R0+4*n+3}], v{48+q}, {sd}, {so} offen offset:{j*1024} nt")
    def kred(q):
        A(f"v_add_f32_dpp v{T}, v{S}, v{S} row_ror:8 row_mask:0xf bank_mask:0x3")
        A(f"v_add_f32_dpp v{T+1}, v{S+1}, v{S+1} row_ror:8 row_mask:0xf bank_mask:0x3")
        A(f"v_add_f32_dpp v{T}, v{S+2}, v{S+2} row_ror:8 row_mask:0xf bank_mask:0xc")
        A(f"v_add_f32_dpp v{T+1}, v{S+3}, v{S+3} row_ror:8 row_mask:0xf bank_mask:0xc")
        A(f"v_add_f32_dpp v{S}, v{T}, v{T} row_shl:4 row_mask:0xf bank_mask:0x5")
        A(f"v_add_f32_dpp v{S}, v{T+1}, v{T+1} row_shr:4 row_mask:0xf bank_mask:0xa")
        A(f"v_add_f32_dpp v{S}, v{S}, v{S} quad_perm:[2,3,0,1] row_mask:0xf bank_mask:0xf")
        A(f"v_add_f32_dpp v{S}, v{S}, v{S} quad_perm:[1,0,3,2] row_mask:0xf bank_mask:0xf")
        A(f"v_cndmask_b32 v{C}, v{C}, v{S}, s[{64+2*q}:{65+2*q}]")
    def k1(n):
        j = n & 3
        for r in range(4):
            c = "0" if r == 0 else f"v{S+j}"
            A(f"v_dot2_f32_bf16 v{S+j}, v{R0+4*n+r}, v{Q+r}, {c}")
        if j == 3: kred(n >> 2)
    def v1(n):
        q, j = n >> 2, n & 3
        for r in range(4):
            A(f"v_dot2c_f32_bf16_dpp v{ACC+2*r}, v{PL}, v{R0+4*n+r} row_newbcast:{4*j+q} row_mask:0xf bank_mask:0xf")
            A(f"v_dot2c_f32_bf16_dpp v{ACC+2*r+1}, v{PH}, v{R0+4*n+r} row_newbcast:{4*j+q} row_mask:0xf bank_mask:0xf")
    def fifo_pre():
        A(f"ds_read_b32 v{CN}, v47")
        A("v_add_u32 v47, 256, v47")
        A("s_waitcnt lgkmcnt(0)")
    def decK():
        last, go = lab("lk"), lab("gk")
        A("s_cmp_eq_u32 s58, 0")
        A(f"s_cbranch_scc1 {last}")
        adv()
        A("s_sub_u32 s58, s58, 1")
        if l1j:
            A(f"s_cmp_lg_u32 s58, {ns-1-l1j}")
            A(f"s_cbranch_scc1 {go}")
            flag_add(7, 44)
        A(f"s_branch {go}")
        A.label(last)
        stamp("sk")
        if emid == 1: flag_add(62, 16)
        A("s_mov_b32 s29, s57")
        A("s_mov_b32 s30, s29")
        A("s_mov_b32 s31, s29")
        fifo_pre()
        setbase(1, 1)
        A("s_mov_b32 s55, 1")
        A.label(go)
    ak_ = [int(c) for c in ak] if ak else [L] * 16
    av_ = [int(c) for c in av] if av else [L] * 16
    assert wofirst and pre0 == L and ak_[15] == L and av_[15] == L
    def body(a, cons, dec):
        nxt = L
        done_dec = False
        for n in range(16):
            tgt = n + a[n]
            assert tgt >= nxt - 1 and a[n] <= 8
            if tgt >= 16 and not done_dec:
                assert nxt >= 16 or True
                pre = [i for i in range(nxt, 16)]
                if not pre: dec()
                A(f"s_waitcnt vmcnt({nxt-1-n})")
                for i in pre: ld(i)
                nxt = 16
                if pre: dec()
                done_dec = True
                for i in range(nxt, tgt + 1): ld(i & 15)
                nxt = tgt + 1
            else:
                A(f"s_waitcnt vmcnt({nxt-1-n})")
                for i in range(nxt, tgt + 1): ld(i & 15)
                nxt = max(nxt, tgt + 1)
            cons(n)
        assert nxt == 16 + L
    A("s_mov_b32 s55, 0")
    A(f"s_waitcnt vmcnt({L}) lgkmcnt(0)")
    flag_add(7, 8)
    A.label("L_K")
    body(ak_, k1, decK)
    A(f"ds_write_b32 v46, v{C}")
    A("v_add_u32 v46, 256, v46")
    A("s_cmp_eq_u32 s55, 0")
    A("s_cbranch_scc1 L_K")
    A.label("L_V")
    A(f"v_mov_b32 v{C}, v{CN}")
    smx()
    def decV():
        adv()
        A("s_sub_u32 s59, s59, 1")
        A(f"ds_read_b32 v{CN}, v47")
        A("v_add_u32 v47, 256, v47")
    body(av_, v1, decV)
    A("s_waitcnt lgkmcnt(0)")
    A(f"s_cmp_ge_u32 s59, {nd}")
    A("s_cbranch_scc1 L_V")
    for n in range(L, 16): ld(n)
    if not (set(ab) & {1, 3, 4}): flag_wait(7, 40, 1, 36, 1)
    A.label("L_VD")
    A("s_cmp_lg_u32 s59, 0")
    A("s_cbranch_scc1 L_VD1")
    claim()
    A.label("L_VD1")
    A(f"v_mov_b32 v{C}, v{CN}")
    smx()
    vq(0, 0, 0, False); vq(1, 1, -4, False)
    A("s_cmp_eq_u32 s59, 0")
    A("s_cbranch_scc1 L_VD2")
    adv()
    A("s_sub_u32 s59, s59, 1")
    fifo_pre()
    A("s_branch L_VD3")
    A.label("L_VD2")
    nextdyn("L_VD3")
    A.label("L_VD3")
    issue(0); issue(1)
    vq(2, 2); vq(3, 3)
    A("s_cmp_eq_u32 s55, 1")
    A("s_cbranch_scc1 L_VD")
    A("s_cmp_eq_u32 s55, 2")
    A("s_cbranch_scc1 L_fin")
    A.label("L_top2")
    claim()
    A(f"v_mov_b32 v{C}, 0xf149f2ca")
    kq(0, 0, False); kq(1, -4, False)
    smx()
    nextdyn("L_2")
    A.label("L_2")
    issue(0); issue(1)
    vq(2, 0); vq(3, 1)
    A("s_cmp_eq_u32 s55, 3")
    A("s_cbranch_scc1 L_top2")
    A.label("L_fin")
    stamp("s5")
    for st in (8, 4, 2, 1):
        A(f"v_add_f32_dpp v{LS}, v{LS}, v{LS} row_ror:{st} row_mask:0xf bank_mask:0xf")
    finalize(M, LS, ACC, 24, 40, 42)
    A("v_mov_b32 v41, v40")
    A("v_xor_b32 v43, s6, v42")
    A("v_permlane16_swap_b32 v40, v41")
    A("v_bitop3_b32 v43, v40, v41, v43 bitop3:0x96")
    stamp("s4")
    A("s_mov_b64 exec, s[72:73]")
    A(f"buffer_store_dwordx4 v[40:43], v5, s[24:27], s43 offen {ast}")
    flag_add(62, 48)
    stamp_store(240)
    A.label("L_end")
    A("s_endpgm")

    body = A.render()
    nv = 256
    txt = HEADER + f"; @launch grid=(256,1,1) block=(512,1,1) lds={L_TOT}\n"
    txt += '.amdgcn_target "amdgcn-amd-amdhsa--gfx950"\n.text\n'
    txt += f".globl {NAME}\n.p2align 8\n.type {NAME},@function\n"
    txt += body
    txt += '.section .rodata,"a"\n.p2align 6\n'
    txt += f".amdhsa_kernel {NAME}\n"
    txt += f"  .amdhsa_next_free_vgpr {nv}\n  .amdhsa_next_free_sgpr 102\n  .amdhsa_accum_offset {nv}\n"
    txt += "  .amdhsa_group_segment_fixed_size 0\n  .amdhsa_kernarg_size 104\n  .amdhsa_user_sgpr_count 2\n"
    txt += "  .amdhsa_user_sgpr_kernarg_segment_ptr 1\n  .amdhsa_system_sgpr_workgroup_id_x 1\n.end_amdhsa_kernel\n"
    return txt

if __name__ == "__main__":
    import argparse
    ap = argparse.ArgumentParser()
    ap.add_argument("out")
    ap.add_argument("--kw", default="")
    a = ap.parse_args()
    kw = eval("dict(" + a.kw + ")")
    open(a.out, "w").write(gen(**kw))
```
